```python
import torch

def _softmax(x, axis=-1):
    return torch.softmax(x, dim=axis)
def _gelu(x):
    return torch.nn.functional.gelu(x, approximate="tanh")
def _silu(x):
    return torch.nn.functional.silu(x)
def _sigmoid(x):
    return torch.sigmoid(x)
def _layernorm(x, axis=-1, eps=1e-5):
    m = x.mean(dim=axis, keepdim=True)
    v = x.var(dim=axis, keepdim=True, unbiased=False)
    return (x - m) / torch.sqrt(v + eps)
def _scatter_add(tgt, idx, src, axis=0):
    return tgt.clone().index_add_(axis, idx, src)
def _segment_sum(src, seg, n):
    out = torch.zeros((n,) + src.shape[1:], dtype=src.dtype)
    return out.index_add_(0, seg, src)
def _pad(x, pw):
    flat = tuple(v for pair in reversed(pw) for v in pair)
    return torch.nn.functional.pad(x, flat)

kernel_name = 'gated_mix__mha_block_cached__swiglu_ffn__decode'

def setup_inputs():

    _w = (lambda a: (lambda t: t.to(torch.bfloat16) if t.is_floating_point() else t)(torch.as_tensor(a)))
    def _A_setup():
        B, Sq, D = 8, 1, 448
        H, Sk, Dh = 16, 4096, 256
        return {
            "x": _w((lambda *s: torch.randn(*s, dtype=torch.bfloat16) * 0.05)(B, Sq, D)),
            "k_cache": _w((lambda *s: torch.randn(*s, dtype=torch.bfloat16) * 6.4)(B, H, Sk, Dh)),
            "v_cache": _w((lambda *s: torch.randn(*s, dtype=torch.bfloat16) * 0.2)(B, H, Sk, Dh)),
            "wq": _w((lambda *s: torch.randn(*s, dtype=torch.bfloat16) * 6.4)(D, H * Dh) * (D ** -0.5)),
            "wo": _w((lambda *s: torch.randn(*s, dtype=torch.bfloat16) * 0.2)(H * Dh, D) * ((H * Dh) ** -0.5)),
        }
    _A_in = _A_setup()

    def _B_setup():
        B, S, D, F = 8, 1, 448, 1792
        return {
            "x": _w((lambda *s: torch.randn(*s, dtype=torch.bfloat16) * 0.05)(B, S, D)),
            "w_gate": _w((lambda *s: torch.randn(*s, dtype=torch.bfloat16) * 0.05)(D, F)),
            "w_up": _w((lambda *s: torch.randn(*s, dtype=torch.bfloat16) * 0.05)(D, F)),
            "w_down": _w((lambda *s: torch.randn(*s, dtype=torch.bfloat16) * 0.05)(F, D)),
        }
    _B_in = _B_setup()

    return {
        "A_x": _A_in["x"],
        "A_k_cache": _A_in["k_cache"],
        "A_v_cache": _A_in["v_cache"],
        "A_wq": _A_in["wq"],
        "A_wo": _A_in["wo"],
        "B_x": _B_in["x"],
        "B_w_gate": _B_in["w_gate"],
        "B_w_up": _B_in["w_up"],
        "B_w_down": _B_in["w_down"],
        "gate_w": _w((lambda *s: torch.randn(*s, dtype=torch.bfloat16) * 0.05)(448) * 16.0),
    }

def reference(A_x, A_k_cache, A_v_cache, A_wq, A_wo, B_x, B_w_gate, B_w_up, B_w_down, gate_w):
    def _A_ref(x, k_cache, v_cache, wq, wo):
        B, Sq, D = x.shape
        H, Dh = 16, 256
        q = (lambda x, *d: x.permute(*d))((x @ wq).reshape(B, Sq, H, Dh), 0, 2, 1, 3)
        scores = torch.einsum("bhqd,bhkd->bhqk", q, k_cache) * (Dh ** -0.5)
        p = _softmax(scores, axis=-1)
        o = torch.einsum("bhqk,bhkd->bhqd", p, v_cache)
        return (lambda x, *d: x.permute(*d))(o, 0, 2, 1, 3).reshape(B, Sq, H * Dh) @ wo

    def _B_ref(x, w_gate, w_up, w_down):
        g = _silu(x @ w_gate)
        u = x @ w_up
        return (g * u) @ w_down

    x = A_x
    g = _sigmoid((x * gate_w).sum(-1, keepdims=True))
    a = _A_ref(x, A_k_cache, A_v_cache, A_wq, A_wo)
    b = _B_ref(x, B_w_gate, B_w_up, B_w_down)
    return g * a + (1 - g) * b
```

```python
import re

TRANS = ('v_exp_f32', 'v_log_f32', 'v_rcp_f32', 'v_rsq_f32', 'v_sqrt_f32', 'v_sin_f32', 'v_cos_f32')

def _regs(tok):
    tok = tok.strip()
    tok = tok.lstrip('-').strip('|')
    m = re.fullmatch(r'([vsa])(\d+)', tok)
    if m: return {(m.group(1), int(m.group(2)))}
    m = re.fullmatch(r'([vsa])\[(\d+):(\d+)\]', tok)
    if m: return {(m.group(1), i) for i in range(int(m.group(2)), int(m.group(3)) + 1)}
    if tok == 'vcc': return {('s', 106), ('s', 107)}
    if tok == 'vcc_lo': return {('s', 106)}
    if tok == 'vcc_hi': return {('s', 107)}
    if tok == 'exec': return {('s', 126), ('s', 127)}
    if tok == 'm0': return {('s', 124)}
    return set()

def _split_ops(rest):
    ops = []; depth = 0; cur = ''
    for ch in rest:
        if ch == '[': depth += 1
        if ch == ']': depth -= 1
        if ch == ',' and depth == 0:
            ops.append(cur.strip()); cur = ''
        else: cur += ch
    if cur.strip(): ops.append(cur.strip())
    mods = ''
    if ops:
        parts = ops[-1].split(None, 1)
        ops[-1] = parts[0]
        if len(parts) > 1: mods = parts[1]
    return ops, mods

class Ins:
    pass

def analyze(text):
    t = text.strip()
    sp = t.split(None, 1)
    op = sp[0]; rest = sp[1] if len(sp) > 1 else ''
    ops, mods = _split_ops(rest)
    I = Ins(); I.op = op; I.ops = ops; I.mods = mods
    I.w = set(); I.r = set(); I.kind = 'other'; I.A = I.B = I.C = set(); I.lanesel = set(); I.storedata = set()
    base = op.replace('_e32', '').replace('_e64', '').replace('_dpp', '').replace('_sdwa', '')
    I.base = base
    I.dpp = op.endswith('_dpp') or any(k in mods for k in ('quad_perm', 'row_', 'wave_'))
    R = [_regs(o) for o in ops]
    if base.startswith('v_mfma'):
        I.kind = 'mfma'; I.w = R[0]; I.A = R[1]; I.B = R[2]; I.C = R[3]; I.r = R[1] | R[2] | R[3]
        I.passes = 8 if '32x32' in base else 4
    elif base.startswith('v_'):
        I.kind = 'valu'
        if base.startswith('v_permlane'):
            I.w = R[0] | R[1]; I.r = R[0] | R[1]
        elif base in ('v_add_co_u32', 'v_sub_co_u32', 'v_subrev_co_u32'):
            I.w = R[0] | R[1]; I.r = set().union(*R[2:])
        elif base in ('v_addc_co_u32', 'v_subb_co_u32'):
            I.w = R[0] | R[1]; I.r = set().union(*R[2:])
        elif base == 'v_nop':
            pass
        else:
            I.w = R[0]; I.r = set().union(*R[1:]) if len(R) > 1 else set()
            if base in ('v_fmac_f32', 'v_dot2c_f32_bf16', 'v_writelane_b32', 'v_pk_fmac_f16') or I.dpp: I.r |= R[0]
            if base == 'v_cndmask_b32' and len(ops) == 3: I.r |= _regs('vcc')
            if base in ('v_readlane_b32', 'v_writelane_b32'): I.lanesel = R[2]
            if base.startswith('v_cmpx'): raise Exception('no cmpx')
        I.dot = base.startswith('v_dot')
        I.trans = base in TRANS
    elif base.startswith(('buffer_', 'global_', 'ds_', 'flat_')):
        I.kind = 'mem'
        isload = ('load' in base) or base.startswith('ds_read') or base.startswith('ds_bpermute') or ('rtn' in base) or ('atomic' in base and 'sc0' in mods)
        if isload and ' lds' not in (' ' + mods):
            I.w = R[0]; I.r = set().union(*R[1:])
            if 'atomic' in base and base.startswith('buffer_'): I.r |= R[0]
        else:
            I.r = set().union(*R) if R else set()
            if 'x4' in base or 'x3' in base:
                I.storedata = R[0] if base.startswith('buffer_') else R[1]
        I.vmem = not base.startswith('ds_')
    elif base.startswith('s_'):
        I.kind = 'salu'
        if base.startswith(('s_cmp', 's_cbranch', 's_branch', 's_waitcnt', 's_barrier', 's_nop', 's_endpgm', 's_setprio', 's_bitcmp')):
            I.r = set().union(*R) if R else set()
        else:
            I.w = R[0] if R else set(); I.r = set().union(*R[1:]) if len(R) > 1 else set()
    return I

class Asm:
    def __init__(self):
        self.lines = []
        self.hist = []
        self.pos = 0
        self.nops = 0
    def raw(self, s): self.lines.append(s)
    def label(self, name):
        self.settle()
        self.lines.append(name + ':')
    def need(self, I):
        req = 0
        for (p, P) in self.hist:
            d = self.pos - p - 1
            n = 0
            vw = {x for x in P.w if x[0] in 'va'}; sw = {x for x in P.w if x[0] == 's'}
            if P.kind == 'valu':
                if I.kind == 'valu':
                    if I.base in ('v_readlane_b32', 'v_readfirstlane_b32') and vw & I.r: n = max(n, 1)
                    if I.dpp and vw & I.r: n = max(n, 2)
                    if I.base.startswith('v_permlane') and vw & I.r: n = max(n, 2)
                    if sw & I.r: n = max(n, 2)
                    if sw & I.lanesel: n = max(n, 4)
                    if ('op_sel' in P.mods or 'sdwa' in P.op) and vw & (I.r | I.w): n = max(n, 1)
                if P.trans and vw & I.r: n = max(n, 1)
                if I.kind == 'mfma' and vw & I.r: n = max(n, 2)
                if I.kind == 'mem' and sw & I.r: n = max(n, 5)
                if P.dot and vw & (I.r | I.w):
                    same = I.kind == 'valu' and I.base == P.base
                    if same:
                        ab = set().union(*[_regs(o) for o in I.ops[1:3]])
                        if vw & ab: n = max(n, 3)
                    else: n = max(n, 3)
            elif P.kind == 'mfma':
                big = 8 if P.passes == 4 else 12
                if I.kind == 'mfma':
                    if vw & (I.A | I.B): n = max(n, big)
                    if vw & I.C and not (I.C == P.w and I.passes == P.passes): n = max(n, big - 2)
                    if vw & I.w and not (I.C == P.w): n = max(n, big)
                elif I.kind in ('valu', 'mem'):
                    if vw & (I.r | I.w): n = max(n, big)
                    if I.kind == 'valu' and P.C & I.w: n = max(n, 3 if P.passes == 4 else 7)
            elif P.kind == 'mem':
                if P.storedata & I.w: n = max(n, 2)
            elif P.kind == 'salu':
                if ('s', 124) in P.w and I.kind == 'mem': n = max(n, 1)
            req = max(req, n - d)
        return req
    def _nop(self, n):
        while n > 0:
            k = min(n, 16)
            self.lines.append(f'  s_nop {k-1}')
            self.pos += k; n -= k; self.nops += k
    def __call__(self, text):
        for t in text.split('\n'):
            t = t.split(';')[0].strip()
            if not t: continue
            I = analyze(t)
            if I.base in ('s_branch',) or I.base.startswith('s_cbranch'):
                self.settle(1)
            self._nop(self.need(I))
            self.lines.append('  ' + t)
            self.hist.append((self.pos, I))
            if I.base == 's_nop': self.pos += int(I.ops[0]) + 1
            else: self.pos += 1
            self.hist = [(p, P) for (p, P) in self.hist if self.pos - p <= 14]
    def settle(self, credit=0):
        req = 0
        for (p, P) in self.hist:
            d = self.pos - p - 1 + credit
            n = 0
            if P.kind == 'valu':
                n = 2
                if any(x[0] == 's' for x in P.w): n = 5
                if P.dot: n = 3
            elif P.kind == 'mfma': n = 8 if P.passes == 4 else 12
            elif P.kind == 'mem' and P.storedata: n = 2
            elif P.kind == 'salu' and ('s', 124) in P.w: n = 1
            req = max(req, n - d)
        self._nop(req)
    def text(self): return '\n'.join(self.lines) + '\n'
```

```python
import sys
sys.path.insert(0, 'gen')
from asmlib import Asm

NAME = 'gated_mix__mha_block_cached__swiglu_ffn__decode_kernel'
HEADER = open('gated_mix__mha_block_cached__swiglu_ffn__decode.s.ref').read().split('; Override launch')[0]

QP = 0
OB = 8192
OBS = 576
ML = 10496
CNT = 10528
HB = 10560
LDS = 11264
WS_Y = 0
WS_F = 0x80000
WS_ML = 0x100000
WS_ST = 0x200000
CSC = 0x3db8aa3b
LOG2E = 0x3fb8aa3b

def rev5(i): return int(f'{i:05b}'[::-1], 2)
def vr(b, n=4): return f'v[{b}:{b+n-1}]'

SPIN = 20000
def gen(W=5, LV=8, P1=24, MAP=1, G=1, stamps=False, FD=6):
    a = Asm()
    a.raw(HEADER.rstrip('\n'))
    a.raw(f'; @launch grid=(256,1,1) block=(768,1,1) lds={LDS}')
    a.raw('.amdgcn_target "amdgcn-amd-amdhsa--gfx950"')
    a.raw('.text'); a.raw(f'.globl {NAME}'); a.raw('.p2align 8'); a.raw(f'.type {NAME},@function'); a.raw(f'{NAME}:')

    nst = [0]
    def stamp(k):
        if stamps: a(f's_memrealtime s[{92+2*k}:{93+2*k}]')
    def dump_stamps(tmp):
        if not stamps: return
        a('s_waitcnt lgkmcnt(0)')
        a('s_mul_i32 s60, s2, 12'); a('s_add_u32 s60, s60, s3'); a('s_lshl_b32 s60, s60, 5'); a(f's_add_u32 s60, s60, {WS_ST}')
        a(f'v_mov_b32 v{tmp}, s60')
        for k in range(8): a(f'v_mov_b32 v{tmp+2+k}, s{92+k}')
        a(f'global_store_dwordx4 v{tmp}, {vr(tmp+2)}, s[32:33]')
        a(f'global_store_dwordx4 v{tmp}, {vr(tmp+6)}, s[32:33] offset:16')

    def srd(d, plo, off, size):
        if off is None:
            a(f's_mov_b32 s{d}, s{plo}'); a(f's_mov_b32 s{d+1}, s{plo+1}')
        else:
            a(f's_add_u32 s{d}, s{plo}, {off}'); a(f's_addc_u32 s{d+1}, s{plo+1}, 0')
        a(f's_mov_b32 s{d+2}, {size}'); a(f's_mov_b32 s{d+3}, 0x20000')

    def sel2_ops(sel, t):
        L = [f'v_lshrrev_b32 v{t}, 5, v0', f'v_mul_u32_u24 v{t}, 0x202, v{t}', f'v_add_u32 v{t}, 0x100, v{t}',
             f'v_or_b32 v{t+1}, 0xc0c0000, v{t}', f'v_lshlrev_b32 v{t+2}, 16, v{t}', f'v_or_b32 v{t+2}, 0xc0c, v{t+2}',
             f'v_and_b32 v{t+3}, 1, v0', f'v_cmp_eq_u32 vcc, 1, v{t+3}', f'v_cndmask_b32 v{t+1}, v{t+1}, v{t+2}, vcc',
             f'v_lshrrev_b32 v{t+2}, 1, v0', f'v_xor_b32 v{t+3}, v0, v{t+2}', f'v_and_b32 v{t+3}, 8, v{t+3}',
             f'v_and_b32 v{t+2}, 3, v{t+2}', f'v_or_b32 v{t+2}, v{t+2}, v{t+3}', f'v_mov_b32 v{t+3}, 0xc0c0c0c']
        for rr in range(4):
            L += [f'v_cmp_eq_u32 vcc, {rr}, v{t+2}', f'v_cndmask_b32 v{sel+rr}, v{t+3}, v{t+1}, vcc']
        return L

    def wave_reduce(op, v, t):
        L = []
        for r in (8, 4, 2, 1):
            L.append(f'{op}_dpp v{v}, v{v}, v{v} row_ror:{r} row_mask:0xf bank_mask:0xf')
        for sw in ('v_permlane16_swap_b32', 'v_permlane32_swap_b32'):
            L += [f'v_mov_b32 v{t}, v{v}', f'{sw} v{v}, v{t}', f'{op} v{v}, v{v}, v{t}']
        return L

    a('s_cmp_ge_u32 s2, 256')
    a('s_cbranch_scc1 L_end')
    a('s_load_dwordx16 s[8:23], s[0:1], 0')
    a('s_load_dwordx8 s[24:31], s[0:1], 64')
    a('s_load_dwordx2 s[32:33], s[0:1], 96')
    stamp(0)
    a('v_lshrrev_b32 v1, 6, v0')
    a('v_and_b32 v0, 63, v0')
    a('v_readfirstlane_b32 s3, v1')
    if MAP == 1:
        a('s_and_b32 s35, s2, 7'); a('s_lshl_b32 s35, s35, 1'); a('s_bfe_u32 s36, s2, 0x10003'); a('s_or_b32 s35, s35, s36')
        a('s_bfe_u32 s36, s2, 0x10004')
    else:
        a('s_bfe_u32 s35, s2, 0x40001'); a('s_and_b32 s36, s2, 1')
    a('s_lshr_b32 s34, s2, 5')
    a('s_lshl_b32 s37, s35, 1'); a('s_or_b32 s37, s37, s36')
    a('s_lshl_b32 s38, s34, 5'); a('s_or_b32 s38, s38, s37')
    a('s_cmp_ge_u32 s3, 4')
    a('s_cbranch_scc1 L_helper')

    RING = 40
    Q = 2; SEL = 6; SC = 10; TMP = 18; RMAX = 34; LA = 35; LB = 36
    S0 = 18; ACC = 26
    a('s_setprio 3')
    a('v_lshlrev_b32 v1, 4, v0')
    a(f's_mul_i32 s56, s3, {G*1024}')
    a('s_mov_b32 s58, s56')
    a('s_lshl_b32 s57, s38, 20')
    a('s_waitcnt lgkmcnt(0)')
    srd(40, 10, 's57', 1 << 20)
    cnt = {'K': 0, 'V': 0}
    def issue(kind, slot):
        n = cnt[kind]; cnt[kind] += 1
        srdr, so = ('s[40:43]', 's56') if kind == 'K' else ('s[44:47]', 's58')
        j = n % G
        imm = (j % 4) * 1024
        a(f'buffer_load_dwordx4 {vr(RING+4*slot)}, v1, {srdr}, {so} offen' + (f' offset:{imm}' if imm else '') + ' nt')
        if j == G - 1: a(f's_add_u32 {so}, {so}, {4*G*1024 - (G-1)//4*4096}')
        elif j % 4 == 3: a(f's_add_u32 {so}, {so}, 4096')
    def gate(): a(f's_waitcnt vmcnt({W-1})')
    for i in range(W): issue('K', i)
    srd(44, 12, 's57', 1 << 20)
    pre = sel2_ops(SEL, TMP)
    pre += [f'v_lshrrev_b32 v{LA}, 5, v0', f'v_lshlrev_b32 v{LA}, 12, v{LA}', f'v_and_b32 v{LB}, 31, v0', f'v_lshlrev_b32 v{LB}, 5, v{LB}',
            f'v_add_u32 v{LA}, v{LA}, v{LB}',
            f'v_mov_b32 v{RMAX}, 0xff800000',
            's_mov_b32 s60, 0xcccccccc', 's_mov_b32 s61, 0xcccccccc', 's_mov_b32 s62, 0xaaaaaaaa', 's_mov_b32 s63, 0xaaaaaaaa']
    for o in pre: a(o)
    for i in range(W, P1): gate(); issue('K', i)
    stamp(1)
    a('s_barrier')
    chunks = []
    c = [f'ds_read_b128 {vr(SC)}, v{LA} offset:{QP}', f'ds_read_b128 {vr(SC+4)}, v{LA} offset:{QP+16}',
         f'ds_read_b128 {vr(TMP)}, v{LA} offset:{QP+1024}', f'ds_read_b128 {vr(TMP+4)}, v{LA} offset:{QP+1024+16}',
         f'ds_read_b128 {vr(TMP+8)}, v{LA} offset:{QP+2048}', f'ds_read_b128 {vr(TMP+12)}, v{LA} offset:{QP+2048+16}']
    c += ['s_waitcnt lgkmcnt(2)'] + [f'v_add_f32 v{SC+k}, v{SC+k}, v{TMP+k}' for k in range(8)]
    c += [f'ds_read_b128 {vr(TMP)}, v{LA} offset:{QP+3072}', f'ds_read_b128 {vr(TMP+4)}, v{LA} offset:{QP+3072+16}']
    c += ['s_waitcnt lgkmcnt(2)'] + [f'v_add_f32 v{SC+k}, v{SC+k}, v{TMP+8+k}' for k in range(8)]
    chunks.append(c)
    c = ['s_waitcnt lgkmcnt(0)'] + [f'v_add_f32 v{SC+k}, v{SC+k}, v{TMP+k}' for k in range(8)]
    c += [f'v_permlane32_swap_b32 v{SC+k}, v{SC+4+k}' for k in range(4)]
    c += [f'v_add_f32 v{SC+k}, v{SC+k}, v{SC+4+k}' for k in range(4)]
    c += [f'v_cvt_pk_bf16_f32 v{Q}, v{SC}, v{SC+1}', f'v_cvt_pk_bf16_f32 v{Q+1}, v{SC+2}, v{SC+3}',
          f'v_mov_b32 v{Q+2}, v{Q}', f'v_mov_b32 v{Q+3}, v{Q+1}',
          f'v_permlane32_swap_b32 v{Q}, v{Q+2}', f'v_permlane32_swap_b32 v{Q+1}, v{Q+3}']
    chunks.append(c)
    for i in range(P1, 32):
        if chunks:
            for o in chunks.pop(0): a(o)
        gate(); issue('K', i)
    for c in chunks:
        for o in c: a(o)

    T = [TMP, TMP + 1, TMP + 2, TMP + 3]; RB = TMP + 4; RC = TMP + 5; RD0 = TMP + 6; RD1 = TMP + 7; RE0 = TMP + 8; RE1 = TMP + 9
    class KP:
        def __init__(s): s.q = []; s.since = 0
        def emit(s, o):
            a(o); s.since += 1
            if s.q and s.since >= 2:
                a(s.q.pop(0)); s.since = 0
        def flush(s):
            while s.q: a(s.q.pop(0))
        def step(s, i):
            t = T[i & 3]; k = RING + 4 * i
            for r in range(4):
                s.emit(f'v_dot2_f32_bf16 v{t}, v{k+r}, v{Q+r}, ' + ('0' if r == 0 else f'v{t}'))
            if i & 1:
                ta, tb = T[(i - 1) & 3], t
                m = [f'v_permlane16_swap_b32 v{ta}, v{tb}', f'v_add_f32 v{ta}, v{ta}, v{tb}']
                b1 = (i >> 1) & 1
                m.append(f'v_add_f32_dpp v{RB}, v{ta}, v{ta} row_ror:8 row_mask:0xf bank_mask:' + ('0xc' if b1 else '0xf'))
                if b1:
                    b2 = (i >> 2) & 1
                    m.append(f'v_add_f32_dpp v{RC}, v{RB}, v{RB} row_half_mirror row_mask:0xf bank_mask:' + ('0xa' if b2 else '0xf'))
                    if b2:
                        b3 = (i >> 3) & 1
                        m.append(f'v_add_f32_dpp v{RD1 if b3 else RD0}, v{RC}, v{RC} quad_perm:[2,3,0,1] row_mask:0xf bank_mask:0xf')
                        if b3:
                            m.append(f'v_cndmask_b32 v{RD0}, v{RD0}, v{RD1}, s[60:61]')
                            b4 = (i >> 4) & 1
                            m.append(f'v_add_f32_dpp v{RE1 if b4 else RE0}, v{RD0}, v{RD0} quad_perm:[1,0,3,2] row_mask:0xf bank_mask:0xf')
                            if b4:
                                m.append(f'v_cndmask_b32 v{RE0}, v{RE0}, v{RE1}, s[62:63]')
                                m.append(f'v_cvt_pk_bf16_f32 v{RE0}, v{RE0}, v{RE0}')
                                m.append(f'v_lshlrev_b32 v{SC+7}, 16, v{RE0}')
                                m.append(f'v_max_f32 v{RMAX}, v{RMAX}, v{SC+7}')
                s.q += m
    def shift_sc():
        for k in range(7): a(f'v_mov_b32 v{SC+k}, v{SC+k+1}')

    a('s_mov_b32 s59, 0')
    a.label('L_kloop')
    kp = KP()
    shift_sc()
    for i in range(32):
        if (i & 1) == 0:
            while len(kp.q) > 0 and i >= 2 and any(f'v{T[i&3]}' in o.replace(',', ' ').split() or f'v{T[(i+1)&3]}' in o.replace(',', ' ').split() for o in kp.q):
                a(kp.q.pop(0))
        kp.step(i)
        if i == 31: kp.flush()
        gate(); issue('K', i)
    a('s_add_u32 s59, s59, 1')
    a('s_cmp_lt_u32 s59, 7')
    a('s_cbranch_scc1 L_kloop')

    kp = KP()
    shift_sc()
    vi = 0
    def vissue():
        nonlocal vi
        gate(); issue('V', vi); vi += 1
    avail = 31 - (W - 1) - 1
    nxt = [10, 20]
    for i in range(32):
        while i > avail + vi: vissue()
        if nxt and i == nxt[0] and vi < LV:
            nxt.pop(0); vissue()
        if (i & 1) == 0:
            while len(kp.q) > 0 and i >= 2 and any(f'v{T[i&3]}' in o.replace(',', ' ').split() or f'v{T[(i+1)&3]}' in o.replace(',', ' ').split() for o in kp.q):
                a(kp.q.pop(0))
        kp.step(i)
    kp.flush()
    stamp(2)
    sm = wave_reduce('v_max_f32', RMAX, TMP)
    sm.append(f'v_mov_b32 v{TMP+1}, {CSC:#x}')
    sm.append(f'v_mul_f32 v{TMP+2}, v{RMAX}, v{TMP+1}')
    for k in range(8): sm.append(f'v_fma_f32 v{SC+k}, v{SC+k}, v{TMP+1}, -v{TMP+2}')
    for k in range(8): sm.append(f'v_exp_f32 v{SC+k}, v{SC+k}')
    sm.append('@issue')
    sm.append(f'v_add_f32 v{LB}, v{SC}, v{SC+1}')
    for k in range(2, 8): sm.append(f'v_add_f32 v{LB}, v{LB}, v{SC+k}')
    for k in range(8): sm.append(f'v_mov_b32 v{TMP+k}, v{SC+k}')
    for k in range(8): sm.append(f'v_permlane32_swap_b32 v{SC+k}, v{TMP+k}')
    for k in range(8): sm.append(f'v_cvt_pk_bf16_f32 v{SC+k}, v{SC+k}, v{TMP+k}')
    sm.append('@issue')
    sm += wave_reduce('v_add_f32', LB, TMP)
    sm.append(f's_lshl_b32 s59, s3, 2')
    sm.append(f'v_mov_b32 v{TMP}, s59')
    sm.append(f'v_add_u32 v{TMP}, {ML}, v{TMP}')
    sm.append(f'ds_write2_b32 v{TMP}, v{RMAX}, v{LB} offset0:0 offset1:4')
    sm.append(f'v_readlane_b32 s64, v{SC}, {rev5(0)}')
    sm.append(f'v_readlane_b32 s65, v{SC}, {rev5(1)}')
    for k in range(8): sm.append(f'v_mov_b32 v{ACC+k}, 0')
    for r in range(4): sm.append(f'v_perm_b32 v{S0+r}, s64, s64, v{SEL+r}')
    for o in sm:
        if o == '@issue':
            if vi < LV: vissue()
        else: a(o)
    while vi < LV: vissue()

    a('s_mov_b32 s59, 0')
    a.label('L_vloop')
    for i in range(32):
        j = i + 2
        a(f'v_readlane_b32 s{64 + (j & 1)}, v{SC + (1 if j >= 32 else 0)}, {rev5(j & 31)}') if False else None
        a(f'v_readlane_b32 s{64 + (i & 1)}, v{SC + (1 if j >= 32 else 0)}, {rev5(j & 31)}')
        sp = 64 + ((i + 1) & 1)
        for r in range(4): a(f'v_perm_b32 v{S0 + 4*((i+1)&1) + r}, s{sp}, s{sp}, v{SEL+r}')
        ac = ACC + 4 * (i & 1)
        a(f'v_mfma_f32_16x16x32_bf16 {vr(ac)}, {vr(S0 + 4*(i&1))}, {vr(RING + 4*i)}, {vr(ac)}')
        if i == 31: shift_sc()
        gate(); issue('V', (i + LV) % 32)
    a('s_add_u32 s59, s59, 1')
    a('s_cmp_lt_u32 s59, 8')
    a('s_cbranch_scc1 L_vloop')
    for k in range(4): a(f'v_add_f32 v{ACC+k}, v{ACC+k}, v{ACC+4+k}')
    a(f'v_cvt_pk_bf16_f32 v{ACC}, v{ACC}, v{ACC+1}')
    a(f'v_cvt_pk_bf16_f32 v{ACC+1}, v{ACC+2}, v{ACC+3}')
    a(f'ds_write_b64 v{LA+2}, {vr(ACC, 2)}')
    a('s_waitcnt lgkmcnt(0)')
    a('s_barrier')
    stamp(3)
    dump_stamps(40)
    a('s_endpgm')
    addr_ops = [f'  v_lshrrev_b32 v{LA+2}, 5, v0', f'  v_lshlrev_b32 v{LA+2}, 8, v{LA+2}', f'  v_and_b32 v{LA+3}, 15, v0', f'  v_lshlrev_b32 v{LA+3}, 4, v{LA+3}',
                f'  v_add_u32 v{LA+2}, v{LA+2}, v{LA+3}', f'  v_bfe_u32 v{LA+3}, v0, 4, 1', f'  v_lshlrev_b32 v{LA+3}, 3, v{LA+3}', f'  v_add_u32 v{LA+2}, v{LA+2}, v{LA+3}',
                f'  s_mul_i32 s59, s3, {OBS}', f'  s_add_u32 s59, s59, {OB}', f'  v_add_u32 v{LA+2}, s59, v{LA+2}']
    idx = a.lines.index('  s_mov_b32 s63, 0xaaaaaaaa')
    a.lines[idx+1:idx+1] = addr_ops

    a.label('L_helper')
    a('s_sub_u32 s39, s3, 4')
    a('v_lshrrev_b32 v1, 5, v0'); a('v_lshlrev_b32 v1, 13, v1'); a('v_and_b32 v2, 31, v0'); a('v_lshlrev_b32 v2, 4, v2'); a('v_add_u32 v1, v1, v2')
    a('s_mul_i32 s56, s34, 896'); a('s_mul_i32 s57, s39, 112'); a('s_add_u32 s57, s57, s56')
    a('s_lshl_b32 s58, s35, 9')
    a(f's_mul_i32 s59, s39, {56*8192}')
    a(f's_sub_u32 s60, {448*8192}, s58')
    a('s_waitcnt lgkmcnt(0)')
    a('s_load_dwordx16 s[64:79], s[8:9], s57')
    a('s_load_dwordx8 s[80:87], s[8:9], s57 offset:64')
    a('s_load_dwordx4 s[88:91], s[8:9], s57 offset:96')
    srd(40, 14, 's58', 's60')
    QR = 40
    for i in range(28):
        a(f'buffer_load_dwordx4 {vr(QR+4*i)}, v1, s[40:43], s59 offen')
        if i < 27: a('s_add_u32 s59, s59, 16384')
    HSEL = 4; HS = 8; HA = 16
    for o in sel2_ops(HSEL, 24): a(o)
    a('v_lshrrev_b32 v2, 5, v0'); a('v_lshlrev_b32 v2, 9, v2'); a('v_and_b32 v3, 15, v0'); a('v_lshlrev_b32 v3, 5, v3'); a('v_add_u32 v2, v2, v3')
    a('v_and_b32 v3, 16, v0'); a('v_add_u32 v2, v2, v3'); a('s_lshl_b32 s59, s39, 10'); a('v_add_u32 v2, s59, v2')
    a('v_mov_b32 v24, -1'); a('v_mov_b32 v25, -1'); a('v_mov_b32 v26, -1'); a('v_mov_b32 v27, -1'); a('v_mov_b32 v3, 0')
    a(f'ds_write_b128 v3, v[24:27] offset:{ML}')
    a(f'ds_write_b128 v3, v[24:27] offset:{ML+16}')
    a(f'ds_write_b32 v3, v3 offset:{CNT}')
    a('s_waitcnt lgkmcnt(0)')
    for i in range(28):
        for r in range(4): a(f'v_perm_b32 v{HS + 4*(i&1) + r}, s{64+i}, s{64+i}, v{HSEL+r}')
        a(f's_waitcnt vmcnt({27-i})')
        ac = HA + 4 * (i & 1)
        a(f'v_mfma_f32_16x16x32_bf16 {vr(ac)}, {vr(HS + 4*(i&1))}, {vr(QR + 4*i)}, ' + ('0' if i < 2 else vr(ac)))
    for k in range(4): a(f'v_add_f32 v{HA+k}, v{HA+k}, v{HA+4+k}')
    a(f'ds_write_b128 v2, {vr(HA)} offset:{QP}')
    a('s_waitcnt lgkmcnt(0)')
    stamp(1)
    a('s_barrier')
    a('s_mov_b32 s62, 0x05040100'); a('s_mov_b32 s63, 0x07060302')
    a('s_cmp_eq_u32 s39, 7')
    a('s_cbranch_scc1 L_misc')

    def load_kstep(srdr, vo, so1, so2, tmp):
        for j in range(8):
            imm = (j & 3) * 896
            a(f'buffer_load_dwordx2 {vr(tmp+2*j, 2)}, v{vo}, {srdr}, {so1 if j < 4 else so2} offen' + (f' offset:{imm}' if imm else ''))
    def transpose(tmp, dst):
        for cc in range(4):
            for jj in range(4):
                a(f'v_perm_b32 v{dst+4*cc+jj}, v{tmp+2*(2*jj+1)+(cc>>1)}, v{tmp+2*(2*jj)+(cc>>1)}, s{62+(cc&1)}')

    WF = 40
    a(f's_mul_i32 s58, s35, {256*896}')
    srd(40, 16, 's58', 256 * 896)
    a(f's_mul_i32 s58, s38, 1792')
    srd(44, 32, 's58', 1792)
    a('v_lshrrev_b32 v1, 4, v0'); a(f'v_mul_u32_u24 v1, {8*896}, v1'); a('v_and_b32 v2, 15, v0'); a('v_lshlrev_b32 v3, 3, v2'); a('v_add_u32 v1, v1, v3')
    a('s_lshl_b32 s58, s39, 7'); a('v_add_u32 v1, s58, v1')
    a('s_mov_b32 s56, 0'); a(f's_mov_b32 s57, {4*896}')
    for t in range(8):
        load_kstep('s[40:43]', 1, 's56', 's57', 16)
        if t < 7:
            a(f's_add_u32 s56, s56, {32*896}'); a(f's_add_u32 s57, s57, {32*896}')
        a('s_waitcnt vmcnt(0)')
        transpose(16, WF + 16 * t)
    a('v_lshlrev_b32 v2, 4, v2'); a('s_lshl_b32 s58, s39, 8'); a('v_add_u32 v2, s58, v2')
    a('v_cmp_gt_u32 vcc, 16, v0'); a('v_mov_b32 v3, 0x40000000'); a('v_cndmask_b32 v2, v3, v2, vcc')
    a('v_and_b32 v1, 3, v0'); a(f'v_mul_u32_u24 v1, {OBS}, v1'); a('v_lshrrev_b32 v3, 4, v0'); a('v_lshlrev_b32 v3, 4, v3'); a('v_add_u32 v1, v1, v3')
    a('v_mov_b32 v3, 0')
    a('s_mov_b32 s59, 0')
    a(f's_mov_b32 s61, {CSC:#x}')
    a.label('L_proj')
    AF = 8; PA = 24
    for t in range(4): a(f'ds_read_b128 {vr(AF+4*t)}, v1 offset:{OB+64*t}')
    a(f'ds_read_b128 v[4:7], v3 offset:{ML}')
    side = ['s_waitcnt lgkmcnt(1)' if False else None]
    for t in range(8):
        a(f's_waitcnt lgkmcnt({4 if t < 4 else 7-t})') if t != 4 else a('s_waitcnt lgkmcnt(3)')
        for cc in range(4):
            a(f'v_mfma_f32_16x16x32_bf16 {vr(PA+4*cc)}, {vr(AF+4*(t&3))}, {vr(WF+16*t+4*cc)}, ' + ('0' if t == 0 else vr(PA+4*cc)))
        if t < 4: a(f'ds_read_b128 {vr(AF+4*t)}, v1 offset:{OB+64*(t+4)}')
        if t == 4:
            a('v_max_f32 v0, v4, v5'); a('v_max3_f32 v0, v0, v6, v7')
            for k in range(4): a(f'v_sub_f32 v{4+k}, v{4+k}, v0')
        if t == 5:
            for k in range(4): a(f'v_mul_f32 v{4+k}, s61, v{4+k}')
            for k in range(4): a(f'v_exp_f32 v{4+k}, v{4+k}')
    for cc in range(4): a(f'v_mul_f32 v{AF+cc}, v4, v{PA+4*cc}')
    for w in range(1, 4):
        for cc in range(4): a(f'v_fmac_f32 v{AF+cc}, v{4+w}, v{PA+4*cc+w}')
    for cc in range(4): a(f'v_min_u32 v{AF+cc}, -2, v{AF+cc}')
    a('s_sub_u32 s60, s59, 1')
    for cc in range(4): a(f'v_or_b32 v{AF+cc}, s60, v{AF+cc}')
    a(f'buffer_store_dwordx4 {vr(AF)}, v2, s[44:47], 0 offen sc1')
    a('s_cmp_eq_u32 s59, 1')
    a('s_cbranch_scc1 L_proj_done')
    a('s_waitcnt vmcnt(0)')
    a('v_mov_b32 v0, 1')
    a('s_mov_b64 exec, 1')
    a(f'ds_add_u32 v3, v0 offset:{CNT}')
    a('s_mov_b64 exec, -1')
    a('s_mov_b32 s59, 1')
    a('s_waitcnt lgkmcnt(0)')
    stamp(2)
    a('s_barrier')
    a('s_branch L_proj')
    a.label('L_proj_done')
    stamp(3)
    dump_stamps(40)
    a('s_endpgm')

    a.label('L_misc')
    XP = 8; FS = 36; MS = 44; FR = 56; AG = FR + 8 * FD; AU = AG + 4
    assert AU + 4 <= 168
    a('s_mul_i32 s58, s34, 896')
    srd(48, 8, 's58', 896)
    srd(40, 20, None, 448 * 3584)
    srd(44, 22, None, 448 * 3584)
    a('v_lshrrev_b32 v2, 3, v0'); a('v_mul_u32_u24 v1, 112, v2')
    for k in range(7): a(f'buffer_load_dwordx4 {vr(XP+4*k)}, v1, s[48:51], 0 offen' + (f' offset:{16*k}' if k else ''))
    a(f'v_mul_u32_u24 v1, {56*3584}, v2'); a('v_and_b32 v3, 7, v0'); a('v_min_u32 v4, 6, v3'); a('v_lshlrev_b32 v4, 4, v4'); a('v_add_u32 v1, v1, v4')
    a('s_mul_i32 s56, s37, 112')
    def fissue(i):
        sl = FR + 8 * (i % FD)
        a(f'buffer_load_dwordx4 {vr(sl)}, v1, s[40:43], s56 offen')
        a(f'buffer_load_dwordx4 {vr(sl+4)}, v1, s[44:47], s56 offen')
        a('s_add_u32 s56, s56, 3584')
    for i in range(FD): fissue(i)
    a('v_and_b32 v4, 1, v0'); a('v_cmp_eq_u32 vcc, 1, v4'); a('v_lshrrev_b32 v5, 1, v3'); a('v_mov_b32 v6, 0xc0c0c0c')
    a('v_mov_b32 v52, 0xc0c0100'); a('v_mov_b32 v53, 0x01000c0c'); a('v_cndmask_b32 v52, v52, v53, vcc')
    a('v_mov_b32 v54, 0xc0c0302'); a('v_mov_b32 v53, 0x03020c0c'); a('v_cndmask_b32 v53, v54, v53, vcc')
    for rr in range(4):
        a(f'v_cmp_eq_u32 vcc, {rr}, v5')
        a(f'v_cndmask_b32 v{FS+rr}, v6, v52, vcc'); a(f'v_cndmask_b32 v{FS+4+rr}, v6, v53, vcc')
    a(f's_waitcnt vmcnt({2*FD})')
    for i in range(56):
        for r in range(4): a(f'v_perm_b32 v{MS+4*(i&1)+r}, v{XP+(i>>1)}, v{XP+(i>>1)}, v{FS+4*(i&1)+r}')
        left = min(FD - 1, 55 - i)
        a(f's_waitcnt vmcnt({2*left})')
        sl = FR + 8 * (i % FD)
        a(f'v_mfma_f32_16x16x32_bf16 {vr(AG)}, {vr(MS+4*(i&1))}, {vr(sl)}, ' + ('0' if i == 0 else vr(AG)))
        a(f'v_mfma_f32_16x16x32_bf16 {vr(AU)}, {vr(MS+4*(i&1))}, {vr(sl+4)}, ' + ('0' if i == 0 else vr(AU)))
        if i + FD < 56: fissue(i + FD)
    for k in range(8): a(f'v_mov_b32_dpp v{8+k}, v{AG+k} row_ror:8 row_mask:0xf bank_mask:0xf')
    for k in range(8): a(f'v_permlane32_swap_b32 v{8+k}, v{16+k}')
    for k in range(8): a(f'v_add_f32 v{8+k}, v{AG+k}, v{16+k}')
    def rne(dst, src, n, t):
        for k in range(0, n, 2): a(f'v_cvt_pk_bf16_f32 v{t+k//2}, v{src+k}, v{src+k+1}')
        for k in range(0, n, 2):
            a(f'v_lshlrev_b32 v{dst+k}, 16, v{t+k//2}'); a(f'v_and_b32 v{dst+k+1}, 0xffff0000, v{t+k//2}')
    rne(8, 8, 8, 16)
    for k in range(4): a(f'v_mul_f32 v{16+k}, {LOG2E ^ 0x80000000:#x}, v{8+k}')
    for k in range(4): a(f'v_exp_f32 v{16+k}, v{16+k}')
    for k in range(4): a(f'v_add_f32 v{16+k}, 1.0, v{16+k}')
    for k in range(4): a(f'v_rcp_f32 v{16+k}, v{16+k}')
    for k in range(4): a(f'v_mul_f32 v{8+k}, v{8+k}, v{16+k}')
    rne(8, 8, 4, 16)
    for k in range(4): a(f'v_mul_f32 v{8+k}, v{8+k}, v{12+k}')
    a('v_cvt_pk_bf16_f32 v8, v8, v9'); a('v_cvt_pk_bf16_f32 v9, v10, v11')
    a('v_cmp_eq_u32 vcc, 7, v3'); a('v_cndmask_b32 v8, v8, 0, vcc') if False else None
    a('v_cmp_ne_u32 vcc, 7, v3'); a('v_cndmask_b32 v8, 0, v8, vcc'); a('v_cndmask_b32 v9, 0, v9, vcc')
    a('v_lshlrev_b32 v4, 4, v3'); a('v_bfe_u32 v5, v0, 4, 1'); a('v_lshlrev_b32 v5, 3, v5'); a('v_add_u32 v4, v4, v5')
    a('s_mov_b32 exec_lo, 0x00ff00ff'); a('s_mov_b32 exec_hi, 0')
    a(f'ds_write_b64 v4, v[8:9] offset:{HB}')
    a('s_mov_b64 exec, -1')
    a('v_lshrrev_b32 v4, 4, v0'); a('v_lshlrev_b32 v5, 4, v4')
    a(f'ds_read_b128 v[8:11], v5 offset:{HB}'); a(f'ds_read_b128 v[12:15], v5 offset:{HB+64}')
    srd(40, 24, None, 1792 * 896)
    a('s_mul_i32 s58, s38, 1792'); a(f's_add_u32 s58, s58, {WS_F}')
    srd(44, 32, 's58', 1792)
    a(f'v_mul_u32_u24 v1, {8*896}, v4'); a('v_and_b32 v2, 15, v0'); a('v_lshlrev_b32 v5, 3, v2'); a('v_add_u32 v1, v1, v5')
    a('v_lshlrev_b32 v2, 4, v2'); a('v_cmp_gt_u32 vcc, 16, v0'); a('v_mov_b32 v5, 0x40000000'); a('v_cndmask_b32 v2, v5, v2, vcc')
    a(f's_mul_i32 s56, s37, {56*896}'); a(f's_add_u32 s57, s56, {4*896}'); a(f's_add_u32 s58, s56, {32*896}'); a(f's_add_u32 s59, s56, {36*896}')
    a('s_mov_b32 s60, 0')
    a.label('L_down')
    load_kstep('s[40:43]', 1, 's56', 's57', 16)
    load_kstep('s[40:43]', 1, 's58', 's59', 32)
    a('s_waitcnt vmcnt(8)')
    transpose(16, 48)
    a('s_waitcnt vmcnt(0) lgkmcnt(0)')
    transpose(32, 64)
    for t in range(2):
        for cc in range(4):
            a(f'v_mfma_f32_16x16x32_bf16 {vr(80+4*cc)}, {vr(8+4*t)}, {vr(48+16*t+4*cc)}, ' + ('0' if t == 0 else vr(80+4*cc)))
    a('v_add_u32 v1, 128, v1')
    for cc in range(4): a(f'v_mov_b32 v{96+cc}, v{80+4*cc}')
    a('buffer_store_dwordx4 v[96:99], v2, s[44:47], s60 offen sc1')
    a('s_add_u32 s60, s60, 256')
    a('s_cmp_lt_u32 s60, 1792')
    a('s_cbranch_scc1 L_down')
    a('v_mov_b32 v3, 0')
    a('s_mov_b32 s70, 0')
    a.label('L_pollml')
    a('s_add_u32 s70, s70, 1'); a(f's_cmp_gt_u32 s70, {SPIN*8}'); a('s_cbranch_scc1 L_pollml_x')
    a(f'ds_read_b128 v[8:11], v3 offset:{ML}'); a(f'ds_read_b128 v[12:15], v3 offset:{ML+16}'); a(f'ds_read_b32 v16, v3 offset:{CNT}')
    a('s_waitcnt lgkmcnt(0)')
    a('v_max3_u32 v17, v8, v9, v10'); a('v_max3_u32 v17, v17, v11, v12'); a('v_max3_u32 v17, v17, v13, v14'); a('v_max_u32 v17, v17, v15')
    a('v_readfirstlane_b32 s56, v17'); a('v_readfirstlane_b32 s57, v16')
    a('s_cmp_eq_u32 s56, -1'); a('s_cbranch_scc1 L_pollml')
    a('s_cmp_lt_u32 s57, 7'); a('s_cbranch_scc1 L_pollml')
    a.label('L_pollml_x')
    a(f's_mov_b32 s61, {CSC:#x}')
    a('v_max_f32 v16, v8, v9'); a('v_max3_f32 v16, v16, v10, v11')
    for k in range(4): a(f'v_sub_f32 v{8+k}, v{8+k}, v16')
    for k in range(4): a(f'v_mul_f32 v{8+k}, s61, v{8+k}')
    for k in range(4): a(f'v_exp_f32 v{8+k}, v{8+k}')
    a('v_mul_f32 v17, v8, v12')
    for k in range(1, 4): a(f'v_fmac_f32 v17, v{8+k}, v{12+k}')
    a('s_lshl_b32 s58, s38, 3'); a(f's_add_u32 s58, s58, {WS_ML}')
    a('v_mov_b32 v4, s58')
    a('s_lshl_b32 s58, s34, 5')
    a('v_mov_b32 v5, s58'); a('v_mov_b32 v6, 1')
    a('s_mov_b64 exec, 1')
    a('global_store_dwordx2 v4, v[16:17], s[32:33] sc1')
    a('s_waitcnt vmcnt(0)')
    a('global_atomic_add v5, v6, s[30:31] sc1')
    a('s_mov_b64 exec, -1')
    stamp(2)
    a('s_cmp_lt_u32 s37, 14')
    a('s_cbranch_scc1 L_fin')
    dump_stamps(40)
    a('s_endpgm')
    a.label('L_fin')
    srd(40, 26, None, 896)
    a('v_lshlrev_b32 v1, 4, v0')
    a('buffer_load_dwordx4 v[8:11], v1, s[48:51], 0 offen')
    a('buffer_load_dwordx4 v[12:15], v1, s[40:43], 0 offen')
    a('s_waitcnt vmcnt(0)')
    for k in range(4):
        a(f'v_lshlrev_b32 v{16+2*k}, 16, v{8+k}'); a(f'v_and_b32 v{17+2*k}, 0xffff0000, v{8+k}')
        a(f'v_lshlrev_b32 v{24+2*k}, 16, v{12+k}'); a(f'v_and_b32 v{25+2*k}, 0xffff0000, v{12+k}')
    for k in range(8): a(f'v_mul_f32 v{16+k}, v{16+k}, v{24+k}')
    rne(16, 16, 8, 24)
    for k in range(1, 8): a(f'v_add_f32 v16, v16, v{16+k}')
    for o in wave_reduce('v_add_f32', 16, 17): a(o)
    rne(16, 16, 2, 24)
    a(f'v_mul_f32 v16, {LOG2E ^ 0x80000000:#x}, v16'); a('v_exp_f32 v16, v16'); a('v_add_f32 v16, 1.0, v16'); a('v_rcp_f32 v16, v16')
    rne(16, 16, 2, 24)
    a('v_sub_f32 v18, 1.0, v16')
    rne(18, 18, 2, 24)
    GV = 60; GM = 61
    a(f'v_mov_b32 v{GV}, v16'); a(f'v_mov_b32 v{GM}, v18')
    a('s_mov_b32 s70, 0')
    a.label('L_pollc')
    a('s_add_u32 s70, s70, 1'); a(f's_cmp_gt_u32 s70, {SPIN}'); a('s_cbranch_scc1 L_pollc_x')
    a('global_load_dword v8, v5, s[30:31] sc1')
    a('s_waitcnt vmcnt(0)')
    a('v_readfirstlane_b32 s56, v8')
    a('s_cmp_lt_u32 s56, 32'); a('s_cbranch_scc1 L_pollc')
    a.label('L_pollc_x')
    CF = 64; C1 = 68; TT = 72
    a('s_lshl_b32 s58, s34, 8'); a(f's_add_u32 s58, s58, {WS_ML}')
    a('v_lshrrev_b32 v2, 4, v0'); a('v_lshlrev_b32 v2, 4, v2'); a('v_add_u32 v2, s58, v2')
    for u in range(4): a(f'global_load_dwordx4 {vr(8+4*u)}, v2, s[32:33] offset:{64*u} sc1')
    a('v_and_b32 v3, 8, v0'); a('v_cmp_eq_u32 vcc, 8, v3')
    a('s_waitcnt vmcnt(0)')
    for u in range(4):
        b = 8 + 4 * u
        a(f'v_max_f32 v24, v{b}, v{b+2}')
        a(f'v_sub_f32 v{b}, v{b}, v24'); a(f'v_sub_f32 v{b+2}, v{b+2}, v24')
        a(f'v_mul_f32 v{b}, s61, v{b}'); a(f'v_mul_f32 v{b+2}, s61, v{b+2}')
        a(f'v_exp_f32 v{b}, v{b}'); a(f'v_exp_f32 v{b+2}, v{b+2}')
        a(f'v_mul_f32 v24, v{b}, v{b+1}'); a(f'v_fmac_f32 v24, v{b+2}, v{b+3}')
        a('v_rcp_f32 v24, v24')
        a(f'v_cndmask_b32 v25, v{b}, v{b+2}, vcc')
        a(f'v_mul_f32 v{C1+u}, v24, v25')
        a(f'v_mov_b32 v{CF+u}, 1.0')
        a(f'v_mov_b32 v{TT+u}, 0')
    a(f's_mul_i32 s58, s34, {32*1792}'); a(f's_add_u32 s59, s58, {WS_F}')
    srd(40, 32, 's59', 32 * 1792)
    a('v_lshrrev_b32 v2, 3, v0'); a('v_mul_u32_u24 v1, 1792, v2'); a('v_and_b32 v3, 7, v0'); a('v_lshlrev_b32 v4, 4, v3'); a('v_add_u32 v1, v1, v4')
    a('s_lshl_b32 s59, s37, 7'); a('v_add_u32 v1, s59, v1')
    for u in range(1, 4): a(f's_mov_b32 s{63+u}, {u*8*1792}')
    a('s_mul_i32 s59, s34, 896')
    srd(44, 28, 's59', 896)
    a('v_lshlrev_b32 v2, 3, v0'); a('s_lshl_b32 s59, s37, 6'); a('v_add_u32 v2, s59, v2')
    a('v_cmp_gt_u32 vcc, 8, v0'); a('v_mov_b32 v4, 0x40000000'); a('v_cndmask_b32 v2, v4, v2, vcc')
    a('v_mov_b32 v7, 0x40000000')
    a('s_mov_b32 s59, 0')
    a.label('L_gather')
    for u in range(4): a(f'v_mov_b32 v{40+u}, v1')
    for k in range(4): a(f'v_mov_b32 v{48+k}, 0')
    a('s_mov_b32 s70, 0')
    a.label('L_gpoll')
    for u in range(4): a(f'buffer_load_dwordx4 {vr(8+4*u)}, v{40+u}, s[40:43], ' + ('0' if u == 0 else f's{63+u}') + ' offen sc1')
    a('s_mov_b64 s[68:69], 0')
    for u in range(4):
        b = 8 + 4 * u
        a(f's_waitcnt vmcnt({3-u})')
        a(f'v_max3_u32 v24, v{b}, v{b+1}, v{b+2}'); a(f'v_max_u32 v24, v24, v{b+3}')
        a('v_cmp_eq_u32 vcc, -1, v24')
        a(f'v_cndmask_b32 v25, v{CF+u}, 0, vcc') if False else None
        a(f'v_cndmask_b32 v{40+u}, v7, v{40+u}, vcc')
        a('s_or_b64 s[68:69], s[68:69], vcc')
        for k in range(4): a(f'v_cndmask_b32 v{b+k}, v{b+k}, 0, vcc'.replace('v_cndmask_b32', 'v_cndmask_b32_e64'))
        for k in range(4): a(f'v_fmac_f32 v{48+k}, v{CF+u}, v{b+k}')
    a('s_add_u32 s70, s70, 1'); a(f's_cmp_gt_u32 s70, {SPIN}'); a('s_cselect_b64 s[68:69], 0, s[68:69]')
    a('s_cmp_lg_u64 s[68:69], 0')
    a('s_cbranch_scc1 L_gpoll')
    for k in range(4): a(f'v_add_f32_dpp v{48+k}, v{48+k}, v{48+k} row_ror:8 row_mask:0xf bank_mask:0xf')
    for sw in ('v_permlane16_swap_b32', 'v_permlane32_swap_b32'):
        for k in range(4): a(f'v_mov_b32 v{52+k}, v{48+k}')
        for k in range(4): a(f'{sw} v{48+k}, v{52+k}')
        for k in range(4): a(f'v_add_f32 v{48+k}, v{48+k}, v{52+k}')
    rne(48, 48, 4, 52)
    for k in range(4): a(f'v_mul_f32 v{48+k}, v{GM}, v{48+k}')
    rne(48, 48, 4, 52)
    for k in range(4): a(f'v_add_f32 v{TT+k}, v{TT+k}, v{48+k}')
    a(f'v_cvt_pk_bf16_f32 v52, v{TT}, v{TT+1}'); a(f'v_cvt_pk_bf16_f32 v53, v{TT+2}, v{TT+3}')
    a('s_cmp_eq_u32 s59, 1')
    a('s_cbranch_scc1 L_fin_store')
    a('s_mov_b32 s59, 1')
    srd(40, 32, 's58', 32 * 1792)
    a(f'v_mov_b32 v{GM}, v{GV}')
    for u in range(4): a(f'v_mov_b32 v{CF+u}, v{C1+u}')
    a('s_barrier')
    a('s_branch L_gather')
    a.label('L_fin_store')
    a('buffer_store_dwordx2 v[52:53], v2, s[44:47], 0 offen')
    stamp(3)
    dump_stamps(80)
    a.label('L_end')
    a('s_endpgm')
    a.raw('.section .rodata,"a"'); a.raw('.p2align 6'); a.raw(f'.amdhsa_kernel {NAME}')
    a.raw('  .amdhsa_next_free_vgpr 168'); a.raw('  .amdhsa_next_free_sgpr 102'); a.raw('  .amdhsa_accum_offset 168')
    a.raw('  .amdhsa_group_segment_fixed_size 0'); a.raw('  .amdhsa_kernarg_size 104'); a.raw('  .amdhsa_user_sgpr_count 2')
    a.raw('  .amdhsa_user_sgpr_kernarg_segment_ptr 1'); a.raw('  .amdhsa_system_sgpr_workgroup_id_x 1'); a.raw('.end_amdhsa_kernel')
    return a.text()

if __name__ == '__main__':
    kw = eval('dict(' + (sys.argv[2] if len(sys.argv) > 2 else '') + ')')
    open(sys.argv[1], 'w').write(gen(**kw))
```

```python
import sys
sys.path.insert(0, 'gen')
from asmlib import Asm

NAME = 'gated_mix__mha_block_cached__swiglu_ffn__decode_kernel'
HEADER = open('gated_mix__mha_block_cached__swiglu_ffn__decode.s.ref').read().split('; Override launch')[0]

QP = 0
OB = 8192
OBS = 576
ML = 10496
CNT = 10528
HB = 10560
LDS = 11264
WS_Y = 0
WS_F = 0x80000
WS_ML = 0x100000
WS_ST = 0x200000
CSC = 0x3db8aa3b
LOG2E = 0x3fb8aa3b

def rev5(i): return int(f'{i:05b}'[::-1], 2)
def vr(b, n=4): return f'v[{b}:{b+n-1}]'

SPIN = 20000
def gen(W=5, LV=8, P1=24, MAP=1, G=1, stamps=False, FD=6, noWO=False, noFFN=False, noQ=False, WOX=None, NT=' nt'):
    a = Asm()
    a.raw(HEADER.rstrip('\n'))
    a.raw(f'; @launch grid=(256,1,1) block=(768,1,1) lds={LDS}')
    a.raw('.amdgcn_target "amdgcn-amd-amdhsa--gfx950"')
    a.raw('.text'); a.raw(f'.globl {NAME}'); a.raw('.p2align 8'); a.raw(f'.type {NAME},@function'); a.raw(f'{NAME}:')

    nst = [0]
    def stamp(k):
        if stamps: a(f's_memrealtime s[{92+2*k}:{93+2*k}]')
    def dump_stamps(tmp):
        if not stamps: return
        a('s_waitcnt lgkmcnt(0)')
        a('s_mul_i32 s60, s2, 12'); a('s_add_u32 s60, s60, s3'); a('s_lshl_b32 s60, s60, 5'); a(f's_add_u32 s60, s60, {WS_ST}')
        a(f'v_mov_b32 v{tmp}, s60')
        for k in range(8): a(f'v_mov_b32 v{tmp+2+k}, s{92+k}')
        a(f'global_store_dwordx4 v{tmp}, {vr(tmp+2)}, s[32:33]')
        a(f'global_store_dwordx4 v{tmp}, {vr(tmp+6)}, s[32:33] offset:16')

    def srd(d, plo, off, size):
        if off is None:
            a(f's_mov_b32 s{d}, s{plo}'); a(f's_mov_b32 s{d+1}, s{plo+1}')
        else:
            a(f's_add_u32 s{d}, s{plo}, {off}'); a(f's_addc_u32 s{d+1}, s{plo+1}, 0')
        a(f's_mov_b32 s{d+2}, {size}'); a(f's_mov_b32 s{d+3}, 0x20000')

    def sel2_ops(sel, t):
        L = [f'v_lshrrev_b32 v{t}, 5, v0', f'v_mul_u32_u24 v{t}, 0x202, v{t}', f'v_add_u32 v{t}, 0x100, v{t}',
             f'v_or_b32 v{t+1}, 0xc0c0000, v{t}', f'v_lshlrev_b32 v{t+2}, 16, v{t}', f'v_or_b32 v{t+2}, 0xc0c, v{t+2}',
             f'v_and_b32 v{t+3}, 1, v0', f'v_cmp_eq_u32 vcc, 1, v{t+3}', f'v_cndmask_b32 v{t+1}, v{t+1}, v{t+2}, vcc',
             f'v_lshrrev_b32 v{t+2}, 1, v0', f'v_xor_b32 v{t+3}, v0, v{t+2}', f'v_and_b32 v{t+3}, 8, v{t+3}',
             f'v_and_b32 v{t+2}, 3, v{t+2}', f'v_or_b32 v{t+2}, v{t+2}, v{t+3}', f'v_mov_b32 v{t+3}, 0xc0c0c0c']
        for rr in range(4):
            L += [f'v_cmp_eq_u32 vcc, {rr}, v{t+2}', f'v_cndmask_b32 v{sel+rr}, v{t+3}, v{t+1}, vcc']
        return L

    def wave_reduce(op, v, t):
        L = []
        for r in (8, 4, 2, 1):
            L.append(f'{op}_dpp v{v}, v{v}, v{v} row_ror:{r} row_mask:0xf bank_mask:0xf')
        for sw in ('v_permlane16_swap_b32', 'v_permlane32_swap_b32'):
            L += [f'v_mov_b32 v{t}, v{v}', f'{sw} v{v}, v{t}', f'{op} v{v}, v{v}, v{t}']
        return L

    a('s_cmp_ge_u32 s2, 256')
    a('s_cbranch_scc1 L_end')
    a('s_load_dwordx16 s[8:23], s[0:1], 0')
    a('s_load_dwordx8 s[24:31], s[0:1], 64')
    a('s_load_dwordx2 s[32:33], s[0:1], 96')
    stamp(0)
    a('v_lshrrev_b32 v1, 6, v0')
    a('v_and_b32 v0, 63, v0')
    a('v_readfirstlane_b32 s3, v1')
    if MAP == 1:
        a('s_and_b32 s35, s2, 7'); a('s_lshl_b32 s35, s35, 1'); a('s_bfe_u32 s36, s2, 0x10003'); a('s_or_b32 s35, s35, s36')
        a('s_bfe_u32 s36, s2, 0x10004')
    else:
        a('s_bfe_u32 s35, s2, 0x40001'); a('s_and_b32 s36, s2, 1')
    a('s_lshr_b32 s34, s2, 5')
    a('s_lshl_b32 s37, s35, 1'); a('s_or_b32 s37, s37, s36')
    a('s_lshl_b32 s38, s34, 5'); a('s_or_b32 s38, s38, s37')
    a('s_cmp_ge_u32 s3, 4')
    a('s_cbranch_scc1 L_helper')

    RING = 40
    Q = 2; SEL = 6; SC = 10; TMP = 18; RMAX = 34; LA = 35; LB = 36
    S0 = 18; ACC = 26
    a('s_setprio 3')
    a('v_lshlrev_b32 v1, 4, v0')
    a(f's_mul_i32 s56, s3, {G*1024}')
    a('s_mov_b32 s58, s56')
    a('s_lshl_b32 s57, s38, 20')
    a('s_waitcnt lgkmcnt(0)')
    srd(40, 10, 's57', 1 << 20)
    cnt = {'K': 0, 'V': 0}
    def issue(kind, slot):
        n = cnt[kind]; cnt[kind] += 1
        srdr, so = ('s[40:43]', 's56') if kind == 'K' else ('s[44:47]', 's58')
        j = n % G
        imm = (j % 4) * 1024
        a(f'buffer_load_dwordx4 {vr(RING+4*slot)}, v1, {srdr}, {so} offen' + (f' offset:{imm}' if imm else '') + ' nt')
        if j == G - 1: a(f's_add_u32 {so}, {so}, {4*G*1024 - (G-1)//4*4096}')
        elif j % 4 == 3: a(f's_add_u32 {so}, {so}, 4096')
    def gate(): a(f's_waitcnt vmcnt({W-1})')
    for i in range(W): issue('K', i)
    srd(44, 12, 's57', 1 << 20)
    pre = sel2_ops(SEL, TMP)
    pre += [f'v_lshrrev_b32 v{LA}, 5, v0', f'v_lshlrev_b32 v{LA}, 12, v{LA}', f'v_and_b32 v{LB}, 31, v0', f'v_lshlrev_b32 v{LB}, 5, v{LB}',
            f'v_add_u32 v{LA}, v{LA}, v{LB}',
            f'v_mov_b32 v{RMAX}, 0xff800000',
            's_mov_b32 s60, 0xcccccccc', 's_mov_b32 s61, 0xcccccccc', 's_mov_b32 s62, 0xaaaaaaaa', 's_mov_b32 s63, 0xaaaaaaaa']
    for o in pre: a(o)
    for i in range(W, P1): gate(); issue('K', i)
    stamp(1)
    a('s_barrier')
    chunks = []
    c = [f'ds_read_b128 {vr(SC)}, v{LA} offset:{QP}', f'ds_read_b128 {vr(SC+4)}, v{LA} offset:{QP+16}',
         f'ds_read_b128 {vr(TMP)}, v{LA} offset:{QP+1024}', f'ds_read_b128 {vr(TMP+4)}, v{LA} offset:{QP+1024+16}',
         f'ds_read_b128 {vr(TMP+8)}, v{LA} offset:{QP+2048}', f'ds_read_b128 {vr(TMP+12)}, v{LA} offset:{QP+2048+16}']
    c += ['s_waitcnt lgkmcnt(2)'] + [f'v_add_f32 v{SC+k}, v{SC+k}, v{TMP+k}' for k in range(8)]
    c += [f'ds_read_b128 {vr(TMP)}, v{LA} offset:{QP+3072}', f'ds_read_b128 {vr(TMP+4)}, v{LA} offset:{QP+3072+16}']
    c += ['s_waitcnt lgkmcnt(2)'] + [f'v_add_f32 v{SC+k}, v{SC+k}, v{TMP+8+k}' for k in range(8)]
    chunks.append(c)
    c = ['s_waitcnt lgkmcnt(0)'] + [f'v_add_f32 v{SC+k}, v{SC+k}, v{TMP+k}' for k in range(8)]
    c += [f'v_permlane32_swap_b32 v{SC+k}, v{SC+4+k}' for k in range(4)]
    c += [f'v_add_f32 v{SC+k}, v{SC+k}, v{SC+4+k}' for k in range(4)]
    c += [f'v_cvt_pk_bf16_f32 v{Q}, v{SC}, v{SC+1}', f'v_cvt_pk_bf16_f32 v{Q+1}, v{SC+2}, v{SC+3}',
          f'v_mov_b32 v{Q+2}, v{Q}', f'v_mov_b32 v{Q+3}, v{Q+1}',
          f'v_permlane32_swap_b32 v{Q}, v{Q+2}', f'v_permlane32_swap_b32 v{Q+1}, v{Q+3}']
    chunks.append(c)
    for i in range(P1, 32):
        if chunks:
            for o in chunks.pop(0): a(o)
        gate(); issue('K', i)
    for c in chunks:
        for o in c: a(o)

    T = [TMP, TMP + 1, TMP + 2, TMP + 3]; RB = TMP + 4; RC = TMP + 5; RD0 = TMP + 6; RD1 = TMP + 7; RE0 = TMP + 8; RE1 = TMP + 9
    class KP:
        def __init__(s): s.q = []; s.since = 0
        def emit(s, o):
            a(o); s.since += 1
            if s.q and s.since >= 2:
                a(s.q.pop(0)); s.since = 0
        def flush(s):
            while s.q: a(s.q.pop(0))
        def step(s, i):
            t = T[i & 3]; k = RING + 4 * i
            for r in range(4):
                s.emit(f'v_dot2_f32_bf16 v{t}, v{k+r}, v{Q+r}, ' + ('0' if r == 0 else f'v{t}'))
            if i & 1:
                ta, tb = T[(i - 1) & 3], t
                m = [f'v_permlane16_swap_b32 v{ta}, v{tb}', f'v_add_f32 v{ta}, v{ta}, v{tb}']
                b1 = (i >> 1) & 1
                m.append(f'v_add_f32_dpp v{RB}, v{ta}, v{ta} row_ror:8 row_mask:0xf bank_mask:' + ('0xc' if b1 else '0xf'))
                if b1:
                    b2 = (i >> 2) & 1
                    m.append(f'v_add_f32_dpp v{RC}, v{RB}, v{RB} row_half_mirror row_mask:0xf bank_mask:' + ('0xa' if b2 else '0xf'))
                    if b2:
                        b3 = (i >> 3) & 1
                        m.append(f'v_add_f32_dpp v{RD1 if b3 else RD0}, v{RC}, v{RC} quad_perm:[2,3,0,1] row_mask:0xf bank_mask:0xf')
                        if b3:
                            m.append(f'v_cndmask_b32 v{RD0}, v{RD0}, v{RD1}, s[60:61]')
                            b4 = (i >> 4) & 1
                            m.append(f'v_add_f32_dpp v{RE1 if b4 else RE0}, v{RD0}, v{RD0} quad_perm:[1,0,3,2] row_mask:0xf bank_mask:0xf')
                            if b4:
                                m.append(f'v_cndmask_b32 v{RE0}, v{RE0}, v{RE1}, s[62:63]')
                                m.append(f'v_cvt_pk_bf16_f32 v{RE0}, v{RE0}, v{RE0}')
                                m.append(f'v_lshlrev_b32 v{SC+7}, 16, v{RE0}')
                                m.append(f'v_max_f32 v{RMAX}, v{RMAX}, v{SC+7}')
                s.q += m
    def shift_sc():
        for k in range(7): a(f'v_mov_b32 v{SC+k}, v{SC+k+1}')

    a('s_mov_b32 s59, 0')
    a.label('L_kloop')
    kp = KP()
    shift_sc()
    for i in range(32):
        if (i & 1) == 0:
            while len(kp.q) > 0 and i >= 2 and any(f'v{T[i&3]}' in o.replace(',', ' ').split() or f'v{T[(i+1)&3]}' in o.replace(',', ' ').split() for o in kp.q):
                a(kp.q.pop(0))
        kp.step(i)
        if i == 31: kp.flush()
        gate(); issue('K', i)
    a('s_add_u32 s59, s59, 1')
    a('s_cmp_lt_u32 s59, 7')
    a('s_cbranch_scc1 L_kloop')

    kp = KP()
    shift_sc()
    vi = 0
    def vissue():
        nonlocal vi
        gate(); issue('V', vi); vi += 1
    avail = 31 - (W - 1) - 1
    nxt = [10, 20]
    for i in range(32):
        while i > avail + vi: vissue()
        if nxt and i == nxt[0] and vi < LV:
            nxt.pop(0); vissue()
        if (i & 1) == 0:
            while len(kp.q) > 0 and i >= 2 and any(f'v{T[i&3]}' in o.replace(',', ' ').split() or f'v{T[(i+1)&3]}' in o.replace(',', ' ').split() for o in kp.q):
                a(kp.q.pop(0))
        kp.step(i)
    kp.flush()
    stamp(2)
    sm = wave_reduce('v_max_f32', RMAX, TMP)
    sm.append(f'v_mov_b32 v{TMP+1}, {CSC:#x}')
    sm.append(f'v_mul_f32 v{TMP+2}, v{RMAX}, v{TMP+1}')
    for k in range(8): sm.append(f'v_fma_f32 v{SC+k}, v{SC+k}, v{TMP+1}, -v{TMP+2}')
    for k in range(8): sm.append(f'v_exp_f32 v{SC+k}, v{SC+k}')
    sm.append('@issue')
    sm.append(f'v_add_f32 v{LB}, v{SC}, v{SC+1}')
    for k in range(2, 8): sm.append(f'v_add_f32 v{LB}, v{LB}, v{SC+k}')
    for k in range(8): sm.append(f'v_mov_b32 v{TMP+k}, v{SC+k}')
    for k in range(8): sm.append(f'v_permlane32_swap_b32 v{SC+k}, v{TMP+k}')
    for k in range(8): sm.append(f'v_cvt_pk_bf16_f32 v{SC+k}, v{SC+k}, v{TMP+k}')
    sm.append('@issue')
    sm += wave_reduce('v_add_f32', LB, TMP)
    sm.append(f's_lshl_b32 s59, s3, 2')
    sm.append(f'v_mov_b32 v{TMP}, s59')
    sm.append(f'v_add_u32 v{TMP}, {ML}, v{TMP}')
    sm.append(f'ds_write2_b32 v{TMP}, v{RMAX}, v{LB} offset0:0 offset1:4')
    sm.append(f'v_readlane_b32 s64, v{SC}, {rev5(0)}')
    sm.append(f'v_readlane_b32 s65, v{SC}, {rev5(1)}')
    for k in range(8): sm.append(f'v_mov_b32 v{ACC+k}, 0')
    for r in range(4): sm.append(f'v_perm_b32 v{S0+r}, s64, s64, v{SEL+r}')
    for o in sm:
        if o == '@issue':
            if vi < LV: vissue()
        else: a(o)
    while vi < LV: vissue()

    a('s_mov_b32 s59, 0')
    a.label('L_vloop')
    for i in range(32):
        j = i + 2
        a(f'v_readlane_b32 s{64 + (j & 1)}, v{SC + (1 if j >= 32 else 0)}, {rev5(j & 31)}') if False else None
        a(f'v_readlane_b32 s{64 + (i & 1)}, v{SC + (1 if j >= 32 else 0)}, {rev5(j & 31)}')
        sp = 64 + ((i + 1) & 1)
        for r in range(4): a(f'v_perm_b32 v{S0 + 4*((i+1)&1) + r}, s{sp}, s{sp}, v{SEL+r}')
        ac = ACC + 4 * (i & 1)
        a(f'v_mfma_f32_16x16x32_bf16 {vr(ac)}, {vr(S0 + 4*(i&1))}, {vr(RING + 4*i)}, {vr(ac)}')
        if i == 31: shift_sc()
        gate(); issue('V', (i + LV) % 32)
    a('s_add_u32 s59, s59, 1')
    a('s_cmp_lt_u32 s59, 8')
    a('s_cbranch_scc1 L_vloop')
    for k in range(4): a(f'v_add_f32 v{ACC+k}, v{ACC+k}, v{ACC+4+k}')
    a(f'v_cvt_pk_bf16_f32 v{ACC}, v{ACC}, v{ACC+1}')
    a(f'v_cvt_pk_bf16_f32 v{ACC+1}, v{ACC+2}, v{ACC+3}')
    a(f'ds_write_b64 v{LA+2}, {vr(ACC, 2)}')
    a('s_waitcnt lgkmcnt(0)')
    a('s_barrier')
    stamp(3)
    dump_stamps(40)
    a('s_endpgm')
    addr_ops = [f'  v_lshrrev_b32 v{LA+2}, 5, v0', f'  v_lshlrev_b32 v{LA+2}, 8, v{LA+2}', f'  v_and_b32 v{LA+3}, 15, v0', f'  v_lshlrev_b32 v{LA+3}, 4, v{LA+3}',
                f'  v_add_u32 v{LA+2}, v{LA+2}, v{LA+3}', f'  v_bfe_u32 v{LA+3}, v0, 4, 1', f'  v_lshlrev_b32 v{LA+3}, 3, v{LA+3}', f'  v_add_u32 v{LA+2}, v{LA+2}, v{LA+3}',
                f'  s_mul_i32 s59, s3, {OBS}', f'  s_add_u32 s59, s59, {OB}', f'  v_add_u32 v{LA+2}, s59, v{LA+2}']
    idx = a.lines.index('  s_mov_b32 s63, 0xaaaaaaaa')
    a.lines[idx+1:idx+1] = addr_ops

    a.label('L_helper')
    a('s_sub_u32 s39, s3, 4')
    a('v_lshrrev_b32 v1, 5, v0'); a('v_lshlrev_b32 v1, 13, v1'); a('v_and_b32 v2, 31, v0'); a('v_lshlrev_b32 v2, 4, v2'); a('v_add_u32 v1, v1, v2')
    a('s_mul_i32 s56, s34, 896'); a('s_mul_i32 s57, s39, 112'); a('s_add_u32 s57, s57, s56')
    a('s_lshl_b32 s58, s35, 9')
    a(f's_mul_i32 s59, s39, {56*8192}')
    a(f's_sub_u32 s60, {448*8192}, s58')
    a('s_waitcnt lgkmcnt(0)')
    a('s_load_dwordx16 s[64:79], s[8:9], s57')
    a('s_load_dwordx8 s[80:87], s[8:9], s57 offset:64')
    a('s_load_dwordx4 s[88:91], s[8:9], s57 offset:96')
    srd(40, 14, 's58', 's60')
    QR = 40
    for i in range(28):
        if noQ and i > 0: continue
        a(f'buffer_load_dwordx4 {vr(QR+4*i)}, v1, s[40:43], s59 offen' + NT)
        if i < 27: a('s_add_u32 s59, s59, 16384')
    HSEL = 4; HS = 8; HA = 16
    for o in sel2_ops(HSEL, 24): a(o)
    a('v_lshrrev_b32 v2, 5, v0'); a('v_lshlrev_b32 v2, 9, v2'); a('v_and_b32 v3, 15, v0'); a('v_lshlrev_b32 v3, 5, v3'); a('v_add_u32 v2, v2, v3')
    a('v_and_b32 v3, 16, v0'); a('v_add_u32 v2, v2, v3'); a('s_lshl_b32 s59, s39, 10'); a('v_add_u32 v2, s59, v2')
    a('v_mov_b32 v24, -1'); a('v_mov_b32 v25, -1'); a('v_mov_b32 v26, -1'); a('v_mov_b32 v27, -1'); a('v_mov_b32 v3, 0')
    a(f'ds_write_b128 v3, v[24:27] offset:{ML}')
    a(f'ds_write_b128 v3, v[24:27] offset:{ML+16}')
    a(f'ds_write_b32 v3, v3 offset:{CNT}')
    a('s_waitcnt lgkmcnt(0)')
    for i in range(28):
        for r in range(4): a(f'v_perm_b32 v{HS + 4*(i&1) + r}, s{64+i}, s{64+i}, v{HSEL+r}')
        a(f's_waitcnt vmcnt({27-i})')
        ac = HA + 4 * (i & 1)
        a(f'v_mfma_f32_16x16x32_bf16 {vr(ac)}, {vr(HS + 4*(i&1))}, {vr(QR + 4*i)}, ' + ('0' if i < 2 else vr(ac)))
    for k in range(4): a(f'v_add_f32 v{HA+k}, v{HA+k}, v{HA+4+k}')
    a(f'ds_write_b128 v2, {vr(HA)} offset:{QP}')
    a('s_waitcnt lgkmcnt(0)')
    stamp(1)
    a('s_barrier')
    a('s_mov_b32 s62, 0x05040100'); a('s_mov_b32 s63, 0x07060302')
    a('s_cmp_eq_u32 s39, 7')
    a('s_cbranch_scc1 L_misc')

    def load_kstep(srdr, vo, so1, so2, tmp):
        for j in range(8):
            imm = (j & 3) * 896
            a(f'buffer_load_dwordx2 {vr(tmp+2*j, 2)}, v{vo}, {srdr}, {so1 if j < 4 else so2} offen' + (f' offset:{imm}' if imm else '') + NT)
    def transpose(tmp, dst):
        for cc in range(4):
            for jj in range(4):
                a(f'v_perm_b32 v{dst+4*cc+jj}, v{tmp+2*(2*jj+1)+(cc>>1)}, v{tmp+2*(2*jj)+(cc>>1)}, s{62+(cc&1)}')

    WF = 40
    a(f's_mul_i32 s58, s35, {256*896}')
    srd(40, 16, 's58', 256 * 896)
    a(f's_mul_i32 s58, s38, 1792')
    srd(44, 32, 's58', 1792)
    a('v_lshrrev_b32 v1, 4, v0'); a(f'v_mul_u32_u24 v1, {8*896}, v1'); a('v_and_b32 v2, 15, v0'); a('v_lshlrev_b32 v3, 3, v2'); a('v_add_u32 v1, v1, v3')
    a('s_lshl_b32 s58, s39, 7'); a('v_add_u32 v1, s58, v1')
    a('s_mov_b32 s56, 0'); a(f's_mov_b32 s57, {4*896}')
    if WOX:
        depth, mode, mod = WOX
        if mode == 'same': srd(40, 16, None, 256 * 896)
        if mode == 'priv':
            a(f's_mul_i32 s58, s38, {256*896}'); a('s_add_u32 s58, s58, 0x1000000'); srd(40, 32, 's58', 256 * 896)
        a('v_lshlrev_b32 v1, 4, v0'); a('s_lshl_b32 s56, s39, 15')
        for i in range(32):
            if i >= depth: a(f's_waitcnt vmcnt({depth-1})')
            a(f'buffer_load_dwordx4 {vr(WF+4*i)}, v1, s[40:43], s56 offen {mod}')
            a('s_add_u32 s56, s56, 1024')
        a('s_waitcnt vmcnt(0)')
    for t in range(0 if noWO else 8):
        load_kstep('s[40:43]', 1, 's56', 's57', 16)
        if t < 7:
            a(f's_add_u32 s56, s56, {32*896}'); a(f's_add_u32 s57, s57, {32*896}')
        a('s_waitcnt vmcnt(0)')
        transpose(16, WF + 16 * t)
    a('v_lshlrev_b32 v2, 4, v2'); a('s_lshl_b32 s58, s39, 8'); a('v_add_u32 v2, s58, v2')
    a('v_cmp_gt_u32 vcc, 16, v0'); a('v_mov_b32 v3, 0x40000000'); a('v_cndmask_b32 v2, v3, v2, vcc')
    a('v_and_b32 v1, 3, v0'); a(f'v_mul_u32_u24 v1, {OBS}, v1'); a('v_lshrrev_b32 v3, 4, v0'); a('v_lshlrev_b32 v3, 4, v3'); a('v_add_u32 v1, v1, v3')
    a('v_mov_b32 v3, 0')
    a('s_mov_b32 s59, 0')
    a(f's_mov_b32 s61, {CSC:#x}')
    a.label('L_proj')
    AF = 8; PA = 24
    for t in range(4): a(f'ds_read_b128 {vr(AF+4*t)}, v1 offset:{OB+64*t}')
    a(f'ds_read_b128 v[4:7], v3 offset:{ML}')
    side = ['s_waitcnt lgkmcnt(1)' if False else None]
    for t in range(8):
        a(f's_waitcnt lgkmcnt({4 if t < 4 else 7-t})') if t != 4 else a('s_waitcnt lgkmcnt(3)')
        for cc in range(4):
            a(f'v_mfma_f32_16x16x32_bf16 {vr(PA+4*cc)}, {vr(AF+4*(t&3))}, {vr(WF+16*t+4*cc)}, ' + ('0' if t == 0 else vr(PA+4*cc)))
        if t < 4: a(f'ds_read_b128 {vr(AF+4*t)}, v1 offset:{OB+64*(t+4)}')
        if t == 4:
            a('v_max_f32 v0, v4, v5'); a('v_max3_f32 v0, v0, v6, v7')
            for k in range(4): a(f'v_sub_f32 v{4+k}, v{4+k}, v0')
        if t == 5:
            for k in range(4): a(f'v_mul_f32 v{4+k}, s61, v{4+k}')
            for k in range(4): a(f'v_exp_f32 v{4+k}, v{4+k}')
    for cc in range(4): a(f'v_mul_f32 v{AF+cc}, v4, v{PA+4*cc}')
    for w in range(1, 4):
        for cc in range(4): a(f'v_fmac_f32 v{AF+cc}, v{4+w}, v{PA+4*cc+w}')
    for cc in range(4): a(f'v_min_u32 v{AF+cc}, -2, v{AF+cc}')
    a('s_sub_u32 s60, s59, 1')
    for cc in range(4): a(f'v_or_b32 v{AF+cc}, s60, v{AF+cc}')
    a(f'buffer_store_dwordx4 {vr(AF)}, v2, s[44:47], 0 offen sc1')
    a('s_cmp_eq_u32 s59, 1')
    a('s_cbranch_scc1 L_proj_done')
    a('s_waitcnt vmcnt(0)')
    a('v_mov_b32 v0, 1')
    a('s_mov_b64 exec, 1')
    a(f'ds_add_u32 v3, v0 offset:{CNT}')
    a('s_mov_b64 exec, -1')
    a('s_mov_b32 s59, 1')
    a('s_waitcnt lgkmcnt(0)')
    stamp(2)
    a('s_barrier')
    a('s_branch L_proj')
    a.label('L_proj_done')
    stamp(3)
    dump_stamps(40)
    a('s_endpgm')

    a.label('L_misc')
    XP = 8; FS = 36; MS = 44; FR = 56; AG = FR + 8 * FD; AU = AG + 4
    assert AU + 4 <= 168
    a('s_mul_i32 s58, s34, 896')
    srd(48, 8, 's58', 896)
    if noFFN: a('s_branch L_skipffn')
    srd(40, 20, None, 448 * 3584)
    srd(44, 22, None, 448 * 3584)
    a('v_lshrrev_b32 v2, 3, v0'); a('v_mul_u32_u24 v1, 112, v2')
    for k in range(7): a(f'buffer_load_dwordx4 {vr(XP+4*k)}, v1, s[48:51], 0 offen' + (f' offset:{16*k}' if k else ''))
    a(f'v_mul_u32_u24 v1, {56*3584}, v2'); a('v_and_b32 v3, 7, v0'); a('v_min_u32 v4, 6, v3'); a('v_lshlrev_b32 v4, 4, v4'); a('v_add_u32 v1, v1, v4')
    a('s_mul_i32 s56, s37, 112')
    def fissue(i):
        sl = FR + 8 * (i % FD)
        a(f'buffer_load_dwordx4 {vr(sl)}, v1, s[40:43], s56 offen' + NT)
        a(f'buffer_load_dwordx4 {vr(sl+4)}, v1, s[44:47], s56 offen' + NT)
        a('s_add_u32 s56, s56, 3584')
    for i in range(FD): fissue(i)
    a('v_and_b32 v4, 1, v0'); a('v_cmp_eq_u32 vcc, 1, v4'); a('v_lshrrev_b32 v5, 1, v3'); a('v_mov_b32 v6, 0xc0c0c0c')
    a('v_mov_b32 v52, 0xc0c0100'); a('v_mov_b32 v53, 0x01000c0c'); a('v_cndmask_b32 v52, v52, v53, vcc')
    a('v_mov_b32 v54, 0xc0c0302'); a('v_mov_b32 v53, 0x03020c0c'); a('v_cndmask_b32 v53, v54, v53, vcc')
    for rr in range(4):
        a(f'v_cmp_eq_u32 vcc, {rr}, v5')
        a(f'v_cndmask_b32 v{FS+rr}, v6, v52, vcc'); a(f'v_cndmask_b32 v{FS+4+rr}, v6, v53, vcc')
    a(f's_waitcnt vmcnt({2*FD})')
    for i in range(56):
        for r in range(4): a(f'v_perm_b32 v{MS+4*(i&1)+r}, v{XP+(i>>1)}, v{XP+(i>>1)}, v{FS+4*(i&1)+r}')
        left = min(FD - 1, 55 - i)
        a(f's_waitcnt vmcnt({2*left})')
        sl = FR + 8 * (i % FD)
        a(f'v_mfma_f32_16x16x32_bf16 {vr(AG)}, {vr(MS+4*(i&1))}, {vr(sl)}, ' + ('0' if i == 0 else vr(AG)))
        a(f'v_mfma_f32_16x16x32_bf16 {vr(AU)}, {vr(MS+4*(i&1))}, {vr(sl+4)}, ' + ('0' if i == 0 else vr(AU)))
        if i + FD < 56: fissue(i + FD)
    for k in range(8): a(f'v_mov_b32_dpp v{8+k}, v{AG+k} row_ror:8 row_mask:0xf bank_mask:0xf')
    for k in range(8): a(f'v_permlane32_swap_b32 v{8+k}, v{16+k}')
    for k in range(8): a(f'v_add_f32 v{8+k}, v{AG+k}, v{16+k}')
    def rne(dst, src, n, t):
        for k in range(0, n, 2): a(f'v_cvt_pk_bf16_f32 v{t+k//2}, v{src+k}, v{src+k+1}')
        for k in range(0, n, 2):
            a(f'v_lshlrev_b32 v{dst+k}, 16, v{t+k//2}'); a(f'v_and_b32 v{dst+k+1}, 0xffff0000, v{t+k//2}')
    rne(8, 8, 8, 16)
    for k in range(4): a(f'v_mul_f32 v{16+k}, {LOG2E ^ 0x80000000:#x}, v{8+k}')
    for k in range(4): a(f'v_exp_f32 v{16+k}, v{16+k}')
    for k in range(4): a(f'v_add_f32 v{16+k}, 1.0, v{16+k}')
    for k in range(4): a(f'v_rcp_f32 v{16+k}, v{16+k}')
    for k in range(4): a(f'v_mul_f32 v{8+k}, v{8+k}, v{16+k}')
    rne(8, 8, 4, 16)
    for k in range(4): a(f'v_mul_f32 v{8+k}, v{8+k}, v{12+k}')
    a('v_cvt_pk_bf16_f32 v8, v8, v9'); a('v_cvt_pk_bf16_f32 v9, v10, v11')
    a('v_cmp_eq_u32 vcc, 7, v3'); a('v_cndmask_b32 v8, v8, 0, vcc') if False else None
    a('v_cmp_ne_u32 vcc, 7, v3'); a('v_cndmask_b32 v8, 0, v8, vcc'); a('v_cndmask_b32 v9, 0, v9, vcc')
    a('v_lshlrev_b32 v4, 4, v3'); a('v_bfe_u32 v5, v0, 4, 1'); a('v_lshlrev_b32 v5, 3, v5'); a('v_add_u32 v4, v4, v5')
    a('s_mov_b32 exec_lo, 0x00ff00ff'); a('s_mov_b32 exec_hi, 0')
    a(f'ds_write_b64 v4, v[8:9] offset:{HB}')
    a('s_mov_b64 exec, -1')
    a('v_lshrrev_b32 v4, 4, v0'); a('v_lshlrev_b32 v5, 4, v4')
    a(f'ds_read_b128 v[8:11], v5 offset:{HB}'); a(f'ds_read_b128 v[12:15], v5 offset:{HB+64}')
    srd(40, 24, None, 1792 * 896)
    a('s_mul_i32 s58, s38, 1792'); a(f's_add_u32 s58, s58, {WS_F}')
    srd(44, 32, 's58', 1792)
    a(f'v_mul_u32_u24 v1, {8*896}, v4'); a('v_and_b32 v2, 15, v0'); a('v_lshlrev_b32 v5, 3, v2'); a('v_add_u32 v1, v1, v5')
    a('v_lshlrev_b32 v2, 4, v2'); a('v_cmp_gt_u32 vcc, 16, v0'); a('v_mov_b32 v5, 0x40000000'); a('v_cndmask_b32 v2, v5, v2, vcc')
    a(f's_mul_i32 s56, s37, {56*896}'); a(f's_add_u32 s57, s56, {4*896}'); a(f's_add_u32 s58, s56, {32*896}'); a(f's_add_u32 s59, s56, {36*896}')
    a('s_mov_b32 s60, 0')
    a.label('L_down')
    load_kstep('s[40:43]', 1, 's56', 's57', 16)
    load_kstep('s[40:43]', 1, 's58', 's59', 32)
    a('s_waitcnt vmcnt(8)')
    transpose(16, 48)
    a('s_waitcnt vmcnt(0) lgkmcnt(0)')
    transpose(32, 64)
    for t in range(2):
        for cc in range(4):
            a(f'v_mfma_f32_16x16x32_bf16 {vr(80+4*cc)}, {vr(8+4*t)}, {vr(48+16*t+4*cc)}, ' + ('0' if t == 0 else vr(80+4*cc)))
    a('v_add_u32 v1, 128, v1')
    for cc in range(4): a(f'v_mov_b32 v{96+cc}, v{80+4*cc}')
    a('buffer_store_dwordx4 v[96:99], v2, s[44:47], s60 offen sc1')
    a('s_add_u32 s60, s60, 256')
    a('s_cmp_lt_u32 s60, 1792')
    a('s_cbranch_scc1 L_down')
    a.label('L_skipffn')
    a('v_mov_b32 v3, 0')
    a('s_mov_b32 s70, 0')
    a.label('L_pollml')
    a('s_add_u32 s70, s70, 1'); a(f's_cmp_gt_u32 s70, {SPIN*8}'); a('s_cbranch_scc1 L_pollml_x')
    a(f'ds_read_b128 v[8:11], v3 offset:{ML}'); a(f'ds_read_b128 v[12:15], v3 offset:{ML+16}'); a(f'ds_read_b32 v16, v3 offset:{CNT}')
    a('s_waitcnt lgkmcnt(0)')
    a('v_max3_u32 v17, v8, v9, v10'); a('v_max3_u32 v17, v17, v11, v12'); a('v_max3_u32 v17, v17, v13, v14'); a('v_max_u32 v17, v17, v15')
    a('v_readfirstlane_b32 s56, v17'); a('v_readfirstlane_b32 s57, v16')
    a('s_cmp_eq_u32 s56, -1'); a('s_cbranch_scc1 L_pollml')
    a('s_cmp_lt_u32 s57, 7'); a('s_cbranch_scc1 L_pollml')
    a.label('L_pollml_x')
    a(f's_mov_b32 s61, {CSC:#x}')
    a('v_max_f32 v16, v8, v9'); a('v_max3_f32 v16, v16, v10, v11')
    for k in range(4): a(f'v_sub_f32 v{8+k}, v{8+k}, v16')
    for k in range(4): a(f'v_mul_f32 v{8+k}, s61, v{8+k}')
    for k in range(4): a(f'v_exp_f32 v{8+k}, v{8+k}')
    a('v_mul_f32 v17, v8, v12')
    for k in range(1, 4): a(f'v_fmac_f32 v17, v{8+k}, v{12+k}')
    a('s_lshl_b32 s58, s38, 3'); a(f's_add_u32 s58, s58, {WS_ML}')
    a('v_mov_b32 v4, s58')
    a('s_lshl_b32 s58, s34, 5')
    a('v_mov_b32 v5, s58'); a('v_mov_b32 v6, 1')
    a('s_mov_b64 exec, 1')
    a('global_store_dwordx2 v4, v[16:17], s[32:33] sc1')
    a('s_waitcnt vmcnt(0)')
    a('global_atomic_add v5, v6, s[30:31] sc1')
    a('s_mov_b64 exec, -1')
    stamp(2)
    a('s_cmp_lt_u32 s37, 14')
    a('s_cbranch_scc1 L_fin')
    dump_stamps(40)
    a('s_endpgm')
    a.label('L_fin')
    srd(40, 26, None, 896)
    a('v_lshlrev_b32 v1, 4, v0')
    a('buffer_load_dwordx4 v[8:11], v1, s[48:51], 0 offen')
    a('buffer_load_dwordx4 v[12:15], v1, s[40:43], 0 offen')
    a('s_waitcnt vmcnt(0)')
    for k in range(4):
        a(f'v_lshlrev_b32 v{16+2*k}, 16, v{8+k}'); a(f'v_and_b32 v{17+2*k}, 0xffff0000, v{8+k}')
        a(f'v_lshlrev_b32 v{24+2*k}, 16, v{12+k}'); a(f'v_and_b32 v{25+2*k}, 0xffff0000, v{12+k}')
    for k in range(8): a(f'v_mul_f32 v{16+k}, v{16+k}, v{24+k}')
    rne(16, 16, 8, 24)
    for k in range(1, 8): a(f'v_add_f32 v16, v16, v{16+k}')
    for o in wave_reduce('v_add_f32', 16, 17): a(o)
    rne(16, 16, 2, 24)
    a(f'v_mul_f32 v16, {LOG2E ^ 0x80000000:#x}, v16'); a('v_exp_f32 v16, v16'); a('v_add_f32 v16, 1.0, v16'); a('v_rcp_f32 v16, v16')
    rne(16, 16, 2, 24)
    a('v_sub_f32 v18, 1.0, v16')
    rne(18, 18, 2, 24)
    GV = 60; GM = 61
    a(f'v_mov_b32 v{GV}, v16'); a(f'v_mov_b32 v{GM}, v18')
    a('s_mov_b32 s70, 0')
    a.label('L_pollc')
    a('s_add_u32 s70, s70, 1'); a(f's_cmp_gt_u32 s70, {SPIN}'); a('s_cbranch_scc1 L_pollc_x')
    a('global_load_dword v8, v5, s[30:31] sc1')
    a('s_waitcnt vmcnt(0)')
    a('v_readfirstlane_b32 s56, v8')
    a('s_cmp_lt_u32 s56, 32'); a('s_cbranch_scc1 L_pollc')
    a.label('L_pollc_x')
    CF = 64; C1 = 68; TT = 72
    a('s_lshl_b32 s58, s34, 8'); a(f's_add_u32 s58, s58, {WS_ML}')
    a('v_lshrrev_b32 v2, 4, v0'); a('v_lshlrev_b32 v2, 4, v2'); a('v_add_u32 v2, s58, v2')
    for u in range(4): a(f'global_load_dwordx4 {vr(8+4*u)}, v2, s[32:33] offset:{64*u} sc1')
    a('v_and_b32 v3, 8, v0'); a('v_cmp_eq_u32 vcc, 8, v3')
    a('s_waitcnt vmcnt(0)')
    for u in range(4):
        b = 8 + 4 * u
        a(f'v_max_f32 v24, v{b}, v{b+2}')
        a(f'v_sub_f32 v{b}, v{b}, v24'); a(f'v_sub_f32 v{b+2}, v{b+2}, v24')
        a(f'v_mul_f32 v{b}, s61, v{b}'); a(f'v_mul_f32 v{b+2}, s61, v{b+2}')
        a(f'v_exp_f32 v{b}, v{b}'); a(f'v_exp_f32 v{b+2}, v{b+2}')
        a(f'v_mul_f32 v24, v{b}, v{b+1}'); a(f'v_fmac_f32 v24, v{b+2}, v{b+3}')
        a('v_rcp_f32 v24, v24')
        a(f'v_cndmask_b32 v25, v{b}, v{b+2}, vcc')
        a(f'v_mul_f32 v{C1+u}, v24, v25')
        a(f'v_mov_b32 v{CF+u}, 1.0')
        a(f'v_mov_b32 v{TT+u}, 0')
    a(f's_mul_i32 s58, s34, {32*1792}'); a(f's_add_u32 s59, s58, {WS_F}')
    srd(40, 32, 's59', 32 * 1792)
    a('v_lshrrev_b32 v2, 3, v0'); a('v_mul_u32_u24 v1, 1792, v2'); a('v_and_b32 v3, 7, v0'); a('v_lshlrev_b32 v4, 4, v3'); a('v_add_u32 v1, v1, v4')
    a('s_lshl_b32 s59, s37, 7'); a('v_add_u32 v1, s59, v1')
    for u in range(1, 4): a(f's_mov_b32 s{63+u}, {u*8*1792}')
    a('s_mul_i32 s59, s34, 896')
    srd(44, 28, 's59', 896)
    a('v_lshlrev_b32 v2, 3, v0'); a('s_lshl_b32 s59, s37, 6'); a('v_add_u32 v2, s59, v2')
    a('v_cmp_gt_u32 vcc, 8, v0'); a('v_mov_b32 v4, 0x40000000'); a('v_cndmask_b32 v2, v4, v2, vcc')
    a('v_mov_b32 v7, 0x40000000')
    a('s_mov_b32 s59, 0')
    a.label('L_gather')
    for u in range(4): a(f'v_mov_b32 v{40+u}, v1')
    for k in range(4): a(f'v_mov_b32 v{48+k}, 0')
    a('s_mov_b32 s70, 0')
    a.label('L_gpoll')
    for u in range(4): a(f'buffer_load_dwordx4 {vr(8+4*u)}, v{40+u}, s[40:43], ' + ('0' if u == 0 else f's{63+u}') + ' offen sc1')
    a('s_mov_b64 s[68:69], 0')
    for u in range(4):
        b = 8 + 4 * u
        a(f's_waitcnt vmcnt({3-u})')
        a(f'v_max3_u32 v24, v{b}, v{b+1}, v{b+2}'); a(f'v_max_u32 v24, v24, v{b+3}')
        a('v_cmp_eq_u32 vcc, -1, v24')
        a(f'v_cndmask_b32 v25, v{CF+u}, 0, vcc') if False else None
        a(f'v_cndmask_b32 v{40+u}, v7, v{40+u}, vcc')
        a('s_or_b64 s[68:69], s[68:69], vcc')
        for k in range(4): a(f'v_cndmask_b32 v{b+k}, v{b+k}, 0, vcc'.replace('v_cndmask_b32', 'v_cndmask_b32_e64'))
        for k in range(4): a(f'v_fmac_f32 v{48+k}, v{CF+u}, v{b+k}')
    a('s_add_u32 s70, s70, 1'); a(f's_cmp_gt_u32 s70, {SPIN}'); a('s_cselect_b64 s[68:69], 0, s[68:69]')
    a('s_cmp_lg_u64 s[68:69], 0')
    a('s_cbranch_scc1 L_gpoll')
    for k in range(4): a(f'v_add_f32_dpp v{48+k}, v{48+k}, v{48+k} row_ror:8 row_mask:0xf bank_mask:0xf')
    for sw in ('v_permlane16_swap_b32', 'v_permlane32_swap_b32'):
        for k in range(4): a(f'v_mov_b32 v{52+k}, v{48+k}')
        for k in range(4): a(f'{sw} v{48+k}, v{52+k}')
        for k in range(4): a(f'v_add_f32 v{48+k}, v{48+k}, v{52+k}')
    rne(48, 48, 4, 52)
    for k in range(4): a(f'v_mul_f32 v{48+k}, v{GM}, v{48+k}')
    rne(48, 48, 4, 52)
    for k in range(4): a(f'v_add_f32 v{TT+k}, v{TT+k}, v{48+k}')
    a(f'v_cvt_pk_bf16_f32 v52, v{TT}, v{TT+1}'); a(f'v_cvt_pk_bf16_f32 v53, v{TT+2}, v{TT+3}')
    a('s_cmp_eq_u32 s59, 1')
    a('s_cbranch_scc1 L_fin_store')
    a('s_mov_b32 s59, 1')
    srd(40, 32, 's58', 32 * 1792)
    a(f'v_mov_b32 v{GM}, v{GV}')
    for u in range(4): a(f'v_mov_b32 v{CF+u}, v{C1+u}')
    a('s_barrier')
    a('s_branch L_gather')
    a.label('L_fin_store')
    a('buffer_store_dwordx2 v[52:53], v2, s[44:47], 0 offen')
    stamp(3)
    dump_stamps(80)
    a.label('L_end')
    a('s_endpgm')
    a.raw('.section .rodata,"a"'); a.raw('.p2align 6'); a.raw(f'.amdhsa_kernel {NAME}')
    a.raw('  .amdhsa_next_free_vgpr 168'); a.raw('  .amdhsa_next_free_sgpr 102'); a.raw('  .amdhsa_accum_offset 168')
    a.raw('  .amdhsa_group_segment_fixed_size 0'); a.raw('  .amdhsa_kernarg_size 104'); a.raw('  .amdhsa_user_sgpr_count 2')
    a.raw('  .amdhsa_user_sgpr_kernarg_segment_ptr 1'); a.raw('  .amdhsa_system_sgpr_workgroup_id_x 1'); a.raw('.end_amdhsa_kernel')
    return a.text()

if __name__ == '__main__':
    kw = eval('dict(' + (sys.argv[2] if len(sys.argv) > 2 else '') + ')')
    open(sys.argv[1], 'w').write(gen(**kw))
```

```python
import sys
sys.path.insert(0, 'gen')
from asmlib import Asm

NAME = 'gated_mix__mha_block_cached__swiglu_ffn__decode_kernel'
HEADER = open('gated_mix__mha_block_cached__swiglu_ffn__decode.s.ref').read().split('; Override launch')[0]

QB = 0
OP = 512
ML = 4608
COEF = 4640
CNT = 4656
PROG = 4672
MODE = 4688
HB = 4704
HBS = 144
LDS = 8192
WS_EP = 0
WS_CTR = 0x10000
WS_REC = 0x1000
WS_O = 0x20000
WS_Q = 0x80000
WS_Y = 0x100000
WS_F = 0x180000
WS_ST = 0x200000
CSC = 0x3db8aa3b
LOG2E = 0x3fb8aa3b
SPIN = 20000
OOB = 0x40000000

def rev5(i): return int(f'{i:05b}'[::-1], 2)
def vr(b, n=4): return f'v[{b}:{b+n-1}]'

def gen(W=5, LK=7, LV=9, P=54, G=1, stamps=False, NW=8, noFFN=False, PRIO=3, W0=5, EI=99, WE=0, noWO=False, noWQ=False, DBG=0, KP_=' nt', VP_=' nt', WP_=' nt', FP=1, FL=3, FS=1, WH=0, WP=5, TH=4, GS=3, NCK=15, SMP=(6, 22)):
    a = Asm()
    a.raw(HEADER.rstrip('\n'))
    a.raw(f'; @launch grid=(256,1,1) block=({NW*64},1,1) lds={LDS}')
    a.raw('.amdgcn_target "amdgcn-amd-amdhsa--gfx950"')
    a.raw('.text'); a.raw(f'.globl {NAME}'); a.raw('.p2align 8'); a.raw(f'.type {NAME},@function'); a.raw(f'{NAME}:')

    def stamp(k):
        if stamps: a(f's_memrealtime s[{84+2*k}:{85+2*k}]')
    def dump_stamps(tmp):
        if not stamps: return
        a('s_waitcnt lgkmcnt(0)')
        a(f's_mul_i32 s60, s2, {NW}'); a('s_add_u32 s60, s60, s3'); a('s_lshl_b32 s60, s60, 6'); a(f's_add_u32 s60, s60, {WS_ST}')
        a(f'v_mov_b32 v{tmp}, s60')
        for k in range(16): a(f'v_mov_b32 v{tmp+2+k}, s{84+k}')
        for k in range(4): a(f'global_store_dwordx4 v{tmp}, {vr(tmp+2+4*k)}, s[32:33] offset:{16*k}')

    def srd(d, plo, off, size):
        if off is None:
            a(f's_mov_b32 s{d}, s{plo}'); a(f's_mov_b32 s{d+1}, s{plo+1}')
        else:
            a(f's_add_u32 s{d}, s{plo}, {off}'); a(f's_addc_u32 s{d+1}, s{plo+1}, 0')
        a(f's_mov_b32 s{d+2}, {size}'); a(f's_mov_b32 s{d+3}, 0x20000')

    def sel2_ops(sel, t):
        L = [f'v_lshrrev_b32 v{t}, 5, v0', f'v_mul_u32_u24 v{t}, 0x202, v{t}', f'v_add_u32 v{t}, 0x100, v{t}',
             f'v_or_b32 v{t+1}, 0xc0c0000, v{t}', f'v_lshlrev_b32 v{t+2}, 16, v{t}', f'v_or_b32 v{t+2}, 0xc0c, v{t+2}',
             f'v_and_b32 v{t+3}, 1, v0', f'v_cmp_eq_u32 vcc, 1, v{t+3}', f'v_cndmask_b32 v{t+1}, v{t+1}, v{t+2}, vcc',
             f'v_lshrrev_b32 v{t+2}, 1, v0', f'v_xor_b32 v{t+3}, v0, v{t+2}', f'v_and_b32 v{t+3}, 8, v{t+3}',
             f'v_and_b32 v{t+2}, 3, v{t+2}', f'v_or_b32 v{t+2}, v{t+2}, v{t+3}', f'v_mov_b32 v{t+3}, 0xc0c0c0c']
        for rr in range(4):
            L += [f'v_cmp_eq_u32 vcc, {rr}, v{t+2}', f'v_cndmask_b32 v{sel+rr}, v{t+3}, v{t+1}, vcc']
        return L

    def wave_reduce(op, v, t):
        L = []
        for r in (8, 4, 2, 1):
            L.append(f'{op}_dpp v{v}, v{v}, v{v} row_ror:{r} row_mask:0xf bank_mask:0xf')
        for sw in ('v_permlane16_swap_b32', 'v_permlane32_swap_b32'):
            L += [f'v_mov_b32 v{t}, v{v}', f'{sw} v{v}, v{t}', f'{op} v{v}, v{v}, v{t}']
        return L

    def rne(dst, src, n, t):
        for k in range(0, n, 2): a(f'v_cvt_pk_bf16_f32 v{t+k//2}, v{src+k}, v{src+k+1}')
        for k in range(0, n, 2):
            a(f'v_lshlrev_b32 v{dst+k}, 16, v{t+k//2}'); a(f'v_and_b32 v{dst+k+1}, 0xffff0000, v{t+k//2}')

    def transpose(tmp, dst):
        for cc in range(4):
            for jj in range(4):
                a(f'v_perm_b32 v{dst+4*cc+jj}, v{tmp+2*(2*jj+1)+(cc>>1)}, v{tmp+2*(2*jj)+(cc>>1)}, s{62+(cc&1)}')

    TG = 4
    def tag_setup():
        a('s_add_u32 s4, s4, 0x01010101')
        a('s_mov_b32 s5, 0xff'); a('s_mov_b32 s6, 0x0c0c0400'); a('s_mov_b32 s7, 0x04000c0c')
        a(f'v_mov_b32 v{TG}, s4')
        for k in range(1, 4): a(f'v_lshrrev_b32 v{TG+k}, {8*k}, v{TG}')
    def tagit(dst, srcs):
        for k in range(4): a(f'v_bfi_b32 v{dst+k}, s5, v{TG+k}, v{srcs[k]}')
    def tagcheck(d, t, mask):
        a(f'v_perm_b32 v{t}, v{d+1}, v{d}, s6'); a(f'v_perm_b32 v{t+1}, v{d+3}, v{d+2}, s7')
        a(f'v_or_b32 v{t}, v{t}, v{t+1}')
        a(f'v_cmp_ne_u32_e64 s[{mask}:{mask+1}], v{t}, v{TG}')
        a(f's_wqm_b64 s[{mask}:{mask+1}], s[{mask}:{mask+1}]')

    a('s_cmp_ge_u32 s2, 256')
    a('s_cbranch_scc1 L_end')
    a('s_load_dwordx16 s[8:23], s[0:1], 0')
    a('s_load_dwordx8 s[24:31], s[0:1], 64')
    a('s_load_dwordx2 s[32:33], s[0:1], 96')
    if stamps:
        for k in range(2, 16, 2): a(f's_mov_b64 s[{84+k}:{85+k}], 0')
    stamp(0)
    if DBG: a('s_memrealtime s[84:85]')
    a('v_lshrrev_b32 v1, 6, v0')
    a('v_and_b32 v0, 63, v0')
    a('v_readfirstlane_b32 s3, v1')
    a('s_bfe_u32 s35, s2, 0x40001'); a('s_and_b32 s36, s2, 1')
    a('s_lshr_b32 s34, s2, 5')
    a('s_and_b32 s37, s2, 31')
    a('s_lshl_b32 s39, s34, 1'); a('s_or_b32 s39, s39, s36')
    a('s_cmp_ge_u32 s3, 4')
    a('s_cbranch_scc1 L_helper')

    RING = 40; XR = RING + 128
    NX = max(P - 32, 0)
    assert XR + 4 * NX <= 256
    Q = 2; SEL = 6; SC = 10; TMP = 18; RMAX = 34; LA = 35; LB = 36; CF = 37; OA = 38; OG = 39
    S0 = 18; ACC = 26
    if PRIO: a(f's_setprio {PRIO}')
    a('v_lshlrev_b32 v1, 4, v0')
    a(f's_mul_i32 s56, s3, {G*1024}')
    a('s_mov_b32 s58, s56')
    a('s_lshl_b32 s57, s2, 20')
    a('s_waitcnt lgkmcnt(0)')
    srd(40, 10, 's57', 1 << 20)

    def slot_reg(n):
        if n < NX: return XR + 4 * n
        if P <= n < min(64, P + NX): return XR + 4 * (n - P)
        return RING + 4 * (n % 32)
    def prev_user(n):
        r = slot_reg(n)
        for m in range(n - 1, -1, -1):
            if slot_reg(m) == r: return m
        return -1
    st = {'issued': 0, 'landed': -1}
    def issue(endmode=None):
        n = st['issued']
        if WH and n >= P:
            st['lab'] = st.get('lab', 0) + 1
            a.raw(f'  s_cbranch_vccnz L_em{st["lab"]}'); a.pos += 1
            a.raw(f'  s_waitcnt vmcnt({W-1})')
            a.raw(f'L_em{st["lab"]}:')
            a(f's_waitcnt vmcnt({WH-1})'); st['landed'] = max(st['landed'], n - WH)
        elif n >= W0:
            w = WP if n < P else W
            a(f's_waitcnt vmcnt({w-1})'); st['landed'] = max(st['landed'], n - w)
        st['issued'] += 1
        srdr, so = ('s[40:43]', 's56') if n < 256 else ('s[44:47]', 's58')
        j = n % G
        imm = (j % 4) * 1024
        a(f'buffer_load_dwordx4 {vr(slot_reg(n))}, v1, {srdr}, {so} offen' + (f' offset:{imm}' if imm else '') + (KP_ if n < 256 else VP_))
        if j == G - 1: a(f's_add_u32 {so}, {so}, {4*G*1024 - (G-1)//4*4096}')
        elif j % 4 == 3: a(f's_add_u32 {so}, {so}, 4096')
    WM = max(W, WH)
    def sample(i):
        if not WH: return
        if (i & 31) in SMP: a(f'ds_read_b32 v0, v{LA} offset:{MODE}')
        if ((i - 2) & 31) in SMP: a('s_waitcnt lgkmcnt(0)'); a('v_cmp_ne_u32 vcc, 0, v0')
    def checkpoint():
        if WH: a(f'ds_add_u32 v{LA}, v1 offset:{PROG}')
    def ensure(n):
        if st['landed'] < n:
            a(f's_waitcnt vmcnt({st["issued"]-1-n})'); st['landed'] = n
    for i in range(W0): issue()
    srd(44, 12, 's57', 1 << 20)
    a('s_lshl_b32 s59, s35, 13'); a('s_lshl_b32 s60, s39, 9'); a('s_add_u32 s59, s59, s60'); a(f's_add_u32 s59, s59, {WS_O}')
    srd(48, 32, 's59', 512)
    pre = sel2_ops(SEL, TMP)
    pre += [f'v_and_b32 v{LA}, 31, v0', f'v_lshlrev_b32 v{LA}, 4, v{LA}',
            f'v_mov_b32 v{RMAX}, 0xff800000',
            's_mov_b32 s60, 0xcccccccc', 's_mov_b32 s61, 0xcccccccc', 's_mov_b32 s62, 0xaaaaaaaa', 's_mov_b32 s63, 0xaaaaaaaa',
            f'v_lshrrev_b32 v{OG}, 5, v0', f'v_lshlrev_b32 v{OG}, 8, v{OG}', f'v_and_b32 v{OA}, 15, v0', f'v_lshlrev_b32 v{OA}, 4, v{OA}',
            f'v_add_u32 v{OG}, v{OG}, v{OA}', f'v_bfe_u32 v{OA}, v0, 4, 1', f'v_lshlrev_b32 v{OA}, 3, v{OA}', f'v_add_u32 v{OG}, v{OG}, v{OA}',
            's_lshl_b32 s59, s3, 10', f'v_add_u32 v{OA}, s59, v1']
    for o in pre: a(o)
    while st['issued'] < P: issue()
    stamp(1)
    a('s_barrier')
    a(f'ds_read_b128 {vr(Q)}, v{LA} offset:{QB}')
    a('s_lshl_b32 s59, s3, 2')
    a(f'v_mov_b32 v{LA}, s59')
    stamp(2)
    a('s_mov_b64 vcc, 0')
    a('s_waitcnt lgkmcnt(0)')

    T = [TMP, TMP + 1, TMP + 2, TMP + 3]; RB = TMP + 4; RC = TMP + 5; RD0 = TMP + 6; RD1 = TMP + 7; RE0 = TMP + 8; RE1 = TMP + 9
    class KP:
        def __init__(s): s.q = []; s.since = 0
        def emit(s, o):
            a(o); s.since += 1
            if s.q and s.since >= 2:
                a(s.q.pop(0)); s.since = 0
        def flush(s):
            while s.q: a(s.q.pop(0))
        def step(s, n):
            i = n & 31
            if (i & 1) == 0:
                while s.q and any(f'v{T[i&3]}' in o.replace(',', ' ').split() or f'v{T[(i+1)&3]}' in o.replace(',', ' ').split() for o in s.q):
                    a(s.q.pop(0))
            t = T[i & 3]; k = slot_reg(n)
            for r in range(4):
                s.emit(f'v_dot2_f32_bf16 v{t}, v{k+r}, v{Q+r}, ' + ('0' if r == 0 else f'v{t}'))
            if i & 1:
                ta, tb = T[(i - 1) & 3], t
                m = [f'v_permlane16_swap_b32 v{ta}, v{tb}', f'v_add_f32 v{ta}, v{ta}, v{tb}']
                b1 = (i >> 1) & 1
                m.append(f'v_add_f32_dpp v{RB}, v{ta}, v{ta} row_ror:8 row_mask:0xf bank_mask:' + ('0xc' if b1 else '0xf'))
                if b1:
                    b2 = (i >> 2) & 1
                    m.append(f'v_add_f32_dpp v{RC}, v{RB}, v{RB} row_half_mirror row_mask:0xf bank_mask:' + ('0xa' if b2 else '0xf'))
                    if b2:
                        b3 = (i >> 3) & 1
                        m.append(f'v_add_f32_dpp v{RD1 if b3 else RD0}, v{RC}, v{RC} quad_perm:[2,3,0,1] row_mask:0xf bank_mask:0xf')
                        if b3:
                            m.append(f'v_cndmask_b32 v{RD0}, v{RD0}, v{RD1}, s[60:61]')
                            b4 = (i >> 4) & 1
                            m.append(f'v_add_f32_dpp v{RE1 if b4 else RE0}, v{RD0}, v{RD0} quad_perm:[1,0,3,2] row_mask:0xf bank_mask:0xf')
                            if b4:
                                m.append(f'v_cndmask_b32 v{RE0}, v{RE0}, v{RE1}, s[62:63]')
                                m.append(f'v_cvt_pk_bf16_f32 v{RE0}, v{RE0}, v{RE0}')
                                m.append(f'v_lshlrev_b32 v{SC+7}, 16, v{RE0}')
                                m.append(f'v_max_f32 v{RMAX}, v{RMAX}, v{SC+7}')
                s.q += m
    def shift_sc():
        for k in range(7): a(f'v_mov_b32 v{SC+k}, v{SC+k+1}')

    kp = KP()
    tot = 64 + LK - P
    for n in range(64):
        if n == 32: kp.flush(); a(f'v_mov_b32 v{SC+6}, v{SC+7}')
        ensure(n)
        kp.step(n)
        if n >= 32: sample(n)
        want = P + min(tot, (tot * (n + 1) + 63) // 64 + (min(W, n + 1) if n < 48 else 0))
        if n == 63: want = 64 + LK
        while st['issued'] < want and prev_user(st['issued']) <= n:
            if n == 63: kp.flush()
            issue()
    kp.flush()
    assert st['issued'] == 64 + LK, st
    checkpoint()
    stamp(3)
    a('s_mov_b32 s59, 0')
    a.label('L_kloop')
    st['landed'] = st['issued'] - 1 - WM
    kp = KP()
    shift_sc()
    for n in range(64, 96):
        assert st['landed'] >= n
        kp.step(n)
        sample(n)
        if n == 95: kp.flush()
        issue()
    checkpoint()
    a('s_add_u32 s59, s59, 1')
    a('s_cmp_lt_u32 s59, 5')
    a('s_cbranch_scc1 L_kloop')
    st['issued'] += 128; st['landed'] += 128
    kp = KP()
    shift_sc()
    for n in range(224, 256):
        assert st['landed'] >= n
        kp.step(n)
        sample(n)
        if n < 255: issue()
    kp.flush()
    checkpoint()
    stamp(4)
    sm = ['@issue'] + wave_reduce('v_max_f32', RMAX, TMP)
    sm.append(f'v_mov_b32 v{TMP+1}, {CSC:#x}')
    sm.append(f'v_mul_f32 v{TMP+2}, v{RMAX}, v{TMP+1}')
    for k in range(8): sm.append(f'v_fma_f32 v{SC+k}, v{SC+k}, v{TMP+1}, -v{TMP+2}')
    for k in range(8): sm.append(f'v_exp_f32 v{SC+k}, v{SC+k}')
    sm.append('@issue')
    sm.append(f'v_add_f32 v{LB}, v{SC}, v{SC+1}')
    for k in range(2, 8): sm.append(f'v_add_f32 v{LB}, v{LB}, v{SC+k}')
    for k in range(8): sm.append(f'v_mov_b32 v{TMP+k}, v{SC+k}')
    for k in range(8): sm.append(f'v_permlane32_swap_b32 v{SC+k}, v{TMP+k}')
    for k in range(8): sm.append(f'v_cvt_pk_bf16_f32 v{SC+k}, v{SC+k}, v{TMP+k}')
    sm.append('@issue')
    sm += wave_reduce('v_add_f32', LB, TMP)
    sm.append(f'ds_write2_b32 v{LA}, v{RMAX}, v{LB} offset0:{ML//4 - 1024} offset1:{ML//4 - 1024 + 4}' if False else f'v_add_u32 v{TMP}, {ML}, v{LA}')
    sm.append(f'ds_write2_b32 v{TMP}, v{RMAX}, v{LB} offset0:0 offset1:4')
    sm.append(f'v_readlane_b32 s64, v{SC}, {rev5(0)}')
    sm.append(f'v_readlane_b32 s65, v{SC}, {rev5(1)}')
    for k in range(8): sm.append(f'v_mov_b32 v{ACC+k}, 0')
    for r in range(4): sm.append(f'v_perm_b32 v{S0+r}, s64, s64, v{SEL+r}')
    sm.append(f'v_mov_b32 v{LB}, 1'); sm.append(f'v_mov_b32 v{RMAX}, 0')
    for o in sm:
        if o == '@issue':
            if st['issued'] < 256 + LV: issue()
        else: a(o)
    while st['issued'] < 256 + LV: issue()
    stamp(5)
    a('s_mov_b32 s59, 0')
    a.label('L_vloop')
    st['landed'] = st['issued'] - 1 - WM
    for i in range(32):
        j = i + 2
        assert st['landed'] >= 256 + i
        a(f'v_readlane_b32 s{64 + (i & 1)}, v{SC + (1 if j >= 32 else 0)}, {rev5(j & 31)}')
        sp = 64 + ((i + 1) & 1)
        for r in range(4): a(f'v_perm_b32 v{S0 + 4*((i+1)&1) + r}, s{sp}, s{sp}, v{SEL+r}')
        ac = ACC + 4 * (i & 1)
        a(f'v_mfma_f32_16x16x32_bf16 {vr(ac)}, {vr(S0 + 4*(i&1))}, {vr(slot_reg(256 + i))}, {vr(ac)}')
        sample(i)
        if i == 26: a(f'ds_read_b32 v{CF}, v{LA} offset:{COEF}')
        if i == 31:
            a('s_add_u32 s59, s59, 1')
            a('s_cmp_lt_u32 s59, 8')
            a('s_cbranch_scc0 L_vdone')
            shift_sc()
            checkpoint()
        issue()
    a('s_branch L_vloop')
    a.label('L_vdone')
    a('s_waitcnt lgkmcnt(0)')
    a(f'v_readfirstlane_b32 s59, v{CF}')
    for k in range(4): a(f'v_add_f32 v{ACC+k}, v{ACC+k}, v{ACC+4+k}')
    a('s_cmp_eq_u32 s59, -1')
    a('s_cbranch_scc1 L_coefwait')
    a.label('L_coefok')
    for k in range(4): a(f'v_mul_f32 v{ACC+k}, v{CF}, v{ACC+k}')
    a(f'ds_write_b128 v{OA}, {vr(ACC)} offset:{OP}')
    a('s_mov_b64 exec, 1')
    a(f'ds_add_rtn_u32 v{LB}, v{RMAX}, v{LB} offset:{CNT}')
    a('s_mov_b64 exec, -1')
    for w in range(4): a(f'ds_read_b128 {vr(XR+4*w)}, v1 offset:{OP+1024*w}')
    a('s_waitcnt lgkmcnt(4)')
    a(f'v_readfirstlane_b32 s59, v{LB}')
    a('s_cmp_lg_u32 s59, 3')
    a('s_cbranch_scc1 L_sdone')
    a('s_waitcnt lgkmcnt(2)')
    for k in range(4): a(f'v_add_f32 v{XR+k}, v{XR+k}, v{XR+4+k}')
    a('s_waitcnt lgkmcnt(0)')
    for k in range(4): a(f'v_add_f32 v{XR+8+k}, v{XR+8+k}, v{XR+12+k}')
    for k in range(4): a(f'v_add_f32 v{XR+k}, v{XR+k}, v{XR+8+k}')
    a(f'v_cvt_pk_bf16_f32 v{XR}, v{XR}, v{XR+1}')
    a(f'v_cvt_pk_bf16_f32 v{XR+1}, v{XR+2}, v{XR+3}')
    a(f'v_min_u32 v{XR}, -2, v{XR}'); a(f'v_min_u32 v{XR+1}, -2, v{XR+1}')
    a(f'buffer_store_dwordx2 {vr(XR, 2)}, v{OG}, s[48:51], 0 offen sc1')
    if DBG:
        a('s_memrealtime s[86:87]'); a('s_cmp_lg_u32 s37, 5'); a('s_cbranch_scc1 L_sdone')
        a('s_waitcnt lgkmcnt(0)'); a('s_sub_u32 s86, s86, s84'); a('v_mov_b32 v200, s86'); a('s_lshl_b32 s86, s34, 2'); a('v_mov_b32 v201, s86')
        a('global_store_dword v201, v200, s[30:31] offset:32')
    a.label('L_sdone')
    stamp(6)
    dump_stamps(200)
    a('s_endpgm')
    a.label('L_coefwait')
    a('s_mov_b32 s70, 0')
    a.label('L_coefloop')
    a(f'ds_read_b32 v{CF}, v{LA} offset:{COEF}')
    a('s_add_u32 s70, s70, 1'); a(f's_cmp_gt_u32 s70, {SPIN*8}'); a('s_cbranch_scc1 L_coefok')
    a('s_waitcnt lgkmcnt(0)')
    a(f'v_readfirstlane_b32 s59, v{CF}')
    a('s_cmp_eq_u32 s59, -1')
    a('s_cbranch_scc1 L_coefloop')
    a('s_branch L_coefok')

    a.label('L_helper')
    a('s_mov_b32 s62, 0x05040100'); a('s_mov_b32 s63, 0x07060302')
    a('v_and_b32 v2, 15, v0'); a('v_lshrrev_b32 v3, 4, v0')
    a('s_cmp_eq_u32 s3, 5'); a('s_cbranch_scc1 L_w5')
    a('s_cmp_eq_u32 s3, 6'); a('s_cbranch_scc1 L_w6')
    a('s_cmp_gt_u32 s3, 6'); a('s_cbranch_scc1 ' + ('L_w7' if WH else 'L_end'))

    def xrow(dst, t):
        a(f'v_lshrrev_b32 v{t}, 2, v2'); a(f'v_lshlrev_b32 v{t}, 1, v{t}'); a(f'v_and_b32 v{dst}, 1, v2'); a(f'v_add_u32 v{dst}, v{dst}, v{t}')
        a(f'v_mul_u32_u24 v{dst}, 896, v{dst}'); a(f'v_lshlrev_b32 v{t}, 4, v3'); a(f'v_add_u32 v{dst}, v{dst}, v{t}')

    RAW = 40; XA = 8; BT = 104; AC = 24
    a('s_lshr_b32 s56, s2, 2'); a('s_and_b32 s57, s2, 3')
    a(f's_mul_i32 s58, s57, {112*8192}'); a('s_lshl_b32 s59, s56, 7'); a('s_add_u32 s58, s58, s59')
    a('v_lshlrev_b32 v1, 16, v3'); a('v_lshlrev_b32 v9, 3, v2'); a('v_add_u32 v1, v1, v9')
    xrow(120, 9)
    a('s_mul_i32 s60, s57, 224')
    a('s_mov_b32 s59, 0')
    a('s_waitcnt lgkmcnt(0)')
    a(f's_load_dword s4, s[32:33], {WS_EP}')
    srd(40, 14, 's58', 0 if noWQ else 111 * 8192 + 128)
    srd(44, 8, None, 7168)
    for t in range(4):
        a(f'buffer_load_dwordx4 {vr(XA+4*t)}, v120, s[44:47], s60 offen' + (f' offset:{64*t}' if t else ''))
        for j in range(8):
            a(f'buffer_load_dwordx2 {vr(RAW+16*t+2*j, 2)}, v1, s[40:43], s59 offen' + WP_)
            if not (t == 3 and j == 7): a(f's_add_u32 s59, s59, {8192 if j < 7 else 25*8192}')
    a('s_lshr_b32 s58, s56, 2'); a('s_lshl_b32 s58, s58, 12'); a('s_lshl_b32 s59, s57, 10'); a('s_add_u32 s58, s58, s59')
    a('s_and_b32 s59, s56, 3'); a('s_lshl_b32 s59, s59, 8'); a('s_add_u32 s58, s58, s59'); a(f's_add_u32 s58, s58, {WS_Q}')
    srd(48, 32, 's58', 7 * 65536 + 256)
    a('v_lshlrev_b32 v1, 17, v3'); a('v_lshlrev_b32 v120, 4, v2'); a('v_add_u32 v1, v1, v120')
    a('s_mov_b32 s59, 65536')
    a('s_waitcnt lgkmcnt(0)')
    tag_setup()
    for t in range(4):
        a(f's_waitcnt vmcnt({9*(3-t)})')
        transpose(RAW + 16 * t, BT)
        for cc in range(4):
            a(f'v_mfma_f32_16x16x32_bf16 {vr(AC+4*cc)}, {vr(XA+4*t)}, {vr(BT+4*cc)}, ' + ('0' if t == 0 else vr(AC+4*cc)))
    for i in range(2):
        tagit(RAW + 4 * i, [AC + 4 * cc + i for cc in range(4)])
        a(f'buffer_store_dwordx4 {vr(RAW+4*i)}, v1, s[48:51], ' + ('0' if i == 0 else 's59') + ' offen sc1')
    stamp(1)
    a('s_cmp_ge_u32 s39, 14')
    a('s_cbranch_scc1 L_w4_done')
    a('s_barrier')
    stamp(2)
    WF = 104
    a('s_lshl_b32 s56, s35, 1'); a('s_and_b32 s57, s39, 1'); a('s_or_b32 s56, s56, s57')
    a('s_lshr_b32 s57, s39, 1')
    a(f's_mul_i32 s58, s56, {128*896}'); a('s_lshl_b32 s59, s57, 7'); a('s_add_u32 s58, s58, s59')
    srd(40, 16, 's58', 0 if noWO else 127 * 896 + 128)
    a(f'v_mul_u32_u24 v1, {8*896}, v3'); a('v_lshlrev_b32 v9, 3, v2'); a('v_add_u32 v1, v1, v9')
    a('s_mov_b32 s59, 0')
    for t in range(4):
        for j in range(8):
            imm = (j & 3) * 896
            a(f'buffer_load_dwordx2 {vr(RAW+16*t+2*j, 2)}, v1, s[40:43], s59 offen' + (f' offset:{imm}' if imm else '') + WP_)
            if j == 3: a(f's_add_u32 s59, s59, {4*896}')
            if j == 7 and t < 3: a(f's_add_u32 s59, s59, {28*896}')
    a('s_lshl_b32 s58, s35, 13'); a('s_and_b32 s59, s39, 1'); a('s_lshl_b32 s59, s59, 8'); a('s_add_u32 s58, s58, s59'); a(f's_add_u32 s58, s58, {WS_O}')
    srd(44, 32, 's58', 15 * 512 + 256)
    a('s_mul_i32 s58, s56, 1792'); a('s_lshl_b32 s59, s57, 8'); a('s_add_u32 s58, s58, s59'); a(f's_add_u32 s58, s58, {WS_Y}')
    srd(48, 32, 's58', 0)
    a(f'v_mul_u32_u24 v121, {64*1792}, v3'); a('v_add_u32 v121, v121, v120') if False else None
    a(f'v_mul_u32_u24 v9, {64*1792}, v3'); a('v_lshlrev_b32 v8, 4, v2'); a('v_add_u32 v9, v9, v8')
    a('v_lshlrev_b32 v1, 9, v2'); a('v_lshlrev_b32 v8, 4, v3'); a('v_add_u32 v1, v1, v8')
    a(f's_mov_b32 s59, {32*1792}')
    for t in range(4):
        a(f's_waitcnt vmcnt({8*(3-t)})')
        transpose(RAW + 16 * t, WF + 16 * t)
    AF = 40; PA = 56; YR = 72
    a('s_mov_b32 s61, 0')
    for t in range(4): a(f's_mov_b64 s[{64+2*t}:{65+2*t}], 0')
    a.label('L_proj')
    a('s_mov_b32 s72, 0')
    a.label('L_ppoll')
    for t in range(4):
        a(f's_mov_b64 exec, s[{64+2*t}:{65+2*t}]')
        a(f'buffer_load_dwordx4 {vr(AF+4*t)}, v1, s[44:47], 0 offen' + (f' offset:{64*t}' if t else '') + ' sc1')
    a('s_add_u32 s72, s72, 1')
    a('s_waitcnt vmcnt(0)')
    for t in range(4):
        b = AF + 4 * t
        a(f's_mov_b64 exec, s[{64+2*t}:{65+2*t}]')
        a(f'v_max3_u32 v8, v{b}, v{b+1}, v{b+2}'); a(f'v_max_u32 v8, v8, v{b+3}')
        a(f'v_cmp_eq_u32_e64 s[{64+2*t}:{65+2*t}], -1, v8')
    a('s_mov_b64 exec, -1')
    a('s_or_b64 s[74:75], s[64:65], s[66:67]'); a('s_or_b64 s[76:77], s[68:69], s[70:71]'); a('s_or_b64 s[74:75], s[74:75], s[76:77]')
    a(f's_cmp_gt_u32 s72, {SPIN}'); a('s_cselect_b64 s[74:75], 0, s[74:75]')
    a('s_cmp_lg_u64 s[74:75], 0')
    a('s_cbranch_scc1 L_ppoll')
    for t in range(4):
        for cc in range(4):
            a(f'v_mfma_f32_16x16x32_bf16 {vr(PA+4*cc)}, {vr(AF+4*t)}, {vr(WF+16*t+4*cc)}, ' + ('0' if t == 0 else vr(PA+4*cc)))
    for i in range(2):
        for cc in range(4): a(f'v_add_f32 v{YR+8+cc}, v{PA+4*cc+2*i}, v{PA+4*cc+2*i+1}')
        tagit(YR + 4 * i, [YR + 8 + cc for cc in range(4)])
        a(f'buffer_store_dwordx4 {vr(YR+4*i)}, v9, s[48:51], ' + ('0' if i == 0 else 's59') + ' offen sc1')
    a('s_cmp_eq_u32 s61, 1')
    a('s_cbranch_scc1 L_w4_done')
    a('s_mov_b32 s61, 1')
    a(f's_mov_b32 s50, {7*32*1792 + 256}')
    for t in range(4): a(f's_mov_b64 s[{64+2*t}:{65+2*t}], -1')
    stamp(3)
    a('s_barrier')
    stamp(4)
    a('s_branch L_proj')
    a.label('L_w4_done')
    stamp(6)
    dump_stamps(40)
    a('s_endpgm')

    a.label('L_w5')
    a('v_mov_b32 v8, -1'); a('v_mov_b32 v9, -1'); a('v_mov_b32 v10, -1'); a('v_mov_b32 v11, -1'); a('v_mov_b32 v12, 0')
    a(f'ds_write_b128 v12, v[8:11] offset:{ML}'); a(f'ds_write_b128 v12, v[8:11] offset:{ML+16}'); a(f'ds_write_b128 v12, v[8:11] offset:{COEF}')
    a(f'ds_write_b32 v12, v12 offset:{CNT}')
    if WH:
        a('v_mov_b32 v13, 0'); a('v_mov_b32 v14, 0'); a('v_mov_b32 v15, 0')
        a(f'ds_write_b128 v12, v[12:15] offset:{PROG}'); a(f'ds_write_b128 v12, v[12:15] offset:{MODE}')
    a('s_lshl_b32 s59, s35, 13'); a('s_lshl_b32 s60, s39, 9'); a('s_add_u32 s59, s59, s60'); a(f's_add_u32 s59, s59, {WS_O}')
    a('s_lshl_b32 s58, s34, 16'); a('s_lshl_b32 s60, s35, 12'); a('s_add_u32 s58, s58, s60'); a(f's_add_u32 s58, s58, {WS_Q}')
    a('v_lshlrev_b32 v1, 4, v0'); a('v_lshlrev_b32 v13, 3, v0')
    a('s_mul_i32 s57, s34, 896')
    a('s_waitcnt lgkmcnt(0)')
    a(f's_load_dword s4, s[32:33], {WS_EP}')
    srd(48, 32, 's59', 512)
    a('buffer_store_dwordx2 v[8:9], v13, s[48:51], 0 offen sc1')
    srd(40, 32, 's58', 4096)
    srd(44, 8, 's57', 896)
    srd(48, 26, None, 896)
    a('buffer_load_dwordx4 v[40:43], v1, s[44:47], 0 offen')
    a('buffer_load_dwordx4 v[44:47], v1, s[48:51], 0 offen')
    for t in range(4): a(f's_mov_b64 s[{64+2*t}:{65+2*t}], -1')
    a('s_mov_b32 s72, 0')
    a('s_waitcnt lgkmcnt(0)')
    tag_setup()
    a('s_waitcnt vmcnt(0)')

    def poll4(label, srdr, va, offs, D):
        a.label(label)
        for t in range(4):
            a(f's_mov_b64 exec, s[{64+2*t}:{65+2*t}]')
            a(f'buffer_load_dwordx4 {vr(D+4*t)}, v{va}, {srdr}, {offs[t]} sc1')
        a('s_add_u32 s72, s72, 1')
        a('s_waitcnt vmcnt(0)')
        for t in range(4):
            a(f's_mov_b64 exec, s[{64+2*t}:{65+2*t}]')
            tagcheck(D + 4 * t, 8, 64 + 2 * t)
        a('s_mov_b64 exec, -1')
        a('s_or_b64 s[74:75], s[64:65], s[66:67]'); a('s_or_b64 s[76:77], s[68:69], s[70:71]'); a('s_or_b64 s[74:75], s[74:75], s[76:77]')
        a(f's_cmp_gt_u32 s72, {SPIN}'); a('s_cselect_b64 s[74:75], 0, s[74:75]')
        a('s_cmp_lg_u64 s[74:75], 0')
        a(f's_cbranch_scc1 {label}')
    poll4('L_qpoll', 's[40:43]', 1, ['0 offen', '0 offen offset:1024', '0 offen offset:2048', '0 offen offset:3072'], 16)
    for k in range(4): a(f'v_add_f32 v{16+k}, v{16+k}, v{20+k}')
    for k in range(4): a(f'v_add_f32 v{24+k}, v{24+k}, v{28+k}')
    for k in range(4): a(f'v_add_f32 v{16+k}, v{16+k}, v{24+k}')
    a('v_cvt_pk_bf16_f32 v16, v16, v17'); a('v_cvt_pk_bf16_f32 v17, v18, v19')
    a(f'ds_write_b64 v13, v[16:17] offset:{QB}')
    a('s_waitcnt lgkmcnt(0)')
    stamp(1)
    a('s_barrier')
    for k in range(4):
        a(f'v_lshlrev_b32 v{16+2*k}, 16, v{40+k}'); a(f'v_and_b32 v{17+2*k}, 0xffff0000, v{40+k}')
        a(f'v_lshlrev_b32 v{24+2*k}, 16, v{44+k}'); a(f'v_and_b32 v{25+2*k}, 0xffff0000, v{44+k}')
    for k in range(8): a(f'v_mul_f32 v{16+k}, v{16+k}, v{24+k}')
    rne(16, 16, 8, 24)
    for k in range(1, 8): a(f'v_add_f32 v16, v16, v{16+k}')
    for o in wave_reduce('v_add_f32', 16, 17): a(o)
    rne(16, 16, 2, 24)
    a(f'v_mul_f32 v16, {LOG2E ^ 0x80000000:#x}, v16'); a('v_exp_f32 v16, v16'); a('v_add_f32 v16, 1.0, v16'); a('v_rcp_f32 v16, v16')
    rne(16, 16, 2, 24)
    a('v_sub_f32 v18, 1.0, v16')
    rne(18, 18, 2, 24)
    GV = 60; GM = 61
    a(f'v_mov_b32 v{GV}, v16'); a(f'v_mov_b32 v{GM}, v18')
    a('s_lshl_b32 s58, s35, 8'); a(f's_add_u32 s58, s58, {WS_REC}')
    srd(40, 32, 's58', 256)
    a('s_lshl_b32 s57, s39, 4')
    a(f's_mov_b32 s61, {CSC:#x}')
    a('s_mov_b32 s72, 0')
    a.label('L_pollml')
    a(f'ds_read_b128 v[16:19], v12 offset:{ML}'); a(f'ds_read_b128 v[20:23], v12 offset:{ML+16}')
    a('s_add_u32 s72, s72, 1'); a(f's_cmp_gt_u32 s72, {SPIN*8}'); a('s_cbranch_scc1 L_pollml_x')
    a('s_waitcnt lgkmcnt(0)')
    a('v_max3_u32 v24, v16, v17, v18'); a('v_max3_u32 v24, v24, v19, v20'); a('v_max3_u32 v24, v24, v21, v22'); a('v_max_u32 v24, v24, v23')
    a('v_readfirstlane_b32 s56, v24')
    a('s_cmp_eq_u32 s56, -1'); a('s_cbranch_scc1 L_pollml')
    a.label('L_pollml_x')
    a('s_waitcnt lgkmcnt(0)')
    a('v_max_f32 v24, v16, v17'); a('v_max3_f32 v24, v24, v18, v19')
    for k in range(4): a(f'v_sub_f32 v{28+k}, v{16+k}, v24')
    for k in range(4): a(f'v_mul_f32 v{28+k}, s61, v{28+k}')
    for k in range(4): a(f'v_exp_f32 v{28+k}, v{28+k}')
    a('v_mul_f32 v25, v28, v20')
    for k in range(1, 4): a(f'v_fmac_f32 v25, v{28+k}, v{20+k}')
    a('v_mov_b32 v32, v24'); a('v_mov_b32 v33, v25'); a(f'v_mov_b32 v34, v{TG}'); a(f'v_mov_b32 v35, v{TG}')
    a('s_mov_b64 exec, 1')
    a('buffer_store_dwordx4 v[32:35], v12, s[40:43], s57 offen sc1')
    a('s_mov_b64 exec, -1')
    stamp(2)
    a('v_lshlrev_b32 v14, 4, v2')
    a('s_mov_b32 s72, 0')
    a('s_mov_b64 s[64:65], 0xffff')
    a.label('L_recpoll')
    a('s_mov_b64 exec, s[64:65]')
    a('buffer_load_dwordx4 v[36:39], v14, s[40:43], 0 offen sc1')
    a('s_add_u32 s72, s72, 1')
    a('s_waitcnt vmcnt(0)')
    a(f'v_xor_b32 v8, v38, v{TG}'); a(f'v_xor_b32 v9, v39, v{TG}'); a('v_or_b32 v8, v8, v9')
    a('v_cmp_ne_u32_e64 s[64:65], 0, v8')
    a('s_mov_b64 exec, -1')
    a(f's_cmp_gt_u32 s72, {SPIN}'); a('s_cselect_b64 s[64:65], 0, s[64:65]')
    a('s_cmp_lg_u64 s[64:65], 0')
    a('s_cbranch_scc1 L_recpoll')
    a('s_xor_b32 s56, s39, 1')
    a('v_readlane_b32 s58, v36, s56'); a('v_readlane_b32 s59, v37, s56')
    a('v_max_f32 v26, s58, v24')
    a('v_sub_f32 v27, s58, v26'); a('v_sub_f32 v24, v24, v26')
    a('v_mul_f32 v27, s61, v27'); a('v_mul_f32 v24, s61, v24')
    a('v_exp_f32 v27, v27'); a('v_exp_f32 v24, v24')
    a('v_mul_f32 v27, s59, v27'); a('v_fmac_f32 v27, v24, v33')
    a('v_rcp_f32 v27, v27')
    a('v_mul_f32 v27, v27, v24')
    for k in range(4): a(f'v_mul_f32 v{28+k}, v27, v{28+k}')
    for k in range(4): a(f'v_min_u32 v{28+k}, -2, v{28+k}')
    a(f'ds_write_b128 v12, v[28:31] offset:{COEF}')
    a('s_waitcnt lgkmcnt(0)')
    stamp(3)
    a('s_cmp_lt_u32 s37, 14')
    a('s_cbranch_scc1 L_fin')
    dump_stamps(40)
    a('s_endpgm')
    a.label('L_fin')
    TT = 64
    a(f's_mul_i32 s58, s34, {32*1792}'); a(f's_add_u32 s59, s58, {WS_F}'); a(f's_add_u32 s58, s58, {WS_Y}')
    srd(40, 32, 's59', 32 * 1792)
    a('v_lshrrev_b32 v16, 3, v0'); a('v_mul_u32_u24 v1, 1792, v16'); a('v_and_b32 v16, 7, v0'); a('v_lshlrev_b32 v16, 4, v16'); a('v_add_u32 v1, v1, v16')
    a('s_lshl_b32 s59, s37, 7'); a('v_add_u32 v1, s59, v1')
    for u in range(1, 4): a(f's_mov_b32 s{77+u}, {u*8*1792}')
    a('s_mul_i32 s59, s34, 896')
    srd(44, 28, 's59', 896)
    a('s_lshl_b32 s59, s37, 6'); a('v_add_u32 v13, s59, v13')
    a('v_cmp_gt_u32 vcc, 8, v0'); a(f'v_mov_b32 v16, {OOB:#x}'); a('v_cndmask_b32 v13, v16, v13, vcc')
    for k in range(4): a(f'v_mov_b32 v{TT+k}, 0'); a(f'v_mov_b32 v{28+k}, 0')
    a('s_mov_b32 s61, 0')
    for t in range(3): a(f's_mov_b64 s[{64+2*t}:{65+2*t}], ' + ('0' if noFFN or not FS else '-1'))
    a('s_mov_b32 s70, ' + ('0' if noFFN or not FS else '-1')); a('s_mov_b32 s71, 0')
    a.label('L_gather')
    a('s_mov_b32 s72, 0')
    poll4('L_gpoll', 's[40:43]', 1, ['0 offen', 's78 offen', 's79 offen', 's80 offen'], 16)
    for k in range(4): a(f'v_add_f32 v{16+k}, v{16+k}, v{20+k}')
    for k in range(4): a(f'v_add_f32 v{24+k}, v{24+k}, v{28+k}')
    for k in range(4): a(f'v_add_f32 v{48+k}, v{16+k}, v{24+k}')
    for k in range(4): a(f'v_add_f32_dpp v{48+k}, v{48+k}, v{48+k} row_ror:8 row_mask:0xf bank_mask:0xf')
    for sw in ('v_permlane16_swap_b32', 'v_permlane32_swap_b32'):
        for k in range(4): a(f'v_mov_b32 v{52+k}, v{48+k}')
        for k in range(4): a(f'{sw} v{48+k}, v{52+k}')
        for k in range(4): a(f'v_add_f32 v{48+k}, v{48+k}, v{52+k}')
    rne(48, 48, 4, 52)
    for k in range(4): a(f'v_mul_f32 v{48+k}, v{GM}, v{48+k}')
    rne(48, 48, 4, 52)
    for k in range(4): a(f'v_add_f32 v{TT+k}, v{TT+k}, v{48+k}')
    a(f'v_cvt_pk_bf16_f32 v52, v{TT}, v{TT+1}'); a(f'v_cvt_pk_bf16_f32 v53, v{TT+2}, v{TT+3}')
    a('s_cmp_eq_u32 s61, 1')
    a('s_cbranch_scc1 L_fin_store')
    a('s_mov_b32 s61, 1')
    srd(40, 32, 's58', 32 * 1792)
    a(f'v_mov_b32 v{GM}, v{GV}')
    for t in range(4): a(f's_mov_b64 s[{64+2*t}:{65+2*t}], -1')
    stamp(4)
    a('s_barrier')
    stamp(5)
    a('s_branch L_gather')
    a.label('L_fin_store')
    a('buffer_store_dwordx2 v[52:53], v13, s[44:47], 0 offen')
    stamp(6)
    if DBG:
        a('s_memrealtime s[86:87]'); a('s_cmp_lg_u32 s37, 0'); a('s_cbranch_scc1 L_nodbg')
        a('s_waitcnt lgkmcnt(0)'); a('s_sub_u32 s86, s86, s84'); a('v_mov_b32 v70, s86'); a('s_lshl_b32 s86, s34, 2'); a('v_mov_b32 v71, s86')
        a('global_store_dword v71, v70, s[30:31]')
        a.label('L_nodbg')
    a('s_cmp_lg_u32 s2, 0')
    a('s_cbranch_scc1 L_noep')
    a('s_mov_b64 exec, 1')
    a(f'global_store_dword v12, v{TG}, s[32:33] offset:{WS_EP}')
    a('s_mov_b64 exec, -1')
    a.label('L_noep')
    dump_stamps(80)
    a('s_endpgm')

    if WH:
        a.label('L_w7')
        a('v_mov_b32 v1, 0'); a('v_mov_b32 v2, 1')
        a('s_mov_b64 exec, 1')
        a(f's_mov_b32 s56, {TH}'); a('s_mov_b32 s57, 0'); a('s_mov_b32 s58, 0'); a('s_mov_b32 s72, 0')
        a('s_waitcnt lgkmcnt(0)')
        a(f's_lshr_b32 s59, s2, {GS}'); a('s_lshl_b32 s59, s59, 8'); a(f's_add_u32 s59, s59, {WS_CTR}'); a('v_mov_b32 v8, s59')
        a(f's_and_b32 s59, s2, {(1<<GS)-1}')
        a('s_cmp_lg_u32 s59, 0'); a('s_cbranch_scc1 L_w7b')
        a(f'global_store_dword v8, v1, s[32:33] sc1')
        a.label('L_w7b')
        a('s_barrier')
        a.label('L_w7poll')
        a(f'ds_read_b128 v[4:7], v1 offset:{PROG}')
        a('s_add_u32 s72, s72, 1'); a(f's_cmp_gt_u32 s72, {SPIN*8}'); a('s_cbranch_scc1 L_end')
        a('s_waitcnt lgkmcnt(0)')
        a('v_min_u32 v4, v4, v5'); a('v_min3_u32 v4, v4, v6, v7')
        a('v_readfirstlane_b32 s59, v4')
        a('s_cmp_lt_u32 s59, s57'); a('s_cbranch_scc1 L_w7poll')
        a(f'global_atomic_add v3, v8, v2, s[32:33] sc0 sc1')
        a('s_add_u32 s57, s57, 32256'); a('s_add_u32 s58, s58, 1')
        a('s_waitcnt vmcnt(0)')
        a('v_cmp_le_i32 vcc, s56, v3')
        a(f's_add_u32 s56, s56, {1<<GS}')
        for k in range(4): a(f'v_cndmask_b32 v{4+k}, v1, v2, vcc')
        a(f'ds_write_b128 v1, v[4:7] offset:{MODE}')
        a(f's_cmp_lt_u32 s58, {NCK}'); a('s_cbranch_scc1 L_w7poll')
        a('s_waitcnt lgkmcnt(0)')
        a('s_endpgm')

    a.label('L_w6')
    if noFFN: a('s_branch L_end')
    if FP:
        a('s_lshr_b32 s37, s2, 3'); a('s_xor_b32 s58, s37, s2'); a('s_and_b32 s58, s58, 7')
        a('s_cmp_lg_u32 s58, 0'); a('s_cbranch_scc1 L_end')
    else:
        a('s_cmp_lg_u32 s34, 7'); a('s_cbranch_scc1 L_end')
    a('s_cmp_ge_u32 s37, 28'); a('s_cbranch_scc1 L_end')
    a('s_waitcnt lgkmcnt(0)')
    a(f's_load_dword s4, s[32:33], {WS_EP}')
    a('s_lshl_b32 s58, s37, 7')
    srd(40, 20, 's58', 447 * 3584 + 128 if FL & 1 else 0)
    srd(44, 22, 's58', 447 * 3584 + 128 if FL & 1 else 0)
    srd(48, 8, None, 7168)
    a(f'v_mul_u32_u24 v1, {8*3584}, v3'); a('v_lshlrev_b32 v9, 3, v2'); a('v_add_u32 v1, v1, v9')
    xrow(10, 9)
    for k in range(1, 4): a(f's_mov_b32 s{63+k}, {k*7168}')
    a('s_waitcnt lgkmcnt(0)')
    tag_setup()
    a('s_barrier')
    FB = [40, 76]
    GA = 112; UA = 128; BT2 = 144
    def fload(bf):
        for mi, sr in ((0, 's[40:43]'), (1, 's[44:47]')):
            for j in range(8):
                so = '0' if j < 2 else f's{63 + j // 2}'
                a(f'buffer_load_dwordx2 {vr(bf+16*mi+2*j, 2)}, v1, {sr}, {so} offen' + (' offset:3584' if j & 1 else '') + WP_)
        a(f'buffer_load_dwordx4 {vr(bf+32)}, v10, s[48:51], 0 offen')
        a(f'v_add_u32 v1, {32*3584}, v1'); a('v_add_u32 v10, 64, v10')
    def fcomp(bf):
        for mi, acc in ((0, GA), (1, UA)):
            transpose(bf + 16 * mi, BT2 + 16 * mi)
            for cc in range(4):
                a(f'v_mfma_f32_16x16x32_bf16 {vr(acc+4*cc)}, {vr(bf+32)}, {vr(BT2+16*mi+4*cc)}, {vr(acc+4*cc)}')
    for k in range(32): a(f'v_mov_b32 v{GA+k}, 0')
    fload(FB[0])
    a('s_mov_b32 s59, 0')
    a.label('L_ffn')
    fload(FB[1])
    a('s_waitcnt vmcnt(17)')
    fcomp(FB[0])
    fload(FB[0])
    a('s_waitcnt vmcnt(17)')
    fcomp(FB[1])
    a('s_add_u32 s59, s59, 1')
    a('s_cmp_lt_u32 s59, 7')
    a('s_cbranch_scc1 L_ffn')
    for i in range(2):
        for cc in range(4):
            a(f'v_mov_b32 v{16+4*i+cc}, v{GA+4*cc+i}'); a(f'v_mov_b32 v{24+4*i+cc}, v{UA+4*cc+i}')
    rne(16, 16, 16, 32)
    for k in range(8): a(f'v_mul_f32 v{32+k}, {LOG2E ^ 0x80000000:#x}, v{16+k}')
    for k in range(8): a(f'v_exp_f32 v{32+k}, v{32+k}')
    for k in range(8): a(f'v_add_f32 v{32+k}, 1.0, v{32+k}')
    for k in range(8): a(f'v_rcp_f32 v{32+k}, v{32+k}')
    for k in range(8): a(f'v_mul_f32 v{16+k}, v{16+k}, v{32+k}')
    rne(16, 16, 8, 32)
    for k in range(8): a(f'v_mul_f32 v{16+k}, v{16+k}, v{24+k}')
    for k in range(4): a(f'v_cvt_pk_bf16_f32 v{16+k}, v{16+2*k}, v{17+2*k}')
    a(f'v_mul_u32_u24 v9, {2*HBS}, v3'); a('v_lshlrev_b32 v8, 3, v2'); a('v_add_u32 v9, v9, v8')
    a(f'ds_write_b64 v9, v[16:17] offset:{HB}'); a(f'ds_write_b64 v9, v[18:19] offset:{HB+HBS}')
    a('v_lshrrev_b32 v8, 2, v2'); a('v_lshlrev_b32 v8, 1, v8'); a('v_and_b32 v9, 1, v2'); a('v_add_u32 v9, v9, v8')
    a(f'v_mul_u32_u24 v9, {HBS}, v9'); a('v_lshlrev_b32 v8, 4, v3'); a('v_add_u32 v9, v9, v8')
    a(f'ds_read_b128 v[16:19], v9 offset:{HB}'); a(f'ds_read_b128 v[20:23], v9 offset:{HB+64}')
    a(f's_mul_i32 s58, s37, {64*896}')
    srd(40, 24, 's58', 64 * 896 if FL & 2 else 0)
    a('s_mul_i32 s58, s37, 1792'); a(f's_add_u32 s58, s58, {WS_F}')
    srd(44, 32, 's58', 7 * 32 * 1792 + 1792 if FS else 0)
    a(f'v_mul_u32_u24 v1, {8*896}, v3'); a('v_lshlrev_b32 v9, 3, v2'); a('v_add_u32 v1, v1, v9')
    a(f'v_mul_u32_u24 v9, {64*1792}, v3'); a('v_lshlrev_b32 v8, 4, v2'); a('v_add_u32 v9, v9, v8')
    a(f's_mov_b32 s64, {4*896}'); a(f's_mov_b32 s65, {32*896}'); a(f's_mov_b32 s66, {36*896}'); a(f's_mov_b32 s67, {32*1792}')
    a('s_mov_b32 s59, 0')
    a('s_waitcnt vmcnt(0)')
    a.label('L_down')
    for t in range(2):
        for j in range(8):
            so = ['0', 's64', 's65', 's66'][2 * t + (j >> 2)]
            imm = (j & 3) * 896
            a(f'buffer_load_dwordx2 {vr(40+16*t+2*j, 2)}, v1, s[40:43], {so} offen' + (f' offset:{imm}' if imm else '') + WP_)
    a('s_waitcnt vmcnt(0) lgkmcnt(0)')
    for t in range(2):
        transpose(40 + 16 * t, 72 + 16 * t)
        for cc in range(4):
            a(f'v_mfma_f32_16x16x32_bf16 {vr(GA+4*cc)}, {vr(16+4*t)}, {vr(72+16*t+4*cc)}, ' + ('0' if t == 0 else vr(GA+4*cc)))
    a('v_add_u32 v1, 128, v1')
    for i in range(2):
        tagit(24 + 4 * i, [GA + 4 * cc + i for cc in range(4)])
        a(f'buffer_store_dwordx4 {vr(24+4*i)}, v9, s[44:47], ' + ('0' if i == 0 else 's67') + ' offen sc1')
    a('v_add_u32 v9, 256, v9')
    a('s_add_u32 s59, s59, 1')
    a('s_cmp_lt_u32 s59, 7')
    a('s_cbranch_scc1 L_down')
    stamp(6)
    dump_stamps(40)
    a.label('L_end')
    a('s_endpgm')
    a.raw('.section .rodata,"a"'); a.raw('.p2align 6'); a.raw(f'.amdhsa_kernel {NAME}')
    a.raw('  .amdhsa_next_free_vgpr 256'); a.raw('  .amdhsa_next_free_sgpr 102'); a.raw('  .amdhsa_accum_offset 256')
    a.raw('  .amdhsa_group_segment_fixed_size 0'); a.raw('  .amdhsa_kernarg_size 104'); a.raw('  .amdhsa_user_sgpr_count 2')
    a.raw('  .amdhsa_user_sgpr_kernarg_segment_ptr 1'); a.raw('  .amdhsa_system_sgpr_workgroup_id_x 1'); a.raw('.end_amdhsa_kernel')
    return a.text()

if __name__ == '__main__':
    kw = eval('dict(' + (sys.argv[2] if len(sys.argv) > 2 else '') + ')')
    open(sys.argv[1], 'w').write(gen(**kw))
```

```python
import sys
sys.path.insert(0, 'gen')
from asmlib import Asm

NAME = 'gated_mix__mha_block_cached__swiglu_ffn__decode_kernel'
HEADER = open('gated_mix__mha_block_cached__swiglu_ffn__decode.s.ref').read().split('; Override launch')[0]

QB = 0
OP = 512
ML = 4608
COEF = 4640
CNT = 4656
PROG = 4672
MODE = 4688
GMV = 4704
HB = 4736
HBS = 144
LDS = 8192
WS_EP = 0
WS_CTR = 0x10000
WS_REC = 0x1000
WS_O = 0x20000
WS_Q = 0x80000
WS_Y = 0x100000
WS_G = 0x180000
WS_ST = 0x200000
CSC = 0x3db8aa3b
LOG2E = 0x3fb8aa3b
SPIN = 20000
OOB = 0x40000000

def rev5(i): return int(f'{i:05b}'[::-1], 2)
def vr(b, n=4): return f'v[{b}:{b+n-1}]'

def gen(W=5, LK=7, LV=9, P=54, G=1, stamps=False, PRIO=3, W0=5, noWO=False, noWQ=False, DBG=0, KP_=' nt', VP_=' nt', WP_=' nt', GP_='', WH=0, WP=5, TH=4, GS=3, NCK=15, SMP=(6, 22), WSB=0x3fc00000, B3=1, CS=0, CU=9, noFFN=False):
    NW = 7 if WH else 6
    a = Asm()
    a.raw(HEADER.rstrip('\n'))
    a.raw(f'; @launch grid=(256,1,1) block=({NW*64},1,1) lds={LDS}')
    a.raw('.amdgcn_target "amdgcn-amd-amdhsa--gfx950"')
    a.raw('.text'); a.raw(f'.globl {NAME}'); a.raw('.p2align 8'); a.raw(f'.type {NAME},@function'); a.raw(f'{NAME}:')

    def stamp(k):
        if stamps: a(f's_memrealtime s[{84+2*k}:{85+2*k}]')
    def dump_stamps(tmp):
        if not stamps: return
        a('s_waitcnt lgkmcnt(0)')
        a(f's_mul_i32 s60, s2, {NW}'); a('s_add_u32 s60, s60, s3'); a('s_lshl_b32 s60, s60, 6'); a(f's_add_u32 s60, s60, {WS_ST}')
        a(f'v_mov_b32 v{tmp}, s60')
        for k in range(16): a(f'v_mov_b32 v{tmp+2+k}, s{84+k}')
        for k in range(4): a(f'global_store_dwordx4 v{tmp}, {vr(tmp+2+4*k)}, s[52:53] offset:{16*k}')

    def wsb():
        if stamps: a('s_mov_b64 s[52:53], s[32:33]')
        if WSB: a(f's_add_u32 s32, s32, {WSB:#x}'); a('s_addc_u32 s33, s33, 0')
    def srd(d, plo, off, size):
        if off is None:
            a(f's_mov_b32 s{d}, s{plo}'); a(f's_mov_b32 s{d+1}, s{plo+1}')
        else:
            a(f's_add_u32 s{d}, s{plo}, {off}'); a(f's_addc_u32 s{d+1}, s{plo+1}, 0')
        a(f's_mov_b32 s{d+2}, {size}'); a(f's_mov_b32 s{d+3}, 0x20000')

    def sel2_ops(sel, t):
        L = [f'v_lshrrev_b32 v{t}, 5, v0', f'v_mul_u32_u24 v{t}, 0x202, v{t}', f'v_add_u32 v{t}, 0x100, v{t}',
             f'v_or_b32 v{t+1}, 0xc0c0000, v{t}', f'v_lshlrev_b32 v{t+2}, 16, v{t}', f'v_or_b32 v{t+2}, 0xc0c, v{t+2}',
             f'v_and_b32 v{t+3}, 1, v0', f'v_cmp_eq_u32 vcc, 1, v{t+3}', f'v_cndmask_b32 v{t+1}, v{t+1}, v{t+2}, vcc',
             f'v_lshrrev_b32 v{t+2}, 1, v0', f'v_xor_b32 v{t+3}, v0, v{t+2}', f'v_and_b32 v{t+3}, 8, v{t+3}',
             f'v_and_b32 v{t+2}, 3, v{t+2}', f'v_or_b32 v{t+2}, v{t+2}, v{t+3}', f'v_mov_b32 v{t+3}, 0xc0c0c0c']
        for rr in range(4):
            L += [f'v_cmp_eq_u32 vcc, {rr}, v{t+2}', f'v_cndmask_b32 v{sel+rr}, v{t+3}, v{t+1}, vcc']
        return L

    def wave_reduce(op, v, t):
        L = []
        for r in (8, 4, 2, 1):
            L.append(f'{op}_dpp v{v}, v{v}, v{v} row_ror:{r} row_mask:0xf bank_mask:0xf')
        for sw in ('v_permlane16_swap_b32', 'v_permlane32_swap_b32'):
            L += [f'v_mov_b32 v{t}, v{v}', f'{sw} v{v}, v{t}', f'{op} v{v}, v{v}, v{t}']
        return L

    def rne(dst, src, n, t):
        for k in range(0, n, 2): a(f'v_cvt_pk_bf16_f32 v{t+k//2}, v{src+k}, v{src+k+1}')
        for k in range(0, n, 2):
            a(f'v_lshlrev_b32 v{dst+k}, 16, v{t+k//2}'); a(f'v_and_b32 v{dst+k+1}, 0xffff0000, v{t+k//2}')

    def transpose(tmp, dst):
        for cc in range(4):
            for jj in range(4):
                a(f'v_perm_b32 v{dst+4*cc+jj}, v{tmp+2*(2*jj+1)+(cc>>1)}, v{tmp+2*(2*jj)+(cc>>1)}, s{62+(cc&1)}')

    TG = 4
    def tag_setup():
        a('s_add_u32 s4, s4, 0x01010101')
        a('s_mov_b32 s5, 0xff'); a('s_mov_b32 s6, 0x0c0c0400'); a('s_mov_b32 s7, 0x04000c0c')
        a(f'v_mov_b32 v{TG}, s4')
        for k in range(1, 4): a(f'v_lshrrev_b32 v{TG+k}, {8*k}, v{TG}')
    def tagit(dst, srcs):
        for k in range(4): a(f'v_bfi_b32 v{dst+k}, s5, v{TG+k}, v{srcs[k]}')
    def tagcheck(d, t, mask):
        a(f'v_perm_b32 v{t}, v{d+1}, v{d}, s6'); a(f'v_perm_b32 v{t+1}, v{d+3}, v{d+2}, s7')
        a(f'v_or_b32 v{t}, v{t}, v{t+1}')
        a(f'v_cmp_ne_u32_e64 s[{mask}:{mask+1}], v{t}, v{TG}')
        a(f's_wqm_b64 s[{mask}:{mask+1}], s[{mask}:{mask+1}]')

    a('s_cmp_ge_u32 s2, 256')
    a('s_cbranch_scc1 L_end')
    a('s_load_dwordx16 s[8:23], s[0:1], 0')
    a('s_load_dwordx8 s[24:31], s[0:1], 64')
    a('s_load_dwordx2 s[32:33], s[0:1], 96')
    if stamps:
        for k in range(2, 16, 2): a(f's_mov_b64 s[{84+k}:{85+k}], 0')
    stamp(0)
    if DBG: a('s_memrealtime s[84:85]')
    a('v_lshrrev_b32 v1, 6, v0')
    a('v_and_b32 v0, 63, v0')
    a('v_readfirstlane_b32 s3, v1')
    a('s_bfe_u32 s35, s2, 0x40001'); a('s_and_b32 s36, s2, 1')
    a('s_lshr_b32 s34, s2, 5')
    a('s_and_b32 s37, s2, 31')
    a('s_lshl_b32 s39, s34, 1'); a('s_or_b32 s39, s39, s36')
    a('s_cmp_ge_u32 s3, 4')
    a('s_cbranch_scc1 L_helper')

    RING = 40; XR = RING + 128
    NX = max(P - 32, 0)
    assert XR + 4 * NX <= 256
    Q = 2; SEL = 6; SC = 10; TMP = 18; RMAX = 34; LA = 35; LB = 36; CF = 37; OA = 38; OG = 39
    S0 = 18; ACC = 26
    if PRIO: a(f's_setprio {PRIO}')
    a('v_lshlrev_b32 v1, 4, v0')
    a(f's_mul_i32 s56, s3, {G*1024}')
    a('s_mov_b32 s58, s56')
    a('s_lshl_b32 s57, s2, 20')
    a('s_waitcnt lgkmcnt(0)')
    srd(40, 10, 's57', 1 << 20)

    def slot_reg(n):
        if n < NX: return XR + 4 * n
        if P <= n < min(64, P + NX): return XR + 4 * (n - P)
        return RING + 4 * (n % 32)
    def prev_user(n):
        r = slot_reg(n)
        for m in range(n - 1, -1, -1):
            if slot_reg(m) == r: return m
        return -1
    st = {'issued': 0, 'landed': -1}
    def issue(endmode=None):
        n = st['issued']
        if WH and n >= P:
            st['lab'] = st.get('lab', 0) + 1
            a.raw(f'  s_cbranch_vccnz L_em{st["lab"]}'); a.pos += 1
            a.raw(f'  s_waitcnt vmcnt({W-1})')
            a.raw(f'L_em{st["lab"]}:')
            a(f's_waitcnt vmcnt({WH-1})'); st['landed'] = max(st['landed'], n - WH)
        elif n >= W0:
            w = WP if n < P else W
            a(f's_waitcnt vmcnt({w-1})'); st['landed'] = max(st['landed'], n - w)
        st['issued'] += 1
        srdr, so = ('s[40:43]', 's56') if n < 256 else ('s[44:47]', 's58')
        j = n % G
        imm = (j % 4) * 1024
        a(f'buffer_load_dwordx4 {vr(slot_reg(n))}, v1, {srdr}, {so} offen' + (f' offset:{imm}' if imm else '') + (KP_ if n < 256 else VP_))
        if j == G - 1: a(f's_add_u32 {so}, {so}, {4*G*1024 - (G-1)//4*4096}')
        elif j % 4 == 3: a(f's_add_u32 {so}, {so}, 4096')
    WM = max(W, WH)
    def sample(i):
        if not WH: return
        if (i & 31) in SMP: a(f'ds_read_b32 v0, v{LA} offset:{MODE}')
        if ((i - 2) & 31) in SMP: a('s_waitcnt lgkmcnt(0)'); a('v_cmp_ne_u32 vcc, 0, v0')
    def checkpoint():
        if WH: a(f'ds_add_u32 v{LA}, v1 offset:{PROG}')
    def ensure(n):
        if st['landed'] < n:
            a(f's_waitcnt vmcnt({st["issued"]-1-n})'); st['landed'] = n
    for i in range(W0): issue()
    srd(44, 12, 's57', 1 << 20)
    wsb()
    a('s_lshl_b32 s59, s35, 13'); a('s_lshl_b32 s60, s39, 9'); a('s_add_u32 s59, s59, s60'); a(f's_add_u32 s59, s59, {WS_O}')
    srd(48, 32, 's59', 512)
    pre = sel2_ops(SEL, TMP)
    pre += [f'v_and_b32 v{LA}, 31, v0', f'v_lshlrev_b32 v{LA}, 4, v{LA}',
            f'v_mov_b32 v{RMAX}, 0xff800000',
            's_mov_b32 s60, 0xcccccccc', 's_mov_b32 s61, 0xcccccccc', 's_mov_b32 s62, 0xaaaaaaaa', 's_mov_b32 s63, 0xaaaaaaaa',
            f'v_lshrrev_b32 v{OG}, 5, v0', f'v_lshlrev_b32 v{OG}, 8, v{OG}', f'v_and_b32 v{OA}, 15, v0', f'v_lshlrev_b32 v{OA}, 4, v{OA}',
            f'v_add_u32 v{OG}, v{OG}, v{OA}', f'v_bfe_u32 v{OA}, v0, 4, 1', f'v_lshlrev_b32 v{OA}, 3, v{OA}', f'v_add_u32 v{OG}, v{OG}, v{OA}',
            's_lshl_b32 s59, s3, 10', f'v_add_u32 v{OA}, s59, v1']
    for o in pre: a(o)
    while st['issued'] < P: issue()
    stamp(1)
    a('s_barrier')
    a(f'ds_read_b128 {vr(Q)}, v{LA} offset:{QB}')
    a('s_lshl_b32 s59, s3, 2')
    a(f'v_mov_b32 v{LA}, s59')
    stamp(2)
    a('s_mov_b64 vcc, 0')
    a('s_waitcnt lgkmcnt(0)')

    T = [TMP, TMP + 1, TMP + 2, TMP + 3]; RB = TMP + 4; RC = TMP + 5; RD0 = TMP + 6; RD1 = TMP + 7; RE0 = TMP + 8; RE1 = TMP + 9
    class KP:
        def __init__(s): s.q = []; s.since = 0
        def emit(s, o):
            a(o); s.since += 1
            if s.q and s.since >= 2:
                a(s.q.pop(0)); s.since = 0
        def flush(s):
            while s.q: a(s.q.pop(0))
        def step(s, n):
            i = n & 31
            if (i & 1) == 0:
                while s.q and any(f'v{T[i&3]}' in o.replace(',', ' ').split() or f'v{T[(i+1)&3]}' in o.replace(',', ' ').split() for o in s.q):
                    a(s.q.pop(0))
            t = T[i & 3]; k = slot_reg(n)
            for r in range(4):
                s.emit(f'v_dot2_f32_bf16 v{t}, v{k+r}, v{Q+r}, ' + ('0' if r == 0 else f'v{t}'))
            if i & 1:
                ta, tb = T[(i - 1) & 3], t
                m = [f'v_permlane16_swap_b32 v{ta}, v{tb}', f'v_add_f32 v{ta}, v{ta}, v{tb}']
                b1 = (i >> 1) & 1
                m.append(f'v_add_f32_dpp v{RB}, v{ta}, v{ta} row_ror:8 row_mask:0xf bank_mask:' + ('0xc' if b1 else '0xf'))
                if b1:
                    b2 = (i >> 2) & 1
                    m.append(f'v_add_f32_dpp v{RC}, v{RB}, v{RB} row_half_mirror row_mask:0xf bank_mask:' + ('0xa' if b2 else '0xf'))
                    if b2:
                        b3 = (i >> 3) & 1
                        m.append(f'v_add_f32_dpp v{RD1 if b3 else RD0}, v{RC}, v{RC} quad_perm:[2,3,0,1] row_mask:0xf bank_mask:0xf')
                        if b3:
                            m.append(f'v_cndmask_b32 v{RD0}, v{RD0}, v{RD1}, s[60:61]')
                            b4 = (i >> 4) & 1
                            m.append(f'v_add_f32_dpp v{RE1 if b4 else RE0}, v{RD0}, v{RD0} quad_perm:[1,0,3,2] row_mask:0xf bank_mask:0xf')
                            if b4:
                                m.append(f'v_cndmask_b32 v{RE0}, v{RE0}, v{RE1}, s[62:63]')
                                m.append(f'v_cvt_pk_bf16_f32 v{RE0}, v{RE0}, v{RE0}')
                                m.append(f'v_lshlrev_b32 v{SC+7}, 16, v{RE0}')
                                m.append(f'v_max_f32 v{RMAX}, v{RMAX}, v{SC+7}')
                s.q += m
    def shift_sc():
        for k in range(7): a(f'v_mov_b32 v{SC+k}, v{SC+k+1}')

    kp = KP()
    tot = 64 + LK - P
    for n in range(64):
        if n == 32: kp.flush(); a(f'v_mov_b32 v{SC+6}, v{SC+7}')
        if CS and n in (8, 24, 40, 56): stamp(4 + (n - 8) // 16); print('CS', n, 'issued', st['issued'])
        ensure(n)
        kp.step(n)
        if n >= 32: sample(n)
        want = max(P + min(n // CU + 1, tot), n + 1 + LK)
        while st['issued'] < want and prev_user(st['issued']) <= n:
            if n == 63: kp.flush()
            issue()
    kp.flush()
    assert st['issued'] == 64 + LK, st
    checkpoint()
    stamp(3)
    a('s_mov_b32 s59, 0')
    a.label('L_kloop')
    st['landed'] = st['issued'] - 1 - WM
    kp = KP()
    shift_sc()
    for n in range(64, 96):
        assert st['landed'] >= n
        kp.step(n)
        sample(n)
        if n == 95: kp.flush()
        issue()
    checkpoint()
    a('s_add_u32 s59, s59, 1')
    a('s_cmp_lt_u32 s59, 5')
    a('s_cbranch_scc1 L_kloop')
    st['issued'] += 128; st['landed'] += 128
    kp = KP()
    shift_sc()
    for n in range(224, 256):
        assert st['landed'] >= n
        kp.step(n)
        sample(n)
        if n < 255: issue()
    kp.flush()
    checkpoint()
    if not CS: stamp(4)
    sm = ['@issue'] + wave_reduce('v_max_f32', RMAX, TMP)
    sm.append(f'v_mov_b32 v{TMP+1}, {CSC:#x}')
    sm.append(f'v_mul_f32 v{TMP+2}, v{RMAX}, v{TMP+1}')
    for k in range(8): sm.append(f'v_fma_f32 v{SC+k}, v{SC+k}, v{TMP+1}, -v{TMP+2}')
    for k in range(8): sm.append(f'v_exp_f32 v{SC+k}, v{SC+k}')
    sm.append('@issue')
    sm.append(f'v_add_f32 v{LB}, v{SC}, v{SC+1}')
    for k in range(2, 8): sm.append(f'v_add_f32 v{LB}, v{LB}, v{SC+k}')
    for k in range(8): sm.append(f'v_mov_b32 v{TMP+k}, v{SC+k}')
    for k in range(8): sm.append(f'v_permlane32_swap_b32 v{SC+k}, v{TMP+k}')
    for k in range(8): sm.append(f'v_cvt_pk_bf16_f32 v{SC+k}, v{SC+k}, v{TMP+k}')
    sm.append('@issue')
    sm += wave_reduce('v_add_f32', LB, TMP)
    sm.append(f'ds_write2_b32 v{LA}, v{RMAX}, v{LB} offset0:{ML//4 - 1024} offset1:{ML//4 - 1024 + 4}' if False else f'v_add_u32 v{TMP}, {ML}, v{LA}')
    sm.append(f'ds_write2_b32 v{TMP}, v{RMAX}, v{LB} offset0:0 offset1:4')
    sm.append(f'v_readlane_b32 s64, v{SC}, {rev5(0)}')
    sm.append(f'v_readlane_b32 s65, v{SC}, {rev5(1)}')
    for k in range(8): sm.append(f'v_mov_b32 v{ACC+k}, 0')
    for r in range(4): sm.append(f'v_perm_b32 v{S0+r}, s64, s64, v{SEL+r}')
    sm.append(f'v_mov_b32 v{LB}, 1'); sm.append(f'v_mov_b32 v{RMAX}, 0')
    for o in sm:
        if o == '@issue':
            if st['issued'] < 256 + LV: issue()
        else: a(o)
    while st['issued'] < 256 + LV: issue()
    if not CS: stamp(5)
    a('s_mov_b32 s59, 0')
    a.label('L_vloop')
    st['landed'] = st['issued'] - 1 - WM
    for i in range(32):
        j = i + 2
        assert st['landed'] >= 256 + i
        a(f'v_readlane_b32 s{64 + (i & 1)}, v{SC + (1 if j >= 32 else 0)}, {rev5(j & 31)}')
        sp = 64 + ((i + 1) & 1)
        for r in range(4): a(f'v_perm_b32 v{S0 + 4*((i+1)&1) + r}, s{sp}, s{sp}, v{SEL+r}')
        ac = ACC + 4 * (i & 1)
        a(f'v_mfma_f32_16x16x32_bf16 {vr(ac)}, {vr(S0 + 4*(i&1))}, {vr(slot_reg(256 + i))}, {vr(ac)}')
        sample(i)
        if i == 26: a(f'ds_read_b32 v{CF}, v{LA} offset:{COEF}')
        if i == 31:
            a('s_add_u32 s59, s59, 1')
            a('s_cmp_lt_u32 s59, 8')
            a('s_cbranch_scc0 L_vdone')
            shift_sc()
            checkpoint()
        issue()
    a('s_branch L_vloop')
    a.label('L_vdone')
    a('s_waitcnt lgkmcnt(0)')
    a(f'v_readfirstlane_b32 s59, v{CF}')
    for k in range(4): a(f'v_add_f32 v{ACC+k}, v{ACC+k}, v{ACC+4+k}')
    a('s_cmp_eq_u32 s59, -1')
    a('s_cbranch_scc1 L_coefwait')
    a.label('L_coefok')
    for k in range(4): a(f'v_mul_f32 v{ACC+k}, v{CF}, v{ACC+k}')
    a(f'ds_write_b128 v{OA}, {vr(ACC)} offset:{OP}')
    a('s_mov_b64 exec, 1')
    a(f'ds_add_rtn_u32 v{LB}, v{RMAX}, v{LB} offset:{CNT}')
    a('s_mov_b64 exec, -1')
    for w in range(4): a(f'ds_read_b128 {vr(XR+4*w)}, v1 offset:{OP+1024*w}')
    a('s_waitcnt lgkmcnt(4)')
    a(f'v_readfirstlane_b32 s59, v{LB}')
    a('s_cmp_lg_u32 s59, 3')
    a('s_cbranch_scc1 L_sdone')
    a('s_waitcnt lgkmcnt(2)')
    for k in range(4): a(f'v_add_f32 v{XR+k}, v{XR+k}, v{XR+4+k}')
    a('s_waitcnt lgkmcnt(0)')
    for k in range(4): a(f'v_add_f32 v{XR+8+k}, v{XR+8+k}, v{XR+12+k}')
    for k in range(4): a(f'v_add_f32 v{XR+k}, v{XR+k}, v{XR+8+k}')
    a(f'v_cvt_pk_bf16_f32 v{XR}, v{XR}, v{XR+1}')
    a(f'v_cvt_pk_bf16_f32 v{XR+1}, v{XR+2}, v{XR+3}')
    a(f'v_min_u32 v{XR}, -2, v{XR}'); a(f'v_min_u32 v{XR+1}, -2, v{XR+1}')
    a(f'buffer_store_dwordx2 {vr(XR, 2)}, v{OG}, s[48:51], 0 offen sc1')
    if DBG:
        a('s_memrealtime s[86:87]'); a('s_cmp_lg_u32 s37, 5'); a('s_cbranch_scc1 L_sdone')
        a('s_waitcnt lgkmcnt(0)'); a('s_sub_u32 s86, s86, s84'); a('v_mov_b32 v200, s86'); a('s_lshl_b32 s86, s34, 2'); a('v_mov_b32 v201, s86')
        a('global_store_dword v201, v200, s[30:31] offset:32')
    a.label('L_sdone')
    if not CS: stamp(6)
    dump_stamps(200)
    a('s_endpgm')
    a.label('L_coefwait')
    a('s_mov_b32 s70, 0')
    a.label('L_coefloop')
    a(f'ds_read_b32 v{CF}, v{LA} offset:{COEF}')
    a('s_add_u32 s70, s70, 1'); a(f's_cmp_gt_u32 s70, {SPIN*8}'); a('s_cbranch_scc1 L_coefok')
    a('s_waitcnt lgkmcnt(0)')
    a(f'v_readfirstlane_b32 s59, v{CF}')
    a('s_cmp_eq_u32 s59, -1')
    a('s_cbranch_scc1 L_coefloop')
    a('s_branch L_coefok')

    a.label('L_helper')
    a('s_mov_b32 s62, 0x05040100'); a('s_mov_b32 s63, 0x07060302')
    a('v_and_b32 v2, 15, v0'); a('v_lshrrev_b32 v3, 4, v0')
    a('s_cmp_eq_u32 s3, 5'); a('s_cbranch_scc1 L_w5')
    if WH: a('s_cmp_gt_u32 s3, 5'); a('s_cbranch_scc1 L_w7')

    def xrow(dst, t):
        a(f'v_lshrrev_b32 v{t}, 2, v2'); a(f'v_lshlrev_b32 v{t}, 1, v{t}'); a(f'v_and_b32 v{dst}, 1, v2'); a(f'v_add_u32 v{dst}, v{dst}, v{t}')
        a(f'v_mul_u32_u24 v{dst}, 896, v{dst}'); a(f'v_lshlrev_b32 v{t}, 4, v3'); a(f'v_add_u32 v{dst}, v{dst}, v{t}')

    def polln(label, srdr, va, offs, D, M0=64, first=None):
        n = len(offs)
        if first is not None:
            for t in range(n):
                a(f'buffer_load_dwordx4 {vr(D+4*t)}, v{va}, {srdr}, {offs[t]}{first}')
            a(f's_branch {label}_w')
        a.label(label)
        for t in range(n):
            a(f's_mov_b64 exec, s[{M0+2*t}:{M0+1+2*t}]')
            a(f'buffer_load_dwordx4 {vr(D+4*t)}, v{va}, {srdr}, {offs[t]} sc1')
        if first is not None: a.label(label + '_w')
        a('s_add_u32 s54, s54, 1')
        a('s_waitcnt vmcnt(0)')
        for t in range(n):
            a(f's_mov_b64 exec, s[{M0+2*t}:{M0+1+2*t}]')
            tagcheck(D + 4 * t, 8, M0 + 2 * t)
        a('s_mov_b64 exec, -1')
        a(f's_or_b64 s[80:81], s[{M0}:{M0+1}], s[{M0+2}:{M0+3}]')
        for t in range(2, n): a(f's_or_b64 s[80:81], s[80:81], s[{M0+2*t}:{M0+1+2*t}]')
        a(f's_cmp_gt_u32 s54, {SPIN}'); a('s_cselect_b64 s[80:81], 0, s[80:81]')
        a('s_cmp_lg_u64 s[80:81], 0')
        a(f's_cbranch_scc1 {label}')

    RAW = 40; XA = 152; BT = 180; AC = 24
    a('s_sub_u32 s56, s2, 16')
    a('s_and_b32 s57, s56, 1'); a('s_lshr_b32 s56, s56, 1')
    a('s_sub_u32 s58, s56, 64')
    a('s_lshr_b32 s59, s58, 1')
    a('s_movk_i32 s64, 3584'); a('s_movk_i32 s66, 256')
    a('s_cmp_lt_u32 s56, 64')
    a('s_cselect_b32 s64, 8192, s64')
    a('s_cselect_b32 s66, 32768, s66')
    a('s_cselect_b32 s59, s56, s59'); a('s_lshl_b32 s59, s59, 7')
    a('s_mul_i32 s65, s64, 25')
    a('s_mul_i32 s60, s64, 224'); a('s_mul_i32 s60, s60, s57'); a('s_add_u32 s59, s59, s60')
    a('s_mul_i32 s67, s64, 223'); a('s_add_u32 s67, s67, 128')
    a('s_lshl_b32 s60, s64, 3'); a('v_mul_u32_u24 v1, s60, v3'); a('v_lshlrev_b32 v9, 3, v2'); a('v_add_u32 v1, v1, v9')
    xrow(10, 9)
    a('s_mul_i32 s60, s57, 448')
    a('s_lshr_b32 s68, s56, 2'); a('s_lshl_b32 s68, s68, 11'); a('s_and_b32 s69, s56, 3'); a('s_lshl_b32 s69, s69, 8'); a('s_add_u32 s68, s68, s69')
    a('s_lshl_b32 s69, s57, 10'); a('s_add_u32 s68, s68, s69'); a(f's_add_u32 s68, s68, {WS_Q}')
    a('s_lshl_b32 s70, s58, 12'); a('s_lshl_b32 s69, s57, 11'); a('s_add_u32 s70, s70, s69'); a(f's_add_u32 s70, s70, {WS_G}')
    a('s_cmp_lt_u32 s56, 64'); a('s_cselect_b32 s68, s68, s70')
    a('s_mov_b32 s61, 0')
    a('s_waitcnt lgkmcnt(0)')
    wsb()
    a(f's_load_dword s4, s[32:33], {WS_EP}')
    a('s_cmp_lt_u32 s2, 16'); a('s_cbranch_scc1 L_nopiece')
    a('s_bitcmp1_b32 s58, 0')
    a('s_cselect_b32 s40, s22, s20'); a('s_cselect_b32 s41, s23, s21')
    a('s_cmp_lt_u32 s56, 64')
    a('s_cselect_b32 s40, s14, s40'); a('s_cselect_b32 s41, s15, s41')
    srd(40, 40, 's59', '0' if noWQ else 's67')
    srd(44, 8, None, 7168)
    for t in range(7):
        a(f'buffer_load_dwordx4 {vr(XA+4*t)}, v10, s[44:47], s60 offen' + (f' offset:{64*t}' if t else ''))
        for j in range(8):
            a(f'buffer_load_dwordx2 {vr(RAW+16*t+2*j, 2)}, v1, s[40:43], s61 offen' + WP_)
            if not (t == 6 and j == 7): a(f's_add_u32 s61, s61, s{64 if j < 7 else 65}')
    a('s_mul_i32 s67, s66, 7'); a('s_add_u32 s67, s67, 256')
    srd(48, 32, 's68', 's67')
    a('s_lshl_b32 s60, s66, 1'); a('v_mul_u32_u24 v1, s60, v3'); a('v_lshlrev_b32 v9, 4, v2'); a('v_add_u32 v1, v1, v9')
    a('s_waitcnt lgkmcnt(0)')
    tag_setup()
    for t in range(7):
        a(f's_waitcnt vmcnt({9*(6-t)})')
        transpose(RAW + 16 * t, BT + 16 * (t & 1))
        for cc in range(4):
            a(f'v_mfma_f32_16x16x32_bf16 {vr(AC+4*cc)}, {vr(XA+4*t)}, {vr(BT+16*(t&1)+4*cc)}, ' + ('0' if t == 0 else vr(AC+4*cc)))
    for i in range(2):
        tagit(RAW + 4 * i, [AC + 4 * cc + i for cc in range(4)])
        a(f'buffer_store_dwordx4 {vr(RAW+4*i)}, v1, s[48:51], ' + ('0' if i == 0 else 's66') + ' offen sc1')
    stamp(1)
    a('s_cmp_eq_u32 s34, 7')
    a('s_cbranch_scc1 L_w4_done')
    a('s_branch L_w4b')
    a.label('L_nopiece')
    a('s_waitcnt lgkmcnt(0)')
    tag_setup()
    a.label('L_w4b')
    a('s_barrier')
    stamp(2)
    WF = 104; RD = 168; DF = 200; GU = 40; FR = 232
    a(f's_mul_i32 s58, s37, {128*896}'); a('s_lshl_b32 s59, s34, 7'); a('s_add_u32 s58, s58, s59')
    srd(40, 16, 's58', 0 if noWO else 127 * 896 + 128)
    a(f's_mul_i32 s58, s37, {64*896}'); a('s_add_u32 s58, s58, s59')
    a('s_cmp_lt_u32 s37, 28'); a(f's_cselect_b32 s60, {63*896+128}, 0'); a('s_cselect_b32 s58, s58, 0')
    srd(44, 24, 's58', 's60')
    a(f'v_mul_u32_u24 v1, {8*896}, v3'); a('v_lshlrev_b32 v9, 3, v2'); a('v_add_u32 v1, v1, v9')
    a('s_mov_b32 s59, 0')
    for t in range(4):
        for j in range(8):
            imm = (j & 3) * 896
            a(f'buffer_load_dwordx2 {vr(RAW+16*t+2*j, 2)}, v1, s[40:43], s59 offen' + (f' offset:{imm}' if imm else '') + WP_)
            if t < 2: a(f'buffer_load_dwordx2 {vr(RD+16*t+2*j, 2)}, v1, s[44:47], s59 offen' + (f' offset:{imm}' if imm else '') + WP_)
            if j == 3: a(f's_add_u32 s59, s59, {4*896}')
            if j == 7 and t < 3: a(f's_add_u32 s59, s59, {28*896}')
    a('s_lshl_b32 s58, s37, 13'); a(f's_add_u32 s58, s58, {WS_G}')
    srd(48, 32, 's58', 8192)
    a('v_lshlrev_b32 v10, 4, v0')
    for k in range(16): a(f'v_mov_b32 v{FR+k}, 0')
    for t in range(4):
        a(f's_waitcnt vmcnt({[32, 16, 8, 0][t]})')
        transpose(RAW + 16 * t, WF + 16 * t)
        if t < 2: transpose(RD + 16 * t, DF + 16 * t)
    a('s_cmp_ge_u32 s37, 28'); a('s_cbranch_scc1 L_noffn')
    if noFFN: a('s_branch L_noffn')
    for t in range(8): a(f's_mov_b64 s[{64+2*t}:{65+2*t}], -1')
    a('s_mov_b32 s54, 0'); a('s_mov_b32 s59, 4096')
    polln('L_gupoll', 's[48:51]', 10, [('s59' if t >= 4 else '0') + ' offen' + (f' offset:{1024*(t&3)}' if t & 3 else '') for t in range(8)], GU, first=GP_)
    for k in range(8): a(f'v_add_f32 v{16+k}, v{GU+k}, v{GU+8+k}')
    for k in range(8): a(f'v_add_f32 v{24+k}, v{GU+16+k}, v{GU+24+k}')
    rne(16, 16, 16, 32)
    for k in range(8): a(f'v_mul_f32 v{32+k}, {LOG2E ^ 0x80000000:#x}, v{16+k}')
    for k in range(8): a(f'v_exp_f32 v{32+k}, v{32+k}')
    for k in range(8): a(f'v_add_f32 v{32+k}, 1.0, v{32+k}')
    for k in range(8): a(f'v_rcp_f32 v{32+k}, v{32+k}')
    for k in range(8): a(f'v_mul_f32 v{16+k}, v{16+k}, v{32+k}')
    rne(16, 16, 8, 32)
    for k in range(8): a(f'v_mul_f32 v{16+k}, v{16+k}, v{24+k}')
    for k in range(4): a(f'v_cvt_pk_bf16_f32 v{16+k}, v{16+2*k}, v{17+2*k}')
    a(f'v_mul_u32_u24 v9, {HBS}, v3'); a('v_lshlrev_b32 v8, 3, v2'); a('v_add_u32 v9, v9, v8')
    a(f'ds_write_b64 v9, v[16:17] offset:{HB}'); a(f'ds_write_b64 v9, v[18:19] offset:{HB+4*HBS}')
    a('v_lshrrev_b32 v8, 1, v2'); a(f'v_mul_u32_u24 v9, {HBS}, v8'); a('v_and_b32 v8, 1, v2'); a('v_lshlrev_b32 v8, 6, v8'); a('v_add_u32 v9, v9, v8')
    a('v_lshlrev_b32 v8, 4, v3'); a('v_add_u32 v9, v9, v8')
    a(f'ds_read_b128 v[16:19], v9 offset:{HB}')
    a('s_waitcnt lgkmcnt(0)')
    for t in range(2):
        for cc in range(4):
            a(f'v_mfma_f32_16x16x32_bf16 {vr((FR if t == 0 else 40)+4*cc)}, v[16:19], {vr(DF+16*t+4*cc)}, 0')
    for cc in range(4):
        for r in (1, 3): a(f'v_mov_b32 v{FR+4*cc+r}, v{40+4*cc+r}')
    a.label('L_noffn')
    a('s_lshl_b32 s58, s35, 13'); a('s_lshl_b32 s59, s36, 8'); a('s_add_u32 s58, s58, s59'); a(f's_add_u32 s58, s58, {WS_O}')
    srd(44, 32, 's58', 15 * 512 + 256)
    a('s_mul_i32 s58, s37, 1792'); a('s_lshl_b32 s59, s34, 8'); a('s_add_u32 s58, s58, s59'); a(f's_add_u32 s58, s58, {WS_Y}')
    srd(48, 32, 's58', 0)
    a(f'v_mul_u32_u24 v9, {64*1792}, v3'); a('v_lshlrev_b32 v8, 4, v2'); a('v_add_u32 v9, v9, v8')
    a('v_lshlrev_b32 v1, 9, v2'); a('v_lshlrev_b32 v8, 4, v3'); a('v_add_u32 v1, v1, v8')
    a('v_lshlrev_b32 v10, 3, v3')
    a(f's_mov_b32 s59, {32*1792}')
    AF = 40; PA = 56; YR = 72
    a('s_mov_b32 s61, 0')
    for t in range(4): a(f's_mov_b64 s[{64+2*t}:{65+2*t}], 0')
    a.label('L_proj')
    a('s_mov_b32 s72, 0')
    a(f'ds_read_b64 v[12:13], v10 offset:{GMV}')
    a.label('L_ppoll')
    for t in range(4):
        a(f's_mov_b64 exec, s[{64+2*t}:{65+2*t}]')
        a(f'buffer_load_dwordx4 {vr(AF+4*t)}, v1, s[44:47], 0 offen' + (f' offset:{64*t}' if t else '') + ' sc1')
    a('s_mov_b64 exec, -1')
    a('s_add_u32 s72, s72, 1')
    a('s_waitcnt lgkmcnt(0)')
    for k in range(16): a(f'v_mul_f32 v{PA+k}, v{12+((k>>1)&1)}, v{FR+k}')
    a('s_waitcnt vmcnt(0)')
    for t in range(4):
        b = AF + 4 * t
        a(f's_mov_b64 exec, s[{64+2*t}:{65+2*t}]')
        a(f'v_max3_u32 v8, v{b}, v{b+1}, v{b+2}'); a(f'v_max_u32 v8, v8, v{b+3}')
        a(f'v_cmp_eq_u32_e64 s[{64+2*t}:{65+2*t}], -1, v8')
    a('s_mov_b64 exec, -1')
    a('s_or_b64 s[74:75], s[64:65], s[66:67]'); a('s_or_b64 s[76:77], s[68:69], s[70:71]'); a('s_or_b64 s[74:75], s[74:75], s[76:77]')
    a(f's_cmp_gt_u32 s72, {SPIN}'); a('s_cselect_b64 s[74:75], 0, s[74:75]')
    a('s_cmp_lg_u64 s[74:75], 0')
    a('s_cbranch_scc1 L_ppoll')
    for t in range(4):
        for cc in range(4):
            a(f'v_mfma_f32_16x16x32_bf16 {vr(PA+4*cc)}, {vr(AF+4*t)}, {vr(WF+16*t+4*cc)}, {vr(PA+4*cc)}')
    for i in range(2):
        for cc in range(4): a(f'v_add_f32 v{YR+8+cc}, v{PA+4*cc+2*i}, v{PA+4*cc+2*i+1}')
        tagit(YR + 4 * i, [YR + 8 + cc for cc in range(4)])
        a(f'buffer_store_dwordx4 {vr(YR+4*i)}, v9, s[48:51], ' + ('0' if i == 0 else 's59') + ' offen sc1')
    a('s_cmp_eq_u32 s61, 1')
    a('s_cbranch_scc1 L_w4_done')
    a('s_mov_b32 s61, 1')
    a(f's_mov_b32 s50, {7*32*1792 + 256}')
    for t in range(4): a(f's_mov_b64 s[{64+2*t}:{65+2*t}], -1')
    stamp(3)
    a('s_barrier')
    stamp(4)
    a('s_branch L_proj')
    a.label('L_w4_done')
    stamp(6)
    dump_stamps(40)
    a('s_endpgm')

    a.label('L_w5')
    a('v_mov_b32 v8, -1'); a('v_mov_b32 v9, -1'); a('v_mov_b32 v10, -1'); a('v_mov_b32 v11, -1'); a('v_mov_b32 v12, 0')
    a(f'ds_write_b128 v12, v[8:11] offset:{ML}'); a(f'ds_write_b128 v12, v[8:11] offset:{ML+16}'); a(f'ds_write_b128 v12, v[8:11] offset:{COEF}')
    a(f'ds_write_b32 v12, v12 offset:{CNT}')
    if WH:
        a('v_mov_b32 v13, 0'); a('v_mov_b32 v14, 0'); a('v_mov_b32 v15, 0')
        a(f'ds_write_b128 v12, v[12:15] offset:{PROG}'); a(f'ds_write_b128 v12, v[12:15] offset:{MODE}')
    a('s_lshl_b32 s59, s35, 13'); a('s_lshl_b32 s60, s39, 9'); a('s_add_u32 s59, s59, s60'); a(f's_add_u32 s59, s59, {WS_O}')
    a('s_lshl_b32 s58, s34, 15'); a('s_lshl_b32 s60, s35, 11'); a('s_add_u32 s58, s58, s60'); a(f's_add_u32 s58, s58, {WS_Q}')
    a('v_lshlrev_b32 v1, 4, v0'); a('v_lshlrev_b32 v13, 3, v0')
    a('s_mul_i32 s57, s34, 896')
    a('s_waitcnt lgkmcnt(0)')
    wsb()
    a(f's_load_dword s4, s[32:33], {WS_EP}')
    srd(48, 32, 's59', 512)
    a('buffer_store_dwordx2 v[8:9], v13, s[48:51], 0 offen sc1')
    srd(40, 32, 's58', 2048)
    srd(44, 8, 's57', 896)
    srd(48, 26, None, 896)
    a('buffer_load_dwordx4 v[40:43], v1, s[44:47], 0 offen')
    a('buffer_load_dwordx4 v[44:47], v1, s[48:51], 0 offen')
    for t in range(2): a(f's_mov_b64 s[{64+2*t}:{65+2*t}], -1')
    a('s_mov_b32 s54, 0')
    a('s_waitcnt lgkmcnt(0)')
    tag_setup()
    a('s_waitcnt vmcnt(0)')
    polln('L_qpoll', 's[40:43]', 1, ['0 offen', '0 offen offset:1024'], 16)
    for k in range(4): a(f'v_add_f32 v{16+k}, v{16+k}, v{20+k}')
    a('v_cvt_pk_bf16_f32 v16, v16, v17'); a('v_cvt_pk_bf16_f32 v17, v18, v19')
    a(f'ds_write_b64 v13, v[16:17] offset:{QB}')
    a('s_waitcnt lgkmcnt(0)')
    stamp(1)
    a('s_barrier')
    for k in range(4):
        a(f'v_lshlrev_b32 v{16+2*k}, 16, v{40+k}'); a(f'v_and_b32 v{17+2*k}, 0xffff0000, v{40+k}')
        a(f'v_lshlrev_b32 v{24+2*k}, 16, v{44+k}'); a(f'v_and_b32 v{25+2*k}, 0xffff0000, v{44+k}')
    for k in range(8): a(f'v_mul_f32 v{16+k}, v{16+k}, v{24+k}')
    rne(16, 16, 8, 24)
    for k in range(1, 8): a(f'v_add_f32 v16, v16, v{16+k}')
    for o in wave_reduce('v_add_f32', 16, 17): a(o)
    rne(16, 16, 2, 24)
    a(f'v_mul_f32 v16, {LOG2E ^ 0x80000000:#x}, v16'); a('v_exp_f32 v16, v16'); a('v_add_f32 v16, 1.0, v16'); a('v_rcp_f32 v16, v16')
    rne(16, 16, 2, 24)
    a('v_sub_f32 v18, 1.0, v16')
    rne(18, 18, 2, 24)
    GV = 60; GM = 61
    a(f'v_mov_b32 v{GV}, v16'); a(f'v_lshrrev_b32 v{GM}, 16, v18')
    a('s_lshl_b32 s58, s35, 8'); a(f's_add_u32 s58, s58, {WS_REC}')
    srd(40, 32, 's58', 256)
    a('s_lshl_b32 s57, s39, 4')
    a(f's_mov_b32 s61, {CSC:#x}')
    a('s_mov_b32 s72, 0')
    a.label('L_pollml')
    a(f'ds_read_b128 v[16:19], v12 offset:{ML}'); a(f'ds_read_b128 v[20:23], v12 offset:{ML+16}')
    a('s_add_u32 s72, s72, 1'); a(f's_cmp_gt_u32 s72, {SPIN*8}'); a('s_cbranch_scc1 L_pollml_x')
    a('s_waitcnt lgkmcnt(0)')
    a('v_max3_u32 v24, v16, v17, v18'); a('v_max3_u32 v24, v24, v19, v20'); a('v_max3_u32 v24, v24, v21, v22'); a('v_max_u32 v24, v24, v23')
    a('v_readfirstlane_b32 s56, v24')
    a('s_cmp_eq_u32 s56, -1'); a('s_cbranch_scc1 L_pollml')
    a.label('L_pollml_x')
    a('s_waitcnt lgkmcnt(0)')
    a('v_max_f32 v24, v16, v17'); a('v_max3_f32 v24, v24, v18, v19')
    for k in range(4): a(f'v_sub_f32 v{28+k}, v{16+k}, v24')
    for k in range(4): a(f'v_mul_f32 v{28+k}, s61, v{28+k}')
    for k in range(4): a(f'v_exp_f32 v{28+k}, v{28+k}')
    a('v_mul_f32 v25, v28, v20')
    for k in range(1, 4): a(f'v_fmac_f32 v25, v{28+k}, v{20+k}')
    a(f'v_or_b32 v32, v24, v{GM}'); a('v_mov_b32 v33, v25'); a(f'v_mov_b32 v34, v{TG}'); a(f'v_mov_b32 v35, v{TG}')
    a('s_mov_b64 exec, 1')
    a('buffer_store_dwordx4 v[32:35], v12, s[40:43], s57 offen sc1')
    a('s_mov_b64 exec, -1')
    stamp(2)
    a('v_lshlrev_b32 v14, 4, v2')
    a('v_lshrrev_b32 v15, 1, v2'); a('v_lshlrev_b32 v15, 2, v15')
    a('s_mov_b32 s72, 0')
    a('s_mov_b64 s[64:65], 0xffff')
    a.label('L_recpoll')
    a('s_mov_b64 exec, s[64:65]')
    a('buffer_load_dwordx4 v[36:39], v14, s[40:43], 0 offen sc1')
    a('s_add_u32 s72, s72, 1')
    a('s_waitcnt vmcnt(0)')
    a(f'v_xor_b32 v8, v38, v{TG}'); a(f'v_xor_b32 v9, v39, v{TG}'); a('v_or_b32 v8, v8, v9')
    a('v_cmp_ne_u32_e64 s[64:65], 0, v8')
    a('s_mov_b64 exec, -1')
    a(f's_cmp_gt_u32 s72, {SPIN}'); a('s_cselect_b64 s[64:65], 0, s[64:65]')
    a('s_cmp_lg_u64 s[64:65], 0')
    a('s_cbranch_scc1 L_recpoll')
    a('s_xor_b32 s56, s39, 1')
    a('v_readlane_b32 s58, v36, s56'); a('v_readlane_b32 s59, v37, s56')
    a('v_lshlrev_b32 v8, 16, v36')
    a('s_mov_b64 exec, 0xffff')
    a(f'ds_write_b32 v15, v8 offset:{GMV}')
    a('s_mov_b64 exec, -1')
    a('s_and_b32 s58, s58, 0xffff0000')
    a('v_max_f32 v26, s58, v24')
    a('v_sub_f32 v27, s58, v26'); a('v_sub_f32 v24, v24, v26')
    a('v_mul_f32 v27, s61, v27'); a('v_mul_f32 v24, s61, v24')
    a('v_exp_f32 v27, v27'); a('v_exp_f32 v24, v24')
    a('v_mul_f32 v27, s59, v27'); a('v_fmac_f32 v27, v24, v33')
    a('v_rcp_f32 v27, v27')
    a('v_mul_f32 v27, v27, v24')
    a(f'v_mul_f32 v27, v{GV}, v27')
    for k in range(4): a(f'v_mul_f32 v{28+k}, v27, v{28+k}')
    for k in range(4): a(f'v_min_u32 v{28+k}, -2, v{28+k}')
    a(f'ds_write_b128 v12, v[28:31] offset:{COEF}')
    a('s_waitcnt lgkmcnt(0)')
    stamp(3)
    a('s_cmp_lt_u32 s37, 14')
    a('s_cbranch_scc1 L_fin')
    dump_stamps(40)
    a('s_endpgm')
    a.label('L_fin')
    a(f's_mul_i32 s58, s34, {32*1792}'); a(f's_add_u32 s58, s58, {WS_Y}')
    srd(40, 32, 's58', 32 * 1792)
    a('v_lshrrev_b32 v16, 3, v0'); a('v_mul_u32_u24 v1, 1792, v16'); a('v_and_b32 v16, 7, v0'); a('v_lshlrev_b32 v16, 4, v16'); a('v_add_u32 v1, v1, v16')
    a('s_lshl_b32 s59, s37, 7'); a('v_add_u32 v1, s59, v1')
    for u in range(1, 4): a(f's_mov_b32 s{75+u}, {u*8*1792}')
    a('s_mul_i32 s59, s34, 896')
    srd(44, 28, 's59', 0)
    a('s_lshl_b32 s59, s37, 6'); a('v_add_u32 v13, s59, v13')
    a('v_cmp_gt_u32 vcc, 8, v0'); a(f'v_mov_b32 v16, {OOB:#x}'); a('v_cndmask_b32 v13, v16, v13, vcc')
    a('s_mov_b32 s61, 0')
    for t in range(4): a(f's_mov_b64 s[{64+2*t}:{65+2*t}], 0')
    a.label('L_gather')
    a('s_mov_b32 s54, 0')
    polln('L_gpoll', 's[40:43]', 1, ['0 offen', 's76 offen', 's77 offen', 's78 offen'], 16)
    for k in range(4): a(f'v_add_f32 v{16+k}, v{16+k}, v{20+k}')
    for k in range(4): a(f'v_add_f32 v{24+k}, v{24+k}, v{28+k}')
    for k in range(4): a(f'v_add_f32 v{48+k}, v{16+k}, v{24+k}')
    for k in range(4): a(f'v_add_f32_dpp v{48+k}, v{48+k}, v{48+k} row_ror:8 row_mask:0xf bank_mask:0xf')
    for sw in ('v_permlane16_swap_b32', 'v_permlane32_swap_b32'):
        for k in range(4): a(f'v_mov_b32 v{52+k}, v{48+k}')
        for k in range(4): a(f'{sw} v{48+k}, v{52+k}')
        for k in range(4): a(f'v_add_f32 v{48+k}, v{48+k}, v{52+k}')
    a('v_cvt_pk_bf16_f32 v52, v48, v49'); a('v_cvt_pk_bf16_f32 v53, v50, v51')
    a('buffer_store_dwordx2 v[52:53], v13, s[44:47], 0 offen')
    a('s_cmp_eq_u32 s61, 1')
    a('s_cbranch_scc1 L_fin_done')
    a('s_mov_b32 s61, 1')
    a('s_mov_b32 s46, 896')
    for t in range(4): a(f's_mov_b64 s[{64+2*t}:{65+2*t}], -1')
    stamp(4)
    a('s_barrier')
    if B3: a('s_barrier')
    stamp(5)
    a('s_branch L_gather')
    a.label('L_fin_done')
    stamp(6)
    if DBG:
        a('s_memrealtime s[86:87]'); a('s_cmp_lg_u32 s37, 0'); a('s_cbranch_scc1 L_nodbg')
        a('s_waitcnt lgkmcnt(0)'); a('s_sub_u32 s86, s86, s84'); a('v_mov_b32 v70, s86'); a('s_lshl_b32 s86, s34, 2'); a('v_mov_b32 v71, s86')
        a('global_store_dword v71, v70, s[30:31]')
        a.label('L_nodbg')
    a('s_cmp_lg_u32 s2, 0')
    a('s_cbranch_scc1 L_noep')
    a('s_mov_b64 exec, 1')
    a(f'global_store_dword v12, v{TG}, s[32:33] offset:{WS_EP}')
    a('s_mov_b64 exec, -1')
    a.label('L_noep')
    dump_stamps(80)
    a('s_endpgm')

    if WH:
        a.label('L_w7')
        a('v_mov_b32 v1, 0'); a('v_mov_b32 v2, 1')
        a('s_mov_b64 exec, 1')
        a(f's_mov_b32 s56, {TH}'); a('s_mov_b32 s57, 0'); a('s_mov_b32 s58, 0'); a('s_mov_b32 s72, 0')
        a('s_waitcnt lgkmcnt(0)')
        wsb()
        a(f's_lshr_b32 s59, s2, {GS}'); a('s_lshl_b32 s59, s59, 8'); a(f's_add_u32 s59, s59, {WS_CTR}'); a('v_mov_b32 v8, s59')
        a(f's_and_b32 s59, s2, {(1<<GS)-1}')
        a('s_cmp_lg_u32 s59, 0'); a('s_cbranch_scc1 L_w7b')
        a(f'global_store_dword v8, v1, s[32:33] sc1')
        a.label('L_w7b')
        a('s_barrier')
        a.label('L_w7poll')
        a(f'ds_read_b128 v[4:7], v1 offset:{PROG}')
        a('s_add_u32 s72, s72, 1'); a(f's_cmp_gt_u32 s72, {SPIN*8}'); a('s_cbranch_scc1 L_end')
        a('s_waitcnt lgkmcnt(0)')
        a('v_min_u32 v4, v4, v5'); a('v_min3_u32 v4, v4, v6, v7')
        a('v_readfirstlane_b32 s59, v4')
        a('s_cmp_lt_u32 s59, s57'); a('s_cbranch_scc1 L_w7poll')
        a(f'global_atomic_add v3, v8, v2, s[32:33] sc0 sc1')
        a('s_add_u32 s57, s57, 32256'); a('s_add_u32 s58, s58, 1')
        a('s_waitcnt vmcnt(0)')
        a('v_cmp_le_i32 vcc, s56, v3')
        a(f's_add_u32 s56, s56, {1<<GS}')
        for k in range(4): a(f'v_cndmask_b32 v{4+k}, v1, v2, vcc')
        a(f'ds_write_b128 v1, v[4:7] offset:{MODE}')
        a(f's_cmp_lt_u32 s58, {NCK}'); a('s_cbranch_scc1 L_w7poll')
        a('s_waitcnt lgkmcnt(0)')
    a.label('L_end')
    a('s_endpgm')
    a.raw('.section .rodata,"a"'); a.raw('.p2align 6'); a.raw(f'.amdhsa_kernel {NAME}')
    a.raw('  .amdhsa_next_free_vgpr 256'); a.raw('  .amdhsa_next_free_sgpr 102'); a.raw('  .amdhsa_accum_offset 256')
    a.raw('  .amdhsa_group_segment_fixed_size 0'); a.raw('  .amdhsa_kernarg_size 104'); a.raw('  .amdhsa_user_sgpr_count 2')
    a.raw('  .amdhsa_user_sgpr_kernarg_segment_ptr 1'); a.raw('  .amdhsa_system_sgpr_workgroup_id_x 1'); a.raw('.end_amdhsa_kernel')
    return a.text()

if __name__ == '__main__':
    kw = eval('dict(' + (sys.argv[2] if len(sys.argv) > 2 else '') + ')')
    open(sys.argv[1], 'w').write(gen(**kw))
```

```python
import sys
sys.path.insert(0, 'gen')
from asmlib import Asm

NAME = 'gated_mix__mha_block_cached__swiglu_ffn__decode_kernel'
HEADER = open('gated_mix__mha_block_cached__swiglu_ffn__decode.s.ref').read().split('; Override launch')[0]

QB = 0
OP = 512
ML = 4608
COEF = 4640
CNT = 4656
PROG = 4672
MODE = 4688
GMV = 4704
HB = 4736
HBS = 144
LDS = 8192
WS_EP = 0
WS_CTR = 0x10000
WS_REC = 0x1000
WS_O = 0x20000
WS_Q = 0x80000
WS_Y = 0x100000
WS_G = 0x180000
WS_MB = 0x200000
WS_ST = 0x200000
CSC = 0x3db8aa3b
LOG2E = 0x3fb8aa3b
SPIN = 20000
OOB = 0x40000000

def rev5(i): return int(f'{i:05b}'[::-1], 2)
def vr(b, n=4): return f'v[{b}:{b+n-1}]'

def gen(W=5, LK=7, LV=9, P=54, G=1, stamps=False, PRIO=3, W0=5, noWO=False, noWQ=False, DBG=0, KP_=' nt', VP_=' nt', WP_=' nt', GP_='', WH=0, WP=5, TH=4, GS=3, NCK=15, SMP=(6, 22), WSB=0x3fc00000, B3=1, CS=0, CU=9, noFFN=False, UY=1, TV=0, VX=0, RV=0, QP=0, WC=0, CKS=1, WS_=' sc1', XB=0, XR_=16):
    NW = 7 if WH else 6
    a = Asm()
    a.raw(HEADER.rstrip('\n'))
    a.raw(f'; @launch grid=(256,1,1) block=({NW*64},1,1) lds={LDS}')
    a.raw('.amdgcn_target "amdgcn-amd-amdhsa--gfx950"')
    a.raw('.text'); a.raw(f'.globl {NAME}'); a.raw('.p2align 8'); a.raw(f'.type {NAME},@function'); a.raw(f'{NAME}:')

    def stamp(k):
        if stamps: a(f's_memrealtime s[{84+2*k}:{85+2*k}]')
    def dump_stamps(tmp):
        if not stamps: return
        a('s_waitcnt lgkmcnt(0)')
        a(f's_mul_i32 s60, s2, {NW}'); a('s_add_u32 s60, s60, s3'); a('s_lshl_b32 s60, s60, 6'); a(f's_add_u32 s60, s60, {WS_ST}')
        a(f'v_mov_b32 v{tmp}, s60')
        for k in range(16): a(f'v_mov_b32 v{tmp+2+k}, s{84+k}')
        for k in range(4): a(f'global_store_dwordx4 v{tmp}, {vr(tmp+2+4*k)}, s[52:53] offset:{16*k}')

    def wsb():
        if stamps: a('s_mov_b64 s[52:53], s[32:33]')
        if WSB: a(f's_add_u32 s32, s32, {WSB:#x}'); a('s_addc_u32 s33, s33, 0')
    def srd(d, plo, off, size):
        if off is None:
            a(f's_mov_b32 s{d}, s{plo}'); a(f's_mov_b32 s{d+1}, s{plo+1}')
        else:
            a(f's_add_u32 s{d}, s{plo}, {off}'); a(f's_addc_u32 s{d+1}, s{plo+1}, 0')
        a(f's_mov_b32 s{d+2}, {size}'); a(f's_mov_b32 s{d+3}, 0x20000')

    def sel2_ops(sel, t):
        L = [f'v_lshrrev_b32 v{t}, 5, v0', f'v_mul_u32_u24 v{t}, 0x202, v{t}', f'v_add_u32 v{t}, 0x100, v{t}',
             f'v_or_b32 v{t+1}, 0xc0c0000, v{t}', f'v_lshlrev_b32 v{t+2}, 16, v{t}', f'v_or_b32 v{t+2}, 0xc0c, v{t+2}',
             f'v_and_b32 v{t+3}, 1, v0', f'v_cmp_eq_u32 vcc, 1, v{t+3}', f'v_cndmask_b32 v{t+1}, v{t+1}, v{t+2}, vcc',
             f'v_lshrrev_b32 v{t+2}, 1, v0', f'v_xor_b32 v{t+3}, v0, v{t+2}', f'v_and_b32 v{t+3}, 8, v{t+3}',
             f'v_and_b32 v{t+2}, 3, v{t+2}', f'v_or_b32 v{t+2}, v{t+2}, v{t+3}', f'v_mov_b32 v{t+3}, 0xc0c0c0c']
        for rr in range(4):
            L += [f'v_cmp_eq_u32 vcc, {rr}, v{t+2}', f'v_cndmask_b32 v{sel+rr}, v{t+3}, v{t+1}, vcc']
        return L

    def wave_reduce(op, v, t):
        L = []
        for r in (8, 4, 2, 1):
            L.append(f'{op}_dpp v{v}, v{v}, v{v} row_ror:{r} row_mask:0xf bank_mask:0xf')
        for sw in ('v_permlane16_swap_b32', 'v_permlane32_swap_b32'):
            L += [f'v_mov_b32 v{t}, v{v}', f'{sw} v{v}, v{t}', f'{op} v{v}, v{v}, v{t}']
        return L

    def rne(dst, src, n, t):
        for k in range(0, n, 2): a(f'v_cvt_pk_bf16_f32 v{t+k//2}, v{src+k}, v{src+k+1}')
        for k in range(0, n, 2):
            a(f'v_lshlrev_b32 v{dst+k}, 16, v{t+k//2}'); a(f'v_and_b32 v{dst+k+1}, 0xffff0000, v{t+k//2}')

    def transpose(tmp, dst):
        for cc in range(4):
            for jj in range(4):
                a(f'v_perm_b32 v{dst+4*cc+jj}, v{tmp+2*(2*jj+1)+(cc>>1)}, v{tmp+2*(2*jj)+(cc>>1)}, s{62+(cc&1)}')

    TG = 4
    def tag_setup():
        a('s_add_u32 s4, s4, 0x01010101')
        a('s_mov_b32 s5, 0xff'); a('s_mov_b32 s6, 0x0c0c0400'); a('s_mov_b32 s7, 0x04000c0c')
        a(f'v_mov_b32 v{TG}, s4'); a('v_mov_b32 v11, 0x80')
        for k in range(1, 4): a(f'v_lshrrev_b32 v{TG+k}, {8*k}, v{TG}')
    def tagit(dst, srcs):
        for k in range(4): a(f'v_bfi_b32 v{dst+k}, s5, v{TG+k}, v{srcs[k]}')
    def untag(d, n):
        for k in range(n): a(f'v_bfi_b32 v{d+k}, s5, v11, v{d+k}')
    def tagcheck(d, t, mask):
        a(f'v_perm_b32 v{t}, v{d+1}, v{d}, s6'); a(f'v_perm_b32 v{t+1}, v{d+3}, v{d+2}, s7')
        a(f'v_or_b32 v{t}, v{t}, v{t+1}')
        a(f'v_cmp_ne_u32_e64 s[{mask}:{mask+1}], v{t}, v{TG}')
        a(f's_wqm_b64 s[{mask}:{mask+1}], s[{mask}:{mask+1}]')

    a('s_cmp_ge_u32 s2, 256')
    a('s_cbranch_scc1 L_end')
    a('s_load_dwordx16 s[8:23], s[0:1], 0')
    a('s_load_dwordx8 s[24:31], s[0:1], 64')
    a('s_load_dwordx2 s[32:33], s[0:1], 96')
    if stamps:
        for k in range(2, 16, 2): a(f's_mov_b64 s[{84+k}:{85+k}], 0')
    stamp(0)
    if DBG: a('s_memrealtime s[84:85]')
    a('v_lshrrev_b32 v1, 6, v0')
    a('v_and_b32 v0, 63, v0')
    a('v_readfirstlane_b32 s3, v1')
    a('s_bfe_u32 s35, s2, 0x40001'); a('s_and_b32 s36, s2, 1')
    a('s_lshr_b32 s34, s2, 5')
    a('s_and_b32 s37, s2, 31')
    a('s_lshl_b32 s39, s34, 1'); a('s_or_b32 s39, s39, s36')
    a('s_cmp_ge_u32 s3, 4')
    a('s_cbranch_scc1 L_helper')

    RING = 40; XR = RING + 128
    NX = max(P - 32, 0)
    assert XR + 4 * NX <= 256
    Q = 2; SEL = 6; SC = 10; TMP = 18; RMAX = 34; LA = 35; LB = 36; CF = 37; OA = 38; OG = 39
    S0 = 18; ACC = 26
    if PRIO: a(f's_setprio {PRIO}')
    a('v_lshlrev_b32 v1, 4, v0')
    a(f's_mul_i32 s56, s3, {G*1024}')
    a('s_mov_b32 s58, s56')
    a('s_lshl_b32 s57, s2, 20')
    a('s_waitcnt lgkmcnt(0)')
    srd(40, 10, 's57', 1 << 20)

    def slot_reg(n):
        if n < NX: return XR + 4 * n
        if P <= n < min(64, P + NX): return XR + 4 * (n - P)
        return RING + 4 * (n % 32)
    def prev_user(n):
        r = slot_reg(n)
        for m in range(n - 1, -1, -1):
            if slot_reg(m) == r: return m
        return -1
    st = {'issued': 0, 'landed': -1}
    def issue(endmode=None):
        n = st['issued']
        if WH and n >= P:
            st['lab'] = st.get('lab', 0) + 1
            a.raw(f'  s_cbranch_vccnz L_em{st["lab"]}'); a.pos += 1
            a.raw(f'  s_waitcnt vmcnt({W-1})')
            a.raw(f'L_em{st["lab"]}:')
            a(f's_waitcnt vmcnt({WH-1})'); st['landed'] = max(st['landed'], n - WH)
        elif n >= W0:
            w = WP if n < P else W
            a(f's_waitcnt vmcnt({w-1})'); st['landed'] = max(st['landed'], n - w)
        st['issued'] += 1
        srdr, so = ('s[40:43]', 's56') if n < 256 else ('s[44:47]', 's58')
        j = n % G
        imm = (j % 4) * 1024
        a(f'buffer_load_dwordx4 {vr(slot_reg(n))}, v1, {srdr}, {so} offen' + (f' offset:{imm}' if imm else '') + (KP_ if n < 256 else VP_))
        if j == G - 1: a(f's_add_u32 {so}, {so}, {4*G*1024 - (G-1)//4*4096}')
        elif j % 4 == 3: a(f's_add_u32 {so}, {so}, 4096')
    WM = max(W, WH)
    def sample(i):
        if not WH: return
        if (i & 31) in SMP: a(f'ds_read_b32 v0, v{LA} offset:{MODE}')
        if ((i - 2) & 31) in SMP: a('s_waitcnt lgkmcnt(0)'); a('v_cmp_ne_u32 vcc, 0, v0')
    def checkpoint(v=0):
        if WH or (RV and v): a(f'ds_add_u32 v{LA}, v1 offset:{PROG}')
    def ensure(n):
        if st['landed'] < n:
            a(f's_waitcnt vmcnt({st["issued"]-1-n})'); st['landed'] = n
    for i in range(W0): issue()
    srd(44, 12, 's57', 1 << 20)
    wsb()
    a('s_lshl_b32 s59, s35, 13'); a('s_lshl_b32 s60, s39, 9'); a('s_add_u32 s59, s59, s60'); a(f's_add_u32 s59, s59, {WS_O}')
    srd(48, 32, 's59', 512)
    pre = sel2_ops(SEL, TMP)
    pre += [f'v_and_b32 v{LA}, 31, v0', f'v_lshlrev_b32 v{LA}, 4, v{LA}',
            f'v_mov_b32 v{RMAX}, 0xff800000',
            's_mov_b32 s60, 0xcccccccc', 's_mov_b32 s61, 0xcccccccc', 's_mov_b32 s62, 0xaaaaaaaa', 's_mov_b32 s63, 0xaaaaaaaa',
            f'v_lshrrev_b32 v{OG}, 5, v0', f'v_lshlrev_b32 v{OG}, 8, v{OG}', f'v_and_b32 v{OA}, 15, v0', f'v_lshlrev_b32 v{OA}, 4, v{OA}',
            f'v_add_u32 v{OG}, v{OG}, v{OA}', f'v_bfe_u32 v{OA}, v0, 4, 1', f'v_lshlrev_b32 v{OA}, 3, v{OA}', f'v_add_u32 v{OG}, v{OG}, v{OA}',
            's_lshl_b32 s59, s3, 10', f'v_add_u32 v{OA}, s59, v1']
    for o in pre: a(o)
    while st['issued'] < P:
        issue()
        if QP and st['issued'] == QP: a(f'ds_write_b32 v{OA}, v{RMAX} offset:{OP}')
        if CS == 2 and st['issued'] in (6, 12, 24, 40): stamp(4 + (6, 12, 24, 40).index(st['issued']))
    stamp(1)
    a('s_barrier')
    a(f'ds_read_b128 {vr(Q)}, v{LA} offset:{QB}')
    a('s_lshl_b32 s59, s3, 2')
    a(f'v_mov_b32 v{LA}, s59')
    stamp(2)
    a('s_mov_b64 vcc, 0')
    a('s_waitcnt lgkmcnt(0)')

    T = [TMP, TMP + 1, TMP + 2, TMP + 3]; RB = TMP + 4; RC = TMP + 5; RD0 = TMP + 6; RD1 = TMP + 7; RE0 = TMP + 8; RE1 = TMP + 9
    class KP:
        def __init__(s): s.q = []; s.since = 0
        def emit(s, o):
            a(o); s.since += 1
            if s.q and s.since >= 2:
                a(s.q.pop(0)); s.since = 0
        def flush(s):
            while s.q: a(s.q.pop(0))
        def step(s, n):
            i = n & 31
            if (i & 1) == 0:
                while s.q and any(f'v{T[i&3]}' in o.replace(',', ' ').split() or f'v{T[(i+1)&3]}' in o.replace(',', ' ').split() for o in s.q):
                    a(s.q.pop(0))
            t = T[i & 3]; k = slot_reg(n)
            for r in range(4):
                s.emit(f'v_dot2_f32_bf16 v{t}, v{k+r}, v{Q+r}, ' + ('0' if r == 0 else f'v{t}'))
            if i & 1:
                ta, tb = T[(i - 1) & 3], t
                m = [f'v_permlane16_swap_b32 v{ta}, v{tb}', f'v_add_f32 v{ta}, v{ta}, v{tb}']
                b1 = (i >> 1) & 1
                m.append(f'v_add_f32_dpp v{RB}, v{ta}, v{ta} row_ror:8 row_mask:0xf bank_mask:' + ('0xc' if b1 else '0xf'))
                if b1:
                    b2 = (i >> 2) & 1
                    m.append(f'v_add_f32_dpp v{RC}, v{RB}, v{RB} row_half_mirror row_mask:0xf bank_mask:' + ('0xa' if b2 else '0xf'))
                    if b2:
                        b3 = (i >> 3) & 1
                        m.append(f'v_add_f32_dpp v{RD1 if b3 else RD0}, v{RC}, v{RC} quad_perm:[2,3,0,1] row_mask:0xf bank_mask:0xf')
                        if b3:
                            m.append(f'v_cndmask_b32 v{RD0}, v{RD0}, v{RD1}, s[60:61]')
                            b4 = (i >> 4) & 1
                            m.append(f'v_add_f32_dpp v{RE1 if b4 else RE0}, v{RD0}, v{RD0} quad_perm:[1,0,3,2] row_mask:0xf bank_mask:0xf')
                            if b4:
                                m.append(f'v_cndmask_b32 v{RE0}, v{RE0}, v{RE1}, s[62:63]')
                                m.append(f'v_cvt_pk_bf16_f32 v{RE0}, v{RE0}, v{RE0}')
                                m.append(f'v_lshlrev_b32 v{SC+7}, 16, v{RE0}')
                                m.append(f'v_max_f32 v{RMAX}, v{RMAX}, v{SC+7}')
                s.q += m
    def shift_sc():
        for k in range(7): a(f'v_mov_b32 v{SC+k}, v{SC+k+1}')

    kp = KP()
    tot = 64 + LK - P
    for n in range(64):
        if n == 32: kp.flush(); a(f'v_mov_b32 v{SC+6}, v{SC+7}')
        if CS == 1 and n in (8, 24, 40, 56): stamp(4 + (n - 8) // 16); print('CS', n, 'issued', st['issued'])
        ensure(n)
        kp.step(n)
        if n >= 32: sample(n)
        want = max(P + min(n // CU + 1, tot), n + 1 + LK)
        while st['issued'] < want and prev_user(st['issued']) <= n:
            if n == 63: kp.flush()
            issue()
    kp.flush()
    assert st['issued'] == 64 + LK, st
    checkpoint()
    stamp(3)
    a('s_mov_b32 s59, 0')
    a.label('L_kloop')
    st['landed'] = st['issued'] - 1 - WM
    kp = KP()
    shift_sc()
    for n in range(64, 96):
        assert st['landed'] >= n
        kp.step(n)
        sample(n)
        if n == 95: kp.flush()
        issue()
    checkpoint()
    a('s_add_u32 s59, s59, 1')
    a('s_cmp_lt_u32 s59, 5')
    a('s_cbranch_scc1 L_kloop')
    st['issued'] += 128; st['landed'] += 128
    kp = KP()
    shift_sc()
    for n in range(224, 256):
        assert st['landed'] >= n
        kp.step(n)
        sample(n)
        if n < 255: issue()
    kp.flush()
    checkpoint()
    if CS in (0, 3): stamp(4)
    sm = ['@issue'] + wave_reduce('v_max_f32', RMAX, TMP)
    sm.append(f'v_mov_b32 v{TMP+1}, {CSC:#x}')
    sm.append(f'v_mul_f32 v{TMP+2}, v{RMAX}, v{TMP+1}')
    for k in range(8): sm.append(f'v_fma_f32 v{SC+k}, v{SC+k}, v{TMP+1}, -v{TMP+2}')
    for k in range(8): sm.append(f'v_exp_f32 v{SC+k}, v{SC+k}')
    sm.append('@issue')
    sm.append(f'v_add_f32 v{LB}, v{SC}, v{SC+1}')
    for k in range(2, 8): sm.append(f'v_add_f32 v{LB}, v{LB}, v{SC+k}')
    for k in range(8): sm.append(f'v_mov_b32 v{TMP+k}, v{SC+k}')
    for k in range(8): sm.append(f'v_permlane32_swap_b32 v{SC+k}, v{TMP+k}')
    for k in range(8): sm.append(f'v_cvt_pk_bf16_f32 v{SC+k}, v{SC+k}, v{TMP+k}')
    sm.append('@issue')
    sm += wave_reduce('v_add_f32', LB, TMP)
    sm.append(f'ds_write2_b32 v{LA}, v{RMAX}, v{LB} offset0:{ML//4 - 1024} offset1:{ML//4 - 1024 + 4}' if False else f'v_add_u32 v{TMP}, {ML}, v{LA}')
    sm.append(f'ds_write2_b32 v{TMP}, v{RMAX}, v{LB} offset0:0 offset1:4')
    sm.append(f'v_readlane_b32 s64, v{SC}, {rev5(0)}')
    sm.append(f'v_readlane_b32 s65, v{SC}, {rev5(1)}')
    for k in range(8): sm.append(f'v_mov_b32 v{ACC+k}, 0')
    for r in range(4): sm.append(f'v_perm_b32 v{S0+r}, s64, s64, v{SEL+r}')
    sm.append(f'v_mov_b32 v{LB}, 1'); sm.append(f'v_mov_b32 v{RMAX}, 0')
    for o in sm:
        if o == '@issue':
            if st['issued'] < 256 + LV: issue()
        else: a(o)
    while st['issued'] < 256 + LV: issue()
    if CS in (0, 3): stamp(5)
    a('s_mov_b32 s59, 0')
    a.label('L_vloop')
    st['landed'] = st['issued'] - 1 - WM
    for i in range(32):
        j = i + 2
        assert st['landed'] >= 256 + i
        if not VX & 1:
            a(f'v_readlane_b32 s{64 + (i & 1)}, v{SC + (1 if j >= 32 else 0)}, {rev5(j & 31)}')
            sp = 64 + ((i + 1) & 1)
            for r in range(4): a(f'v_perm_b32 v{S0 + 4*((i+1)&1) + r}, s{sp}, s{sp}, v{SEL+r}')
        ac = ACC + 4 * (i & 1)
        if not VX & 2: a(f'v_mfma_f32_16x16x32_bf16 {vr(ac)}, {vr(S0 + 4*(i&1))}, {vr(slot_reg(256 + i))}, {vr(ac)}')
        sample(i)
        if i == 26: a(f'ds_read_b32 v{CF}, v{LA} offset:{COEF}')
        if i == 31:
            a('s_add_u32 s59, s59, 1')
            if CS == 3:
                for q_ in (2, 4, 6):
                    a(f's_cmp_lg_u32 s59, {q_}'); a(f's_cbranch_scc1 L_vq{q_}'); stamp(q_ // 2); a.label(f'L_vq{q_}')
            a('s_cmp_lt_u32 s59, 8')
            a('s_cbranch_scc0 L_vdone')
            shift_sc()
            checkpoint(1)
        issue()
    a('s_branch L_vloop')
    a.label('L_vdone')
    if CS in (0, 3): stamp(7)
    a('s_waitcnt lgkmcnt(0)')
    a(f'v_readfirstlane_b32 s59, v{CF}')
    for k in range(4): a(f'v_add_f32 v{ACC+k}, v{ACC+k}, v{ACC+4+k}')
    a('s_cmp_eq_u32 s59, -1')
    a('s_cbranch_scc1 L_coefwait')
    a.label('L_coefok')
    for k in range(4): a(f'v_mul_f32 v{ACC+k}, v{CF}, v{ACC+k}')
    a(f'ds_write_b128 v{OA}, {vr(ACC)} offset:{OP}')
    a('s_mov_b64 exec, 1')
    a(f'ds_add_rtn_u32 v{LB}, v{RMAX}, v{LB} offset:{CNT}')
    a('s_mov_b64 exec, -1')
    for w in range(4): a(f'ds_read_b128 {vr(XR+4*w)}, v1 offset:{OP+1024*w}')
    a('s_waitcnt lgkmcnt(4)')
    a(f'v_readfirstlane_b32 s59, v{LB}')
    a('s_cmp_lg_u32 s59, 3')
    a('s_cbranch_scc1 L_sdone')
    a('s_waitcnt lgkmcnt(2)')
    for k in range(4): a(f'v_add_f32 v{XR+k}, v{XR+k}, v{XR+4+k}')
    a('s_waitcnt lgkmcnt(0)')
    for k in range(4): a(f'v_add_f32 v{XR+8+k}, v{XR+8+k}, v{XR+12+k}')
    for k in range(4): a(f'v_add_f32 v{XR+k}, v{XR+k}, v{XR+8+k}')
    a(f'v_cvt_pk_bf16_f32 v{XR}, v{XR}, v{XR+1}')
    a(f'v_cvt_pk_bf16_f32 v{XR+1}, v{XR+2}, v{XR+3}')
    a(f'v_min_u32 v{XR}, -2, v{XR}'); a(f'v_min_u32 v{XR+1}, -2, v{XR+1}')
    a(f'buffer_store_dwordx2 {vr(XR, 2)}, v{OG}, s[48:51], 0 offen sc1')
    if DBG:
        a('s_memrealtime s[86:87]'); a('s_cmp_lg_u32 s37, 5'); a('s_cbranch_scc1 L_sdone')
        a('s_waitcnt lgkmcnt(0)'); a('s_sub_u32 s86, s86, s84'); a('v_mov_b32 v200, s86'); a('s_lshl_b32 s86, s34, 2'); a('v_mov_b32 v201, s86')
        a('global_store_dword v201, v200, s[30:31] offset:32')
    a.label('L_sdone')
    if CS in (0, 3): stamp(6)
    dump_stamps(200)
    a('s_endpgm')
    a.label('L_coefwait')
    a('s_mov_b32 s70, 0')
    a.label('L_coefloop')
    a(f'ds_read_b32 v{CF}, v{LA} offset:{COEF}')
    a('s_add_u32 s70, s70, 1'); a(f's_cmp_gt_u32 s70, {SPIN*8}'); a('s_cbranch_scc1 L_coefok')
    a('s_waitcnt lgkmcnt(0)')
    a(f'v_readfirstlane_b32 s59, v{CF}')
    a('s_cmp_eq_u32 s59, -1')
    a('s_cbranch_scc1 L_coefloop')
    a('s_branch L_coefok')

    a.label('L_helper')
    a('s_mov_b32 s62, 0x05040100'); a('s_mov_b32 s63, 0x07060302')
    a('v_and_b32 v2, 15, v0'); a('v_lshrrev_b32 v3, 4, v0')
    a('s_cmp_eq_u32 s3, 5'); a('s_cbranch_scc1 L_w5')
    if WH: a('s_cmp_gt_u32 s3, 5'); a('s_cbranch_scc1 L_w7')

    def xrow(dst, t):
        a(f'v_lshrrev_b32 v{t}, 2, v2'); a(f'v_lshlrev_b32 v{t}, 1, v{t}'); a(f'v_and_b32 v{dst}, 1, v2'); a(f'v_add_u32 v{dst}, v{dst}, v{t}')
        a(f'v_mul_u32_u24 v{dst}, 896, v{dst}'); a(f'v_lshlrev_b32 v{t}, 4, v3'); a(f'v_add_u32 v{dst}, v{dst}, v{t}')

    def polln(label, srdr, va, offs, D, M0=64, first=None):
        n = len(offs)
        if first is not None:
            for t in range(n):
                a(f'buffer_load_dwordx4 {vr(D+4*t)}, v{va}, {srdr}, {offs[t]}{first}')
            a(f's_branch {label}_w')
        a.label(label)
        for t in range(n):
            a(f's_mov_b64 exec, s[{M0+2*t}:{M0+1+2*t}]')
            a(f'buffer_load_dwordx4 {vr(D+4*t)}, v{va}, {srdr}, {offs[t]} sc1')
        if first is not None: a.label(label + '_w')
        a('s_add_u32 s54, s54, 1')
        a('s_waitcnt vmcnt(0)')
        for t in range(n):
            a(f's_mov_b64 exec, s[{M0+2*t}:{M0+1+2*t}]')
            tagcheck(D + 4 * t, 8, M0 + 2 * t)
        a('s_mov_b64 exec, -1')
        a(f's_or_b64 s[80:81], s[{M0}:{M0+1}], s[{M0+2}:{M0+3}]')
        for t in range(2, n): a(f's_or_b64 s[80:81], s[80:81], s[{M0+2*t}:{M0+1+2*t}]')
        a(f's_cmp_gt_u32 s54, {SPIN}'); a('s_cselect_b64 s[80:81], 0, s[80:81]')
        a('s_cmp_lg_u64 s[80:81], 0')
        a(f's_cbranch_scc1 {label}')

    RAW = 40; XA = 152; BT = 180; AC = 24
    a('s_sub_u32 s56, s2, 16')
    a('s_and_b32 s57, s56, 1'); a('s_lshr_b32 s56, s56, 1')
    a('s_sub_u32 s58, s56, 64')
    a('s_lshr_b32 s59, s58, 1')
    a('s_movk_i32 s64, 3584'); a('s_movk_i32 s66, 256')
    a('s_cmp_lt_u32 s56, 64')
    a('s_cselect_b32 s64, 8192, s64')
    a('s_cselect_b32 s66, 32768, s66')
    a('s_cselect_b32 s59, s56, s59'); a('s_lshl_b32 s59, s59, 7')
    a('s_mul_i32 s65, s64, 25')
    a('s_mul_i32 s60, s64, 224'); a('s_mul_i32 s60, s60, s57'); a('s_add_u32 s59, s59, s60')
    a('s_mul_i32 s67, s64, 223'); a('s_add_u32 s67, s67, 128')
    a('s_lshl_b32 s60, s64, 3'); a('v_mul_u32_u24 v1, s60, v3'); a('v_lshlrev_b32 v9, 3, v2'); a('v_add_u32 v1, v1, v9')
    xrow(10, 9)
    a('s_mul_i32 s60, s57, 448')
    a('s_lshr_b32 s68, s56, 2'); a('s_lshl_b32 s68, s68, 11'); a('s_and_b32 s69, s56, 3'); a('s_lshl_b32 s69, s69, 8'); a('s_add_u32 s68, s68, s69')
    a('s_lshl_b32 s69, s57, 10'); a('s_add_u32 s68, s68, s69'); a(f's_add_u32 s68, s68, {WS_Q}')
    a('s_lshl_b32 s70, s58, 12'); a('s_lshl_b32 s69, s57, 11'); a('s_add_u32 s70, s70, s69'); a(f's_add_u32 s70, s70, {WS_G}')
    a('s_cmp_lt_u32 s56, 64'); a('s_cselect_b32 s68, s68, s70')
    a('s_mov_b32 s61, 0')
    a('s_waitcnt lgkmcnt(0)')
    wsb()
    a(f's_load_dword s4, s[32:33], {WS_EP}')
    a('s_cmp_lt_u32 s2, 16'); a('s_cbranch_scc1 L_nopiece')
    a('s_bitcmp1_b32 s58, 0')
    a('s_cselect_b32 s40, s22, s20'); a('s_cselect_b32 s41, s23, s21')
    a('s_cmp_lt_u32 s56, 64')
    a('s_cselect_b32 s40, s14, s40'); a('s_cselect_b32 s41, s15, s41')
    srd(40, 40, 's59', '0' if noWQ else 's67')
    srd(44, 8, None, 7168)
    for t in range(7):
        a(f'buffer_load_dwordx4 {vr(XA+4*t)}, v10, s[44:47], s60 offen' + (f' offset:{64*t}' if t else ''))
        for j in range(8):
            a(f'buffer_load_dwordx2 {vr(RAW+16*t+2*j, 2)}, v1, s[40:43], s61 offen' + WP_)
            if not (t == 6 and j == 7): a(f's_add_u32 s61, s61, s{64 if j < 7 else 65}')
    a('s_mul_i32 s67, s66, 7'); a('s_add_u32 s67, s67, 256')
    srd(48, 32, 's68', 's67')
    a('s_lshl_b32 s60, s66, 1'); a('v_mul_u32_u24 v1, s60, v3'); a('v_lshlrev_b32 v9, 4, v2'); a('v_add_u32 v1, v1, v9')
    a('s_waitcnt lgkmcnt(0)')
    tag_setup()
    for t in range(7):
        a(f's_waitcnt vmcnt({9*(6-t)})')
        transpose(RAW + 16 * t, BT + 16 * (t & 1))
        for cc in range(4):
            a(f'v_mfma_f32_16x16x32_bf16 {vr(AC+4*cc)}, {vr(XA+4*t)}, {vr(BT+16*(t&1)+4*cc)}, ' + ('0' if t == 0 else vr(AC+4*cc)))
    for i in range(2):
        tagit(RAW + 4 * i, [AC + 4 * cc + i for cc in range(4)])
        a(f'buffer_store_dwordx4 {vr(RAW+4*i)}, v1, s[48:51], ' + ('0' if i == 0 else 's66') + ' offen sc1')
    stamp(1)
    a('s_cmp_eq_u32 s34, 7')
    a('s_cbranch_scc1 L_w4_done')
    a('s_branch L_w4b')
    a.label('L_nopiece')
    a('s_waitcnt lgkmcnt(0)')
    tag_setup()
    a.label('L_w4b')
    a('s_barrier')
    stamp(2)
    WF = 104; RD = 168; DF = 200; GU = 40; FR = 232
    a(f's_mul_i32 s58, s37, {128*896}'); a('s_lshl_b32 s59, s34, 7'); a('s_add_u32 s58, s58, s59')
    srd(40, 16, 's58', 0 if noWO else 127 * 896 + 128)
    a(f's_mul_i32 s58, s37, {64*896}'); a('s_add_u32 s58, s58, s59')
    a('s_cmp_lt_u32 s37, 28'); a(f's_cselect_b32 s60, {0 if noWO else 63*896+128}, 0'); a('s_cselect_b32 s58, s58, 0')
    srd(44, 24, 's58', 's60')
    a(f'v_mul_u32_u24 v1, {8*896}, v3'); a('v_lshlrev_b32 v9, 3, v2'); a('v_add_u32 v1, v1, v9')
    a('s_mov_b32 s59, 0')
    for t in range(4):
        for j in range(8):
            imm = (j & 3) * 896
            a(f'buffer_load_dwordx2 {vr(RAW+16*t+2*j, 2)}, v1, s[40:43], s59 offen' + (f' offset:{imm}' if imm else '') + WP_)
            if t < 2: a(f'buffer_load_dwordx2 {vr(RD+16*t+2*j, 2)}, v1, s[44:47], s59 offen' + (f' offset:{imm}' if imm else '') + WP_)
            if j == 3: a(f's_add_u32 s59, s59, {4*896}')
            if j == 7 and t < 3: a(f's_add_u32 s59, s59, {28*896}')
    a('s_lshl_b32 s58, s37, 13'); a(f's_add_u32 s58, s58, {WS_G}')
    srd(48, 32, 's58', 8192)
    a('v_lshlrev_b32 v10, 4, v0')
    for k in range(16): a(f'v_mov_b32 v{FR+k}, 0')
    for t in range(4):
        a(f's_waitcnt vmcnt({[32, 16, 8, 0][t]})')
        transpose(RAW + 16 * t, WF + 16 * t)
        if t < 2: transpose(RD + 16 * t, DF + 16 * t)
    a('s_cmp_ge_u32 s37, 28'); a('s_cbranch_scc1 L_noffn')
    if noFFN: a('s_branch L_noffn')
    for t in range(8): a(f's_mov_b64 s[{64+2*t}:{65+2*t}], -1')
    a('s_mov_b32 s54, 0'); a('s_mov_b32 s59, 4096')
    polln('L_gupoll', 's[48:51]', 10, [('s59' if t >= 4 else '0') + ' offen' + (f' offset:{1024*(t&3)}' if t & 3 else '') for t in range(8)], GU, first=GP_)
    untag(GU, 32)
    for k in range(8): a(f'v_add_f32 v{16+k}, v{GU+k}, v{GU+8+k}')
    for k in range(8): a(f'v_add_f32 v{24+k}, v{GU+16+k}, v{GU+24+k}')
    rne(16, 16, 16, 32)
    for k in range(8): a(f'v_mul_f32 v{32+k}, {LOG2E ^ 0x80000000:#x}, v{16+k}')
    for k in range(8): a(f'v_exp_f32 v{32+k}, v{32+k}')
    for k in range(8): a(f'v_add_f32 v{32+k}, 1.0, v{32+k}')
    for k in range(8): a(f'v_rcp_f32 v{32+k}, v{32+k}')
    for k in range(8): a(f'v_mul_f32 v{16+k}, v{16+k}, v{32+k}')
    rne(16, 16, 8, 32)
    for k in range(8): a(f'v_mul_f32 v{16+k}, v{16+k}, v{24+k}')
    for k in range(4): a(f'v_cvt_pk_bf16_f32 v{16+k}, v{16+2*k}, v{17+2*k}')
    a(f'v_mul_u32_u24 v9, {HBS}, v3'); a('v_lshlrev_b32 v8, 3, v2'); a('v_add_u32 v9, v9, v8')
    a(f'ds_write_b64 v9, v[16:17] offset:{HB}'); a(f'ds_write_b64 v9, v[18:19] offset:{HB+4*HBS}')
    a('v_lshrrev_b32 v8, 1, v2'); a(f'v_mul_u32_u24 v9, {HBS}, v8'); a('v_and_b32 v8, 1, v2'); a('v_lshlrev_b32 v8, 6, v8'); a('v_add_u32 v9, v9, v8')
    a('v_lshlrev_b32 v8, 4, v3'); a('v_add_u32 v9, v9, v8')
    a(f'ds_read_b128 v[16:19], v9 offset:{HB}')
    a('s_waitcnt lgkmcnt(0)')
    for t in range(2):
        for cc in range(4):
            a(f'v_mfma_f32_16x16x32_bf16 {vr((FR if t == 0 else 40)+4*cc)}, v[16:19], {vr(DF+16*t+4*cc)}, 0')
    for cc in range(4):
        for r in (1, 3): a(f'v_mov_b32 v{FR+4*cc+r}, v{40+4*cc+r}')
    a.label('L_noffn')
    a('s_lshl_b32 s58, s35, 13'); a('s_lshl_b32 s59, s36, 8'); a('s_add_u32 s58, s58, s59'); a(f's_add_u32 s58, s58, {WS_O}')
    srd(44, 32, 's58', 15 * 512 + 256)
    a('s_mul_i32 s58, s37, 1792'); a('s_lshl_b32 s59, s34, 8'); a('s_add_u32 s58, s58, s59'); a(f's_add_u32 s58, s58, {WS_Y}')
    srd(48, 32, 's58', 0)
    a(f'v_mul_u32_u24 v9, {64*1792}, v3'); a('v_lshlrev_b32 v8, 4, v2'); a('v_add_u32 v9, v9, v8')
    a('v_lshlrev_b32 v1, 9, v2'); a('v_lshlrev_b32 v8, 4, v3'); a('v_add_u32 v1, v1, v8')
    a('v_lshlrev_b32 v10, 3, v3')
    a(f's_mov_b32 s59, {32*1792}')
    AF = 40; PA = 56; YR = 72
    a('s_mov_b32 s61, 0')
    for t in range(4): a(f's_mov_b64 s[{64+2*t}:{65+2*t}], 0')
    a.label('L_proj')
    a('s_mov_b32 s72, 0')
    a(f'ds_read_b64 v[12:13], v10 offset:{GMV}')
    a.label('L_ppoll')
    for t in range(4):
        a(f's_mov_b64 exec, s[{64+2*t}:{65+2*t}]')
        a(f'buffer_load_dwordx4 {vr(AF+4*t)}, v1, s[44:47], 0 offen' + (f' offset:{64*t}' if t else '') + ' sc1')
    a('s_mov_b64 exec, -1')
    a('s_add_u32 s72, s72, 1')
    a('s_waitcnt lgkmcnt(0)')
    for k in range(16): a(f'v_mul_f32 v{PA+k}, v{12+((k>>1)&1)}, v{FR+k}')
    a('s_waitcnt vmcnt(0)')
    for t in range(4):
        b = AF + 4 * t
        a(f's_mov_b64 exec, s[{64+2*t}:{65+2*t}]')
        a(f'v_max3_u32 v8, v{b}, v{b+1}, v{b+2}'); a(f'v_max_u32 v8, v8, v{b+3}')
        a(f'v_cmp_eq_u32_e64 s[{64+2*t}:{65+2*t}], -1, v8')
    a('s_mov_b64 exec, -1')
    a('s_or_b64 s[74:75], s[64:65], s[66:67]'); a('s_or_b64 s[76:77], s[68:69], s[70:71]'); a('s_or_b64 s[74:75], s[74:75], s[76:77]')
    a(f's_cmp_gt_u32 s72, {SPIN}'); a('s_cselect_b64 s[74:75], 0, s[74:75]')
    a('s_cmp_lg_u64 s[74:75], 0')
    a('s_cbranch_scc1 L_ppoll')
    for t in range(4):
        for cc in range(4):
            a(f'v_mfma_f32_16x16x32_bf16 {vr(PA+4*cc)}, {vr(AF+4*t)}, {vr(WF+16*t+4*cc)}, {vr(PA+4*cc)}')
    for i in range(2):
        for cc in range(4): a(f'v_add_f32 v{YR+8+cc}, v{PA+4*cc+2*i}, v{PA+4*cc+2*i+1}')
        tagit(YR + 4 * i, [YR + 8 + cc for cc in range(4)])
        a(f'buffer_store_dwordx4 {vr(YR+4*i)}, v9, s[48:51], ' + ('0' if i == 0 else 's59') + ' offen sc1')
    a('s_cmp_eq_u32 s61, 1')
    a('s_cbranch_scc1 L_w4_done')
    a('s_mov_b32 s61, 1')
    a(f's_mov_b32 s50, {7*32*1792 + 256}')
    for t in range(4): a(f's_mov_b64 s[{64+2*t}:{65+2*t}], -1')
    stamp(3)
    a('s_barrier')
    stamp(4)
    a('s_branch L_proj')
    a.label('L_w4_done')
    stamp(6)
    dump_stamps(40)
    a('s_endpgm')

    a.label('L_w5')
    a('v_mov_b32 v8, -1'); a('v_mov_b32 v9, -1'); a('v_mov_b32 v10, -1'); a('v_mov_b32 v11, -1'); a('v_mov_b32 v12, 0')
    a(f'ds_write_b128 v12, v[8:11] offset:{ML}'); a(f'ds_write_b128 v12, v[8:11] offset:{ML+16}'); a(f'ds_write_b128 v12, v[8:11] offset:{COEF}')
    a(f'ds_write_b32 v12, v12 offset:{CNT}')
    if QP: a(f'ds_write_b32 v12, v12 offset:{OP}')
    if WH or RV:
        a('v_mov_b32 v13, 0'); a('v_mov_b32 v14, 0'); a('v_mov_b32 v15, 0')
        a(f'ds_write_b128 v12, v[12:15] offset:{PROG}'); a(f'ds_write_b128 v12, v[12:15] offset:{MODE}')
    a('s_lshl_b32 s59, s35, 13'); a('s_lshl_b32 s60, s39, 9'); a('s_add_u32 s59, s59, s60'); a(f's_add_u32 s59, s59, {WS_O}')
    a('s_lshl_b32 s58, s34, 15'); a('s_lshl_b32 s60, s35, 11'); a('s_add_u32 s58, s58, s60'); a(f's_add_u32 s58, s58, {WS_Q}')
    a('v_lshlrev_b32 v1, 4, v0'); a('v_lshlrev_b32 v13, 3, v0')
    a('s_mul_i32 s57, s34, 896')
    a('s_waitcnt lgkmcnt(0)')
    wsb()
    a(f's_load_dword s4, s[32:33], {WS_EP}')
    srd(48, 32, 's59', 512)
    a('buffer_store_dwordx2 v[8:9], v13, s[48:51], 0 offen sc1')
    srd(40, 32, 's58', 2048)
    srd(44, 8, 's57', 896)
    srd(48, 26, None, 896)
    a('buffer_load_dwordx4 v[40:43], v1, s[44:47], 0 offen')
    a('buffer_load_dwordx4 v[44:47], v1, s[48:51], 0 offen')
    if TV:
        a('s_lshl_b32 s57, s2, 20')
        srd(72, 12, 's57', 64)
        a('buffer_load_dword v48, v12, s[72:75], 0 offen')
    for t in range(2): a(f's_mov_b64 s[{64+2*t}:{65+2*t}], -1')
    a('s_mov_b32 s54, 0')
    a('s_waitcnt lgkmcnt(0)')
    tag_setup()
    a('s_waitcnt vmcnt(0)')
    if QP:
        a('s_mov_b32 s72, 0')
        a.label('L_qwait')
        a(f'ds_read_b32 v16, v12 offset:{OP}')
        a('s_add_u32 s72, s72, 1'); a('s_cmp_gt_u32 s72, 400'); a('s_cbranch_scc1 L_qwait_x')
        a('s_waitcnt lgkmcnt(0)')
        a('v_readfirstlane_b32 s56, v16')
        a('s_cmp_lg_u32 s56, 0xff800000'); a('s_cbranch_scc1 L_qwait')
        a.label('L_qwait_x')
        a('s_waitcnt lgkmcnt(0)')
    polln('L_qpoll', 's[40:43]', 1, ['0 offen', '0 offen offset:1024'], 16)
    untag(16, 8)
    for k in range(4): a(f'v_add_f32 v{16+k}, v{16+k}, v{20+k}')
    a('v_cvt_pk_bf16_f32 v16, v16, v17'); a('v_cvt_pk_bf16_f32 v17, v18, v19')
    a(f'ds_write_b64 v13, v[16:17] offset:{QB}')
    a('s_waitcnt lgkmcnt(0)')
    stamp(1)
    a('s_barrier')
    for k in range(4):
        a(f'v_lshlrev_b32 v{16+2*k}, 16, v{40+k}'); a(f'v_and_b32 v{17+2*k}, 0xffff0000, v{40+k}')
        a(f'v_lshlrev_b32 v{24+2*k}, 16, v{44+k}'); a(f'v_and_b32 v{25+2*k}, 0xffff0000, v{44+k}')
    for k in range(8): a(f'v_mul_f32 v{16+k}, v{16+k}, v{24+k}')
    rne(16, 16, 8, 24)
    for k in range(1, 8): a(f'v_add_f32 v16, v16, v{16+k}')
    for o in wave_reduce('v_add_f32', 16, 17): a(o)
    rne(16, 16, 2, 24)
    a(f'v_mul_f32 v16, {LOG2E ^ 0x80000000:#x}, v16'); a('v_exp_f32 v16, v16'); a('v_add_f32 v16, 1.0, v16'); a('v_rcp_f32 v16, v16')
    rne(16, 16, 2, 24)
    a('v_sub_f32 v18, 1.0, v16')
    rne(18, 18, 2, 24)
    GV = 60; GM = 61
    a(f'v_mov_b32 v{GV}, v16'); a(f'v_lshrrev_b32 v{GM}, 16, v18')
    a('s_lshl_b32 s58, s35, 8'); a(f's_add_u32 s58, s58, {WS_REC}')
    srd(40, 32, 's58', 256)
    a('s_lshl_b32 s57, s39, 4')
    a(f's_mov_b32 s61, {CSC:#x}')
    a('s_mov_b32 s72, 0')
    a.label('L_pollml')
    a(f'ds_read_b128 v[16:19], v12 offset:{ML}'); a(f'ds_read_b128 v[20:23], v12 offset:{ML+16}')
    a('s_add_u32 s72, s72, 1'); a(f's_cmp_gt_u32 s72, {SPIN*8}'); a('s_cbranch_scc1 L_pollml_x')
    a('s_waitcnt lgkmcnt(0)')
    a('v_max3_u32 v24, v16, v17, v18'); a('v_max3_u32 v24, v24, v19, v20'); a('v_max3_u32 v24, v24, v21, v22'); a('v_max_u32 v24, v24, v23')
    a('v_readfirstlane_b32 s56, v24')
    a('s_cmp_eq_u32 s56, -1'); a('s_cbranch_scc1 L_pollml')
    a.label('L_pollml_x')
    a('s_waitcnt lgkmcnt(0)')
    a('v_max_f32 v24, v16, v17'); a('v_max3_f32 v24, v24, v18, v19')
    for k in range(4): a(f'v_sub_f32 v{28+k}, v{16+k}, v24')
    for k in range(4): a(f'v_mul_f32 v{28+k}, s61, v{28+k}')
    for k in range(4): a(f'v_exp_f32 v{28+k}, v{28+k}')
    a('v_mul_f32 v25, v28, v20')
    for k in range(1, 4): a(f'v_fmac_f32 v25, v{28+k}, v{20+k}')
    a(f'v_or_b32 v32, v24, v{GM}'); a('v_mov_b32 v33, v25'); a(f'v_mov_b32 v34, v{TG}'); a(f'v_mov_b32 v35, v{TG}')
    a('s_mov_b64 exec, 1')
    a('buffer_store_dwordx4 v[32:35], v12, s[40:43], s57 offen sc1')
    a('s_mov_b64 exec, -1')
    stamp(2)
    a('v_lshlrev_b32 v14, 4, v2')
    a('v_lshrrev_b32 v15, 1, v2'); a('v_lshlrev_b32 v15, 2, v15')
    if RV:
        a('s_mov_b32 s72, 0')
        a.label('L_rwait')
        a(f'ds_read_b32 v8, v12 offset:{PROG}')
        a('s_add_u32 s72, s72, 1'); a(f's_cmp_gt_u32 s72, {SPIN}'); a('s_cbranch_scc1 L_rwait_x')
        a('s_waitcnt lgkmcnt(0)')
        a('v_readfirstlane_b32 s56, v8')
        a(f's_cmp_lt_u32 s56, {32256*(RV + (7 if WH else 0))}'); a('s_cbranch_scc1 L_rwait')
        a.label('L_rwait_x')
        a('s_waitcnt lgkmcnt(0)')
    a('s_mov_b32 s72, 0')
    a('s_mov_b64 s[64:65], 0xffff')
    a.label('L_recpoll')
    a('s_mov_b64 exec, s[64:65]')
    a('buffer_load_dwordx4 v[36:39], v14, s[40:43], 0 offen sc1')
    a('s_add_u32 s72, s72, 1')
    a('s_waitcnt vmcnt(0)')
    a(f'v_xor_b32 v8, v38, v{TG}'); a(f'v_xor_b32 v9, v39, v{TG}'); a('v_or_b32 v8, v8, v9')
    a('v_cmp_ne_u32_e64 s[64:65], 0, v8')
    a('s_mov_b64 exec, -1')
    a(f's_cmp_gt_u32 s72, {SPIN}'); a('s_cselect_b64 s[64:65], 0, s[64:65]')
    a('s_cmp_lg_u64 s[64:65], 0')
    a('s_cbranch_scc1 L_recpoll')
    a('s_xor_b32 s56, s39, 1')
    a('v_readlane_b32 s58, v36, s56'); a('v_readlane_b32 s59, v37, s56')
    a('v_lshlrev_b32 v8, 16, v36')
    a('s_mov_b64 exec, 0xffff')
    a(f'ds_write_b32 v15, v8 offset:{GMV}')
    a('s_mov_b64 exec, -1')
    a('s_and_b32 s58, s58, 0xffff0000')
    a('v_max_f32 v26, s58, v24')
    a('v_sub_f32 v27, s58, v26'); a('v_sub_f32 v24, v24, v26')
    a('v_mul_f32 v27, s61, v27'); a('v_mul_f32 v24, s61, v24')
    a('v_exp_f32 v27, v27'); a('v_exp_f32 v24, v24')
    a('v_mul_f32 v27, s59, v27'); a('v_fmac_f32 v27, v24, v33')
    a('v_rcp_f32 v27, v27')
    a('v_mul_f32 v27, v27, v24')
    a(f'v_mul_f32 v27, v{GV}, v27')
    for k in range(4): a(f'v_mul_f32 v{28+k}, v27, v{28+k}')
    for k in range(4): a(f'v_min_u32 v{28+k}, -2, v{28+k}')
    a(f'ds_write_b128 v12, v[28:31] offset:{COEF}')
    a('s_waitcnt lgkmcnt(0)')
    stamp(3)
    a('s_cmp_lt_u32 s37, 14')
    a('s_cbranch_scc1 L_fin')
    dump_stamps(40)
    a('s_endpgm')
    a.label('L_fin')
    a(f's_mul_i32 s58, s34, {32*1792}'); a(f's_add_u32 s58, s58, {WS_Y}')
    srd(40, 32, 's58', 32 * 1792)
    a('v_lshrrev_b32 v16, 3, v0'); a('v_mul_u32_u24 v1, 1792, v16'); a('v_and_b32 v16, 7, v0'); a('v_lshlrev_b32 v16, 4, v16'); a('v_add_u32 v1, v1, v16')
    a('s_lshl_b32 s59, s37, 7'); a('v_add_u32 v1, s59, v1')
    for u in range(1, 4): a(f's_mov_b32 s{75+u}, {u*8*1792}')
    a('s_mul_i32 s59, s34, 896')
    srd(44, 28, 's59', 0)
    a('s_lshl_b32 s59, s37, 6'); a('v_add_u32 v13, s59, v13')
    a('v_cmp_gt_u32 vcc, 8, v0'); a(f'v_mov_b32 v16, {OOB:#x}'); a('v_cndmask_b32 v13, v16, v13, vcc')
    a('s_mov_b32 s61, 0')
    for t in range(4): a(f's_mov_b64 s[{64+2*t}:{65+2*t}], 0')
    a.label('L_gather')
    a('s_mov_b32 s54, 0')
    polln('L_gpoll', 's[40:43]', 1, ['0 offen', 's76 offen', 's77 offen', 's78 offen'], 16)
    if UY: untag(16, 16)
    for k in range(4): a(f'v_add_f32 v{16+k}, v{16+k}, v{20+k}')
    for k in range(4): a(f'v_add_f32 v{24+k}, v{24+k}, v{28+k}')
    for k in range(4): a(f'v_add_f32 v{48+k}, v{16+k}, v{24+k}')
    for k in range(4): a(f'v_add_f32_dpp v{48+k}, v{48+k}, v{48+k} row_ror:8 row_mask:0xf bank_mask:0xf')
    for sw in ('v_permlane16_swap_b32', 'v_permlane32_swap_b32'):
        for k in range(4): a(f'v_mov_b32 v{52+k}, v{48+k}')
        for k in range(4): a(f'{sw} v{48+k}, v{52+k}')
        for k in range(4): a(f'v_add_f32 v{48+k}, v{48+k}, v{52+k}')
    a('v_cvt_pk_bf16_f32 v52, v48, v49'); a('v_cvt_pk_bf16_f32 v53, v50, v51')
    a('buffer_store_dwordx2 v[52:53], v13, s[44:47], 0 offen')
    a('s_cmp_eq_u32 s61, 1')
    a('s_cbranch_scc1 L_fin_done')
    a('s_mov_b32 s61, 1')
    a('s_mov_b32 s46, 896')
    for t in range(4): a(f's_mov_b64 s[{64+2*t}:{65+2*t}], -1')
    stamp(4)
    a('s_barrier')
    if B3: a('s_barrier')
    stamp(5)
    a('s_branch L_gather')
    a.label('L_fin_done')
    stamp(6)
    if DBG:
        a('s_memrealtime s[86:87]'); a('s_cmp_lg_u32 s37, 0'); a('s_cbranch_scc1 L_nodbg')
        a('s_waitcnt lgkmcnt(0)'); a('s_sub_u32 s86, s86, s84'); a('v_mov_b32 v70, s86'); a('s_lshl_b32 s86, s34, 2'); a('v_mov_b32 v71, s86')
        a('global_store_dword v71, v70, s[30:31]')
        a.label('L_nodbg')
    a('s_cmp_lg_u32 s2, 0')
    a('s_cbranch_scc1 L_noep')
    a('s_mov_b64 exec, 1')
    a(f'global_store_dword v12, v{TG}, s[32:33] offset:{WS_EP}')
    a('s_mov_b64 exec, -1')
    a.label('L_noep')
    dump_stamps(80)
    a('s_endpgm')

    if WH and WC == 6:
        a.label('L_w7')
        a('v_mov_b32 v1, 0'); a('v_mov_b32 v2, 1')
        a('s_getreg_b32 s59, hwreg(HW_REG_XCC_ID, 0, 3)')
        a('s_mov_b32 s57, 0'); a('s_mov_b32 s58, 0'); a('s_mov_b32 s72, 0')
        a('s_lshl_b32 s59, s59, 8'); a(f's_add_u32 s59, s59, {WS_CTR+256}')
        a('v_lshlrev_b32 v9, 2, v0'); a(f'v_add_u32 v9, {WS_CTR}, v9')
        a('v_lshlrev_b32 v8, 2, v0'); a('v_add_u32 v8, s59, v8')
        a('s_mov_b64 exec, 0xffff')
        a('s_waitcnt lgkmcnt(0)')
        wsb()
        a('global_load_dword v10, v8, s[32:33]')
        if XB: a('global_load_dword v11, v9, s[32:33]')
        a('s_waitcnt vmcnt(0)')
        a('s_mov_b64 exec, 1')
        a('s_barrier')
        a.label('L_w7poll')
        a(f'ds_read_b128 v[4:7], v1 offset:{PROG}')
        a('s_add_u32 s72, s72, 1'); a(f's_cmp_gt_u32 s72, {SPIN*8}'); a('s_cbranch_scc1 L_end')
        a('s_waitcnt lgkmcnt(0)')
        a('v_min_u32 v4, v4, v5'); a('v_min3_u32 v4, v4, v6, v7')
        a('v_readfirstlane_b32 s59, v4')
        a('s_cmp_lt_u32 s59, s57'); a('s_cbranch_scc1 L_w7poll')
        a('global_atomic_add v3, v8, v2, s[32:33] sc0')
        a('v_readlane_b32 s60, v10, s58')
        if XB: a('v_readlane_b32 s61, v11, s58')
        a('s_add_u32 s57, s57, 32256'); a('s_add_u32 s58, s58, 1')
        a('s_waitcnt vmcnt(0)')
        a('v_readfirstlane_b32 s59, v3')
        a('v_add_u32 v8, 4, v8')
        a('s_sub_u32 s59, s59, s60')
        a('s_ashr_i32 s60, s59, 16'); a('s_and_b32 s59, s59, 0xffff')
        a('s_add_u32 s60, s60, s59')
        a(f's_cmp_ge_i32 s60, {TH}'); a('s_cselect_b32 s56, 1, 0')
        for k in range(4): a(f'v_mov_b32 v{4+k}, s56')
        a(f'ds_write_b128 v1, v[4:7] offset:{MODE}')
        if XB:
            a(f's_cmp_lg_u32 s59, {XR_}'); a('s_cbranch_scc1 L_w7n')
            a('global_atomic_add v3, v9, v2, s[32:33] sc0 sc1')
            a('s_waitcnt vmcnt(0)')
            a('v_subrev_u32 v3, s61, v3'); a('v_min_u32 v3, 7, v3')
            a(f'v_mul_u32_u24 v3, {2*XB<<16}, v3'); a(f'v_subrev_u32 v3, {7*XB<<16}, v3')
            a('global_atomic_add v8, v3, s[32:33]')
            a.label('L_w7n')
            a('v_add_u32 v9, 4, v9')
        a(f's_cmp_lt_u32 s58, {NCK}'); a('s_cbranch_scc1 L_w7poll')
        a('s_waitcnt lgkmcnt(0)')
    elif WH and WC:
        a.label('L_w7')
        a('v_mov_b32 v1, 0'); a('v_mov_b32 v2, 1')
        a('s_mov_b64 exec, 1')
        a('s_mov_b32 s57, 0'); a('s_mov_b32 s58, 0'); a('s_mov_b32 s72, 0')
        a('s_waitcnt lgkmcnt(0)')
        wsb()
        a(f's_load_dword s4, s[32:33], {WS_EP}')
        a('s_lshr_b32 s59, s2, 3'); a('s_lshl_b32 s59, s59, 11'); a(f's_add_u32 s60, s59, {WS_CTR}')
        a('s_and_b32 s59, s2, 7'); a('s_lshl_b32 s61, s59, 2'); a('s_add_u32 s61, s61, s60'); a('v_mov_b32 v8, s61')
        a('s_lshr_b32 s61, 0x80, s59')
        if WC == 5:
            a('s_mov_b64 exec, -1')
            a('s_lshl_b32 s60, s2, 11'); a(f's_add_u32 s60, s60, {WS_MB}')
            a('s_andn2_b32 s62, s2, 7'); a('s_lshl_b32 s62, s62, 11'); a('s_lshl_b32 s56, s59, 2'); a('s_add_u32 s62, s62, s56'); a(f's_add_u32 s62, s62, {WS_MB}')
            a('v_lshlrev_b32 v8, 11, v0'); a('v_add_u32 v8, s62, v8')
            a('s_lshl_b32 s62, 1, s59'); a('s_xor_b32 s62, s62, 0xff'); a('s_mov_b32 s63, 0')
        a('s_waitcnt lgkmcnt(0)')
        a('s_add_u32 s4, s4, 0x01010101'); a('v_mov_b32 v3, s4')
        a('s_mov_b64 exec, 1')
        a('s_barrier')
        a.label('L_w7poll')
        a(f'ds_read_b128 v[4:7], v1 offset:{PROG}')
        a('s_add_u32 s72, s72, 1'); a(f's_cmp_gt_u32 s72, {SPIN*8}'); a('s_cbranch_scc1 L_end')
        a('s_waitcnt lgkmcnt(0)')
        a('v_min_u32 v4, v4, v5'); a('v_min3_u32 v4, v4, v6, v7')
        a('v_readfirstlane_b32 s59, v4')
        a('s_cmp_lt_u32 s59, s57'); a('s_cbranch_scc1 L_w7poll')
        if WC in (1, 3): a('global_store_dword v8, v3, s[32:33]' + WS_)
        if WC == 5:
            a('s_mov_b64 exec, s[62:63]'); a('global_store_dword v8, v3, s[32:33]' + WS_); a('v_add_u32 v8, 0x80, v8'); a('s_mov_b64 exec, 1')
        if WC != 3: a('s_load_dwordx8 s[64:71], s[32:33], s60')
        a(f's_add_u32 s57, s57, {32256*CKS}'); a('s_add_u32 s58, s58, 1'); a('s_add_u32 s60, s60, 128')
        a('s_mov_b32 s56, 0')
        a('s_waitcnt lgkmcnt(0)')
        if WC == 2: a('global_store_dword v8, v3, s[32:33]' + WS_)
        for k in range(8): a(f's_cmp_eq_u32 s{64+k}, s4'); a('s_addc_u32 s56, s56, s56')
        a('s_andn2_b32 s56, s56, s61'); a('s_bcnt1_i32_b32 s56, s56')
        a(f's_cmp_ge_u32 s56, {TH}'); a('s_cselect_b32 s56, 1, 0')
        if WC != 5: a('v_add_u32 v8, 0x80, v8')
        for k in range(4): a(f'v_mov_b32 v{4+k}, s56')
        a(f'ds_write_b128 v1, v[4:7] offset:{MODE}')
        a(f's_cmp_lt_u32 s58, {NCK}'); a('s_cbranch_scc1 L_w7poll')
        a('s_waitcnt lgkmcnt(0)')
    elif WH:
        a.label('L_w7')
        a('v_mov_b32 v1, 0'); a('v_mov_b32 v2, 1')
        a('s_mov_b64 exec, 1')
        a(f's_mov_b32 s56, {TH}'); a('s_mov_b32 s57, 0'); a('s_mov_b32 s58, 0'); a('s_mov_b32 s72, 0')
        a('s_waitcnt lgkmcnt(0)')
        wsb()
        a(f's_lshr_b32 s59, s2, {GS}'); a('s_lshl_b32 s59, s59, 8'); a(f's_add_u32 s59, s59, {WS_CTR}'); a('v_mov_b32 v8, s59')
        a(f's_and_b32 s59, s2, {(1<<GS)-1}')
        a('s_cmp_lg_u32 s59, 0'); a('s_cbranch_scc1 L_w7b')
        a(f'global_store_dword v8, v1, s[32:33] sc1')
        a.label('L_w7b')
        a('s_barrier')
        a.label('L_w7poll')
        a(f'ds_read_b128 v[4:7], v1 offset:{PROG}')
        a('s_add_u32 s72, s72, 1'); a(f's_cmp_gt_u32 s72, {SPIN*8}'); a('s_cbranch_scc1 L_end')
        a('s_waitcnt lgkmcnt(0)')
        a('v_min_u32 v4, v4, v5'); a('v_min3_u32 v4, v4, v6, v7')
        a('v_readfirstlane_b32 s59, v4')
        a('s_cmp_lt_u32 s59, s57'); a('s_cbranch_scc1 L_w7poll')
        a(f'global_atomic_add v3, v8, v2, s[32:33] sc0 sc1')
        a('s_add_u32 s57, s57, 32256'); a('s_add_u32 s58, s58, 1')
        a('s_waitcnt vmcnt(0)')
        a('v_cmp_le_i32 vcc, s56, v3')
        a(f's_add_u32 s56, s56, {1<<GS}')
        for k in range(4): a(f'v_cndmask_b32 v{4+k}, v1, v2, vcc')
        a(f'ds_write_b128 v1, v[4:7] offset:{MODE}')
        a(f's_cmp_lt_u32 s58, {NCK}'); a('s_cbranch_scc1 L_w7poll')
        a('s_waitcnt lgkmcnt(0)')
    a.label('L_end')
    a('s_endpgm')
    a.raw('.section .rodata,"a"'); a.raw('.p2align 6'); a.raw(f'.amdhsa_kernel {NAME}')
    a.raw('  .amdhsa_next_free_vgpr 256'); a.raw('  .amdhsa_next_free_sgpr 102'); a.raw('  .amdhsa_accum_offset 256')
    a.raw('  .amdhsa_group_segment_fixed_size 0'); a.raw('  .amdhsa_kernarg_size 104'); a.raw('  .amdhsa_user_sgpr_count 2')
    a.raw('  .amdhsa_user_sgpr_kernarg_segment_ptr 1'); a.raw('  .amdhsa_system_sgpr_workgroup_id_x 1'); a.raw('.end_amdhsa_kernel')
    return a.text()

if __name__ == '__main__':
    kw = eval('dict(' + (sys.argv[2] if len(sys.argv) > 2 else '') + ')')
    open(sys.argv[1], 'w').write(gen(**kw))
```

```python
import sys
sys.path.insert(0, 'gen')
from asmlib import Asm

NAME = 'gated_mix__mha_block_cached__swiglu_ffn__decode_kernel'
HEADER = open('gated_mix__mha_block_cached__swiglu_ffn__decode.s.ref').read().split('; Override launch')[0]

QB = 0
OP = 512
ML = 4608
COEF = 4640
CNT = 4656
PROG = 4672
MODE = 4688
GMV = 4704
HB = 4736
HBS = 144
LDS = 8192
WS_EP = 0
WS_CTR = 0x10000
WS_REC = 0x1000
WS_O = 0x20000
WS_Q = 0x80000
WS_Y = 0x100000
WS_G = 0x180000
WS_MB = 0x200000
WS_ST = 0x200000
CSC = 0x3db8aa3b
LOG2E = 0x3fb8aa3b
SPIN = 20000
OOB = 0x40000000

def rev5(i): return int(f'{i:05b}'[::-1], 2)
def vr(b, n=4): return f'v[{b}:{b+n-1}]'

def gen(W=5, LK=7, LV=9, P=54, G=1, stamps=False, PRIO=3, W0=5, noWO=False, noWQ=False, DBG=0, KP_=' nt', VP_=' nt', WP_=' nt', GP_='', WH=0, WP=5, TH=4, GS=3, NCK=15, SMP=(6, 22), WSB=0x3fc00000, B3=1, CS=0, CU=9, noFFN=False, UY=1, TV=0, VX=0, RV=0, QP=0, WC=0, CKS=1, WS_=' sc1', XB=0, XR_=16, EW=0, ET=5, XM=None, XL=None, RS=0, WOW=0, WOS=None, CKH=0, XBI=None, BL_='', XT=None, RM=3, RO=2, R0=16, XQ=None, CP_=' sc1', THS=None):
    NW = 7 if WH else 6
    a = Asm()
    a.raw(HEADER.rstrip('\n'))
    a.raw(f'; @launch grid=(256,1,1) block=({NW*64},1,1) lds={LDS}')
    a.raw('.amdgcn_target "amdgcn-amd-amdhsa--gfx950"')
    a.raw('.text'); a.raw(f'.globl {NAME}'); a.raw('.p2align 8'); a.raw(f'.type {NAME},@function'); a.raw(f'{NAME}:')

    def stamp(k):
        if stamps: a(f's_memrealtime s[{84+2*k}:{85+2*k}]')
    def dump_stamps(tmp):
        if not stamps: return
        a('s_waitcnt lgkmcnt(0)')
        a(f's_mul_i32 s60, s2, {NW}'); a('s_add_u32 s60, s60, s3'); a('s_lshl_b32 s60, s60, 6'); a(f's_add_u32 s60, s60, {WS_ST}')
        a(f'v_mov_b32 v{tmp}, s60')
        for k in range(16): a(f'v_mov_b32 v{tmp+2+k}, s{84+k}')
        for k in range(4): a(f'global_store_dwordx4 v{tmp}, {vr(tmp+2+4*k)}, s[52:53] offset:{16*k}')

    def wsb():
        if stamps: a('s_mov_b64 s[52:53], s[32:33]')
        if WSB: a(f's_add_u32 s32, s32, {WSB:#x}'); a('s_addc_u32 s33, s33, 0')
    def srd(d, plo, off, size):
        if off is None:
            a(f's_mov_b32 s{d}, s{plo}'); a(f's_mov_b32 s{d+1}, s{plo+1}')
        else:
            a(f's_add_u32 s{d}, s{plo}, {off}'); a(f's_addc_u32 s{d+1}, s{plo+1}, 0')
        a(f's_mov_b32 s{d+2}, {size}'); a(f's_mov_b32 s{d+3}, 0x20000')

    def sel2_ops(sel, t):
        L = [f'v_lshrrev_b32 v{t}, 5, v0', f'v_mul_u32_u24 v{t}, 0x202, v{t}', f'v_add_u32 v{t}, 0x100, v{t}',
             f'v_or_b32 v{t+1}, 0xc0c0000, v{t}', f'v_lshlrev_b32 v{t+2}, 16, v{t}', f'v_or_b32 v{t+2}, 0xc0c, v{t+2}',
             f'v_and_b32 v{t+3}, 1, v0', f'v_cmp_eq_u32 vcc, 1, v{t+3}', f'v_cndmask_b32 v{t+1}, v{t+1}, v{t+2}, vcc',
             f'v_lshrrev_b32 v{t+2}, 1, v0', f'v_xor_b32 v{t+3}, v0, v{t+2}', f'v_and_b32 v{t+3}, 8, v{t+3}',
             f'v_and_b32 v{t+2}, 3, v{t+2}', f'v_or_b32 v{t+2}, v{t+2}, v{t+3}', f'v_mov_b32 v{t+3}, 0xc0c0c0c']
        for rr in range(4):
            L += [f'v_cmp_eq_u32 vcc, {rr}, v{t+2}', f'v_cndmask_b32 v{sel+rr}, v{t+3}, v{t+1}, vcc']
        return L

    def wave_reduce(op, v, t):
        L = []
        for r in (8, 4, 2, 1):
            L.append(f'{op}_dpp v{v}, v{v}, v{v} row_ror:{r} row_mask:0xf bank_mask:0xf')
        for sw in ('v_permlane16_swap_b32', 'v_permlane32_swap_b32'):
            L += [f'v_mov_b32 v{t}, v{v}', f'{sw} v{v}, v{t}', f'{op} v{v}, v{v}, v{t}']
        return L

    def rne(dst, src, n, t):
        for k in range(0, n, 2): a(f'v_cvt_pk_bf16_f32 v{t+k//2}, v{src+k}, v{src+k+1}')
        for k in range(0, n, 2):
            a(f'v_lshlrev_b32 v{dst+k}, 16, v{t+k//2}'); a(f'v_and_b32 v{dst+k+1}, 0xffff0000, v{t+k//2}')

    def transpose(tmp, dst):
        for cc in range(4):
            for jj in range(4):
                a(f'v_perm_b32 v{dst+4*cc+jj}, v{tmp+2*(2*jj+1)+(cc>>1)}, v{tmp+2*(2*jj)+(cc>>1)}, s{62+(cc&1)}')

    TG = 4
    def tag_setup():
        a('s_add_u32 s4, s4, 0x01010101')
        a('s_mov_b32 s5, 0xff'); a('s_mov_b32 s6, 0x0c0c0400'); a('s_mov_b32 s7, 0x04000c0c')
        a(f'v_mov_b32 v{TG}, s4'); a('v_mov_b32 v11, 0x80')
        for k in range(1, 4): a(f'v_lshrrev_b32 v{TG+k}, {8*k}, v{TG}')
    def tagit(dst, srcs):
        for k in range(4): a(f'v_bfi_b32 v{dst+k}, s5, v{TG+k}, v{srcs[k]}')
    def untag(d, n):
        for k in range(n): a(f'v_bfi_b32 v{d+k}, s5, v11, v{d+k}')
    def tagcheck(d, t, mask):
        a(f'v_perm_b32 v{t}, v{d+1}, v{d}, s6'); a(f'v_perm_b32 v{t+1}, v{d+3}, v{d+2}, s7')
        a(f'v_or_b32 v{t}, v{t}, v{t+1}')
        a(f'v_cmp_ne_u32_e64 s[{mask}:{mask+1}], v{t}, v{TG}')
        a(f's_wqm_b64 s[{mask}:{mask+1}], s[{mask}:{mask+1}]')

    a('s_cmp_ge_u32 s2, 256')
    a('s_cbranch_scc1 L_end')
    a('s_load_dwordx16 s[8:23], s[0:1], 0')
    a('s_load_dwordx8 s[24:31], s[0:1], 64')
    a('s_load_dwordx2 s[32:33], s[0:1], 96')
    if stamps:
        for k in range(2, 16, 2): a(f's_mov_b64 s[{84+k}:{85+k}], 0')
    stamp(0)
    if DBG: a('s_memrealtime s[84:85]')
    a('v_lshrrev_b32 v1, 6, v0')
    a('v_and_b32 v0, 63, v0')
    a('v_readfirstlane_b32 s3, v1')
    a('s_bfe_u32 s35, s2, 0x40001'); a('s_and_b32 s36, s2, 1')
    a('s_lshr_b32 s34, s2, 5')
    a('s_and_b32 s37, s2, 31')
    a('s_lshl_b32 s39, s34, 1'); a('s_or_b32 s39, s39, s36')
    a('s_cmp_ge_u32 s3, 4')
    a('s_cbranch_scc1 L_helper')

    RING = 40; XR = RING + 128
    NX = max(P - 32, 0)
    assert XR + 4 * NX <= 256
    Q = 2; SEL = 6; SC = 10; TMP = 18; RMAX = 34; LA = 35; LB = 36; CF = 37; OA = 38; OG = 39
    S0 = 18; ACC = 26
    if PRIO: a(f's_setprio {PRIO}')
    a('v_lshlrev_b32 v1, 4, v0')
    a(f's_mul_i32 s56, s3, {G*1024}')
    if XM:
        assert G == 1
        lo, hi = XM
        T_ = 0
        for idx in range(16):
            c, d, a_, b_ = idx & 1, idx >> 1 & 1, idx >> 2 & 1, idx >> 3 & 1
            T_ |= ((a_ & c ^ b_ & d) | (a_ & d ^ b_ & (c ^ d)) << 1) << (2 * idx)
        a(f's_bfe_u32 s66, s2, {0x20000 | lo:#x}'); a(f's_bfe_u32 s67, s2, {0x20000 | hi:#x}')
        a('s_lshl2_add_u32 s66, s67, s66'); a('s_lshl_b32 s66, s66, 1'); a(f's_lshr_b32 s66, {T_:#x}, s66')
        a('s_and_b32 s66, s66, 3'); a('s_lshl_b32 s66, s66, 17')
        a('s_mov_b32 s67, s56'); a('s_mov_b32 s68, s56'); a('s_xor_b32 s56, s56, s66')
    if XL:
        assert G == 1 and not XM
        first = True
        for k, c in enumerate(XL):
            if not c: continue
            a(f's_bitcmp1_b32 s2, {k}'); a(f's_cselect_b32 s{66 if first else 67}, {c << 12:#x}, 0')
            if not first: a('s_xor_b32 s66, s66, s67')
            first = False
        a('s_mov_b32 s67, s56'); a('s_mov_b32 s68, s56'); a('s_xor_b32 s56, s56, s66')
    a('s_mov_b32 s58, s56')
    a('s_lshl_b32 s57, s2, 20')
    a('s_waitcnt lgkmcnt(0)')
    srd(40, 10, 's57', 1 << 20)

    def slot_reg(n):
        if n < NX: return XR + 4 * n
        if P <= n < min(64, P + NX): return XR + 4 * (n - P)
        return RING + 4 * (n % 32)
    def prev_user(n):
        r = slot_reg(n)
        for m in range(n - 1, -1, -1):
            if slot_reg(m) == r: return m
        return -1
    st = {'issued': 0, 'landed': -1}
    def issue(endmode=None):
        n = st['issued']
        if WH and n >= P:
            st['lab'] = st.get('lab', 0) + 1
            a.raw(f'  s_cbranch_vccnz L_em{st["lab"]}'); a.pos += 1
            a.raw(f'  s_waitcnt vmcnt({W-1})')
            a.raw(f'L_em{st["lab"]}:')
            a(f's_waitcnt vmcnt({WH-1})'); st['landed'] = max(st['landed'], n - WH)
        elif EW and st.get('inv'):
            st['lab'] = st.get('lab', 0) + 1
            a.raw(f'  s_cbranch_vccnz L_em{st["lab"]}'); a.pos += 1
            a.raw(f'  s_waitcnt vmcnt({W-1})')
            a.raw(f'L_em{st["lab"]}:')
            a(f's_waitcnt vmcnt({EW-1})'); st['landed'] = max(st['landed'], n - EW)
        elif n >= W0:
            w = WP if n < P else W
            a(f's_waitcnt vmcnt({w-1})'); st['landed'] = max(st['landed'], n - w)
        st['issued'] += 1
        srdr, so = ('s[40:43]', 's56') if n < 256 else ('s[44:47]', 's58')
        j = n % G
        imm = (j % 4) * 1024
        a(f'buffer_load_dwordx4 {vr(slot_reg(n))}, v1, {srdr}, {so} offen' + (f' offset:{imm}' if imm else '') + (KP_ if n < 256 else VP_))
        if XL:
            cn = 's67' if n < 256 else 's68'
            a(f's_add_u32 {cn}, {cn}, 0x1000'); a(f's_xor_b32 {so}, {cn}, s66')
        elif XM and n % 32 == 31:
            cn = 's67' if n < 256 else 's68'
            a(f's_add_u32 {cn}, {cn}, 0x20000'); a(f's_xor_b32 {so}, {cn}, s66')
        elif j == G - 1: a(f's_add_u32 {so}, {so}, {4*G*1024 - (G-1)//4*4096}')
        elif j % 4 == 3: a(f's_add_u32 {so}, {so}, 4096')
    WM = max(W, WH)
    def sample(i):
        if not WH: return
        if (i & 31) in SMP: a(f'ds_read_b32 v0, v{LA} offset:{MODE}')
        if ((i - 2) & 31) in SMP:
            a('s_waitcnt lgkmcnt(0)')
            if THS: a(f'v_cmp_le_i32 vcc, {32 + THS[SMP.index((i - 2) & 31) % len(THS)]}, v0')
            else: a('v_cmp_ne_u32 vcc, 0, v0')
    def checkpoint(v=0):
        if WH or (RV and v): a(f'ds_add_u32 v{LA}, v1 offset:{PROG}')
        if WOS: a(f'ds_add_u32 v{LA}, v1 offset:{MODE}')
    def ensure(n):
        if st['landed'] < n:
            a(f's_waitcnt vmcnt({st["issued"]-1-n})'); st['landed'] = n
    for i in range(W0): issue()
    srd(44, 12, 's57', 1 << 20)
    wsb()
    a('s_lshl_b32 s59, s35, 13'); a('s_lshl_b32 s60, s39, 9'); a('s_add_u32 s59, s59, s60'); a(f's_add_u32 s59, s59, {WS_O}')
    srd(48, 32, 's59', 512)
    pre = sel2_ops(SEL, TMP)
    pre += [f'v_and_b32 v{LA}, 31, v0', f'v_lshlrev_b32 v{LA}, 4, v{LA}',
            f'v_mov_b32 v{RMAX}, 0xff800000',
            's_mov_b32 s60, 0xcccccccc', 's_mov_b32 s61, 0xcccccccc', 's_mov_b32 s62, 0xaaaaaaaa', 's_mov_b32 s63, 0xaaaaaaaa',
            f'v_lshrrev_b32 v{OG}, 5, v0', f'v_lshlrev_b32 v{OG}, 8, v{OG}', f'v_and_b32 v{OA}, 15, v0', f'v_lshlrev_b32 v{OA}, 4, v{OA}',
            f'v_add_u32 v{OG}, v{OG}, v{OA}', f'v_bfe_u32 v{OA}, v0, 4, 1', f'v_lshlrev_b32 v{OA}, 3, v{OA}', f'v_add_u32 v{OG}, v{OG}, v{OA}',
            's_lshl_b32 s59, s3, 10', f'v_add_u32 v{OA}, s59, v1']
    for o in pre: a(o)
    while st['issued'] < P:
        issue()
        if QP and st['issued'] == QP: a(f'ds_write_b32 v{OA}, v{RMAX} offset:{OP}')
        if CS == 2 and st['issued'] in (6, 12, 24, 40): stamp(4 + (6, 12, 24, 40).index(st['issued']))
    stamp(1)
    a('s_barrier')
    a(f'ds_read_b128 {vr(Q)}, v{LA} offset:{QB}')
    a('s_lshl_b32 s59, s3, 2')
    a(f'v_mov_b32 v{LA}, s59')
    stamp(2)
    a('s_mov_b64 vcc, 0')
    a('s_waitcnt lgkmcnt(0)')

    T = [TMP, TMP + 1, TMP + 2, TMP + 3]; RB = TMP + 4; RC = TMP + 5; RD0 = TMP + 6; RD1 = TMP + 7; RE0 = TMP + 8; RE1 = TMP + 9
    class KP:
        def __init__(s): s.q = []; s.since = 0
        def emit(s, o):
            a(o); s.since += 1
            if s.q and s.since >= 2:
                a(s.q.pop(0)); s.since = 0
        def flush(s):
            while s.q: a(s.q.pop(0))
        def step(s, n):
            i = n & 31
            if (i & 1) == 0:
                while s.q and any(f'v{T[i&3]}' in o.replace(',', ' ').split() or f'v{T[(i+1)&3]}' in o.replace(',', ' ').split() for o in s.q):
                    a(s.q.pop(0))
            t = T[i & 3]; k = slot_reg(n)
            for r in range(4):
                s.emit(f'v_dot2_f32_bf16 v{t}, v{k+r}, v{Q+r}, ' + ('0' if r == 0 else f'v{t}'))
            if i & 1:
                ta, tb = T[(i - 1) & 3], t
                m = [f'v_permlane16_swap_b32 v{ta}, v{tb}', f'v_add_f32 v{ta}, v{ta}, v{tb}']
                b1 = (i >> 1) & 1
                m.append(f'v_add_f32_dpp v{RB}, v{ta}, v{ta} row_ror:8 row_mask:0xf bank_mask:' + ('0xc' if b1 else '0xf'))
                if b1:
                    b2 = (i >> 2) & 1
                    m.append(f'v_add_f32_dpp v{RC}, v{RB}, v{RB} row_half_mirror row_mask:0xf bank_mask:' + ('0xa' if b2 else '0xf'))
                    if b2:
                        b3 = (i >> 3) & 1
                        m.append(f'v_add_f32_dpp v{RD1 if b3 else RD0}, v{RC}, v{RC} quad_perm:[2,3,0,1] row_mask:0xf bank_mask:0xf')
                        if b3:
                            m.append(f'v_cndmask_b32 v{RD0}, v{RD0}, v{RD1}, s[60:61]')
                            b4 = (i >> 4) & 1
                            m.append(f'v_add_f32_dpp v{RE1 if b4 else RE0}, v{RD0}, v{RD0} quad_perm:[1,0,3,2] row_mask:0xf bank_mask:0xf')
                            if b4:
                                m.append(f'v_cndmask_b32 v{RE0}, v{RE0}, v{RE1}, s[62:63]')
                                m.append(f'v_cvt_pk_bf16_f32 v{RE0}, v{RE0}, v{RE0}')
                                m.append(f'v_lshlrev_b32 v{SC+7}, 16, v{RE0}')
                                m.append(f'v_max_f32 v{RMAX}, v{RMAX}, v{SC+7}')
                s.q += m
    def shift_sc():
        for k in range(7): a(f'v_mov_b32 v{SC+k}, v{SC+k+1}')

    kp = KP()
    tot = 64 + LK - P
    for n in range(64):
        if n == 32: kp.flush(); a(f'v_mov_b32 v{SC+6}, v{SC+7}')
        if CS == 1 and n in (8, 24, 40, 56): stamp(4 + (n - 8) // 16); print('CS', n, 'issued', st['issued'])
        ensure(n)
        kp.step(n)
        if n >= 32: sample(n)
        want = max(P + min(n // CU + 1, tot), n + 1 + LK)
        while st['issued'] < want and prev_user(st['issued']) <= n:
            if n == 63: kp.flush()
            issue()
    kp.flush()
    assert st['issued'] == 64 + LK, st
    checkpoint()
    stamp(3)
    a('s_mov_b32 s59, 0')
    a.label('L_kloop')
    st['landed'] = st['issued'] - 1 - WM
    kp = KP()
    shift_sc()
    for n in range(64, 96):
        assert st['landed'] >= n
        kp.step(n)
        sample(n)
        if n == 95: kp.flush()
        if CKH and n == 79: checkpoint()
        issue()
    checkpoint()
    a('s_add_u32 s59, s59, 1')
    a('s_cmp_lt_u32 s59, 5')
    a('s_cbranch_scc1 L_kloop')
    st['issued'] += 128; st['landed'] += 128
    kp = KP()
    shift_sc()
    for n in range(224, 256):
        assert st['landed'] >= n
        kp.step(n)
        sample(n)
        if CKH and n == 239: checkpoint()
        if n < 255: issue()
    kp.flush()
    checkpoint()
    if CS in (0, 3): stamp(4)
    sm = ['@issue'] + wave_reduce('v_max_f32', RMAX, TMP)
    sm.append(f'v_mov_b32 v{TMP+1}, {CSC:#x}')
    sm.append(f'v_mul_f32 v{TMP+2}, v{RMAX}, v{TMP+1}')
    for k in range(8): sm.append(f'v_fma_f32 v{SC+k}, v{SC+k}, v{TMP+1}, -v{TMP+2}')
    for k in range(8): sm.append(f'v_exp_f32 v{SC+k}, v{SC+k}')
    sm.append('@issue')
    sm.append(f'v_add_f32 v{LB}, v{SC}, v{SC+1}')
    for k in range(2, 8): sm.append(f'v_add_f32 v{LB}, v{LB}, v{SC+k}')
    for k in range(8): sm.append(f'v_mov_b32 v{TMP+k}, v{SC+k}')
    for k in range(8): sm.append(f'v_permlane32_swap_b32 v{SC+k}, v{TMP+k}')
    for k in range(8): sm.append(f'v_cvt_pk_bf16_f32 v{SC+k}, v{SC+k}, v{TMP+k}')
    sm.append('@issue')
    sm += wave_reduce('v_add_f32', LB, TMP)
    sm.append(f'ds_write2_b32 v{LA}, v{RMAX}, v{LB} offset0:{ML//4 - 1024} offset1:{ML//4 - 1024 + 4}' if False else f'v_add_u32 v{TMP}, {ML}, v{LA}')
    sm.append(f'ds_write2_b32 v{TMP}, v{RMAX}, v{LB} offset0:0 offset1:4')
    sm.append(f'v_readlane_b32 s64, v{SC}, {rev5(0)}')
    sm.append(f'v_readlane_b32 s65, v{SC}, {rev5(1)}')
    for k in range(8): sm.append(f'v_mov_b32 v{ACC+k}, 0')
    for r in range(4): sm.append(f'v_perm_b32 v{S0+r}, s64, s64, v{SEL+r}')
    sm.append(f'v_mov_b32 v{LB}, 1'); sm.append(f'v_mov_b32 v{RMAX}, 0')
    for o in sm:
        if o == '@issue':
            if st['issued'] < 256 + LV: issue()
        else: a(o)
    while st['issued'] < 256 + LV: issue()
    if CS in (0, 3): stamp(5)
    a('s_mov_b32 s59, 0')
    if EW: a('s_mov_b64 vcc, 0'); st['inv'] = 1
    a.label('L_vloop')
    st['landed'] = st['issued'] - 1 - max(WM, EW)
    for i in range(32):
        j = i + 2
        assert st['landed'] >= 256 + i
        if not VX & 1:
            a(f'v_readlane_b32 s{64 + (i & 1)}, v{SC + (1 if j >= 32 else 0)}, {rev5(j & 31)}')
            sp = 64 + ((i + 1) & 1)
            for r in range(4): a(f'v_perm_b32 v{S0 + 4*((i+1)&1) + r}, s{sp}, s{sp}, v{SEL+r}')
        ac = ACC + 4 * (i & 1)
        if not VX & 2: a(f'v_mfma_f32_16x16x32_bf16 {vr(ac)}, {vr(S0 + 4*(i&1))}, {vr(slot_reg(256 + i))}, {vr(ac)}')
        sample(i)
        if CKH and i == 15: checkpoint(1)
        if i == 26: a(f'ds_read_b32 v{CF}, v{LA} offset:{COEF}')
        if i == 31:
            a('s_add_u32 s59, s59, 1')
            if CS == 3:
                for q_ in (2, 4, 6):
                    a(f's_cmp_lg_u32 s59, {q_}'); a(f's_cbranch_scc1 L_vq{q_}'); stamp(q_ // 2); a.label(f'L_vq{q_}')
            a('s_cmp_lt_u32 s59, 8')
            a('s_cbranch_scc0 L_vdone')
            shift_sc()
            checkpoint(1)
            if EW: a(f's_cmp_ge_u32 s59, {ET}'); a('s_cselect_b64 vcc, -1, 0')
        issue()
    a('s_branch L_vloop')
    a.label('L_vdone')
    if CS in (0, 3): stamp(7)
    a('s_waitcnt lgkmcnt(0)')
    a(f'v_readfirstlane_b32 s59, v{CF}')
    for k in range(4): a(f'v_add_f32 v{ACC+k}, v{ACC+k}, v{ACC+4+k}')
    a('s_cmp_eq_u32 s59, -1')
    a('s_cbranch_scc1 L_coefwait')
    a.label('L_coefok')
    for k in range(4): a(f'v_mul_f32 v{ACC+k}, v{CF}, v{ACC+k}')
    a(f'ds_write_b128 v{OA}, {vr(ACC)} offset:{OP}')
    a('s_mov_b64 exec, 1')
    a(f'ds_add_rtn_u32 v{LB}, v{RMAX}, v{LB} offset:{CNT}')
    a('s_mov_b64 exec, -1')
    for w in range(4): a(f'ds_read_b128 {vr(XR+4*w)}, v1 offset:{OP+1024*w}')
    a('s_waitcnt lgkmcnt(4)')
    a(f'v_readfirstlane_b32 s59, v{LB}')
    a('s_cmp_lg_u32 s59, 3')
    a('s_cbranch_scc1 L_sdone')
    a('s_waitcnt lgkmcnt(2)')
    for k in range(4): a(f'v_add_f32 v{XR+k}, v{XR+k}, v{XR+4+k}')
    a('s_waitcnt lgkmcnt(0)')
    for k in range(4): a(f'v_add_f32 v{XR+8+k}, v{XR+8+k}, v{XR+12+k}')
    for k in range(4): a(f'v_add_f32 v{XR+k}, v{XR+k}, v{XR+8+k}')
    a(f'v_cvt_pk_bf16_f32 v{XR}, v{XR}, v{XR+1}')
    a(f'v_cvt_pk_bf16_f32 v{XR+1}, v{XR+2}, v{XR+3}')
    a(f'v_min_u32 v{XR}, -2, v{XR}'); a(f'v_min_u32 v{XR+1}, -2, v{XR+1}')
    a(f'buffer_store_dwordx2 {vr(XR, 2)}, v{OG}, s[48:51], 0 offen sc1')
    if DBG:
        a('s_memrealtime s[86:87]'); a('s_cmp_lg_u32 s37, 5'); a('s_cbranch_scc1 L_sdone')
        a('s_waitcnt lgkmcnt(0)'); a('s_sub_u32 s86, s86, s84'); a('v_mov_b32 v200, s86'); a('s_lshl_b32 s86, s34, 2'); a('v_mov_b32 v201, s86')
        a('global_store_dword v201, v200, s[30:31] offset:32')
    a.label('L_sdone')
    if CS in (0, 3): stamp(6)
    dump_stamps(200)
    a('s_endpgm')
    a.label('L_coefwait')
    a('s_mov_b32 s70, 0')
    a.label('L_coefloop')
    a(f'ds_read_b32 v{CF}, v{LA} offset:{COEF}')
    a('s_add_u32 s70, s70, 1'); a(f's_cmp_gt_u32 s70, {SPIN*8}'); a('s_cbranch_scc1 L_coefok')
    a('s_waitcnt lgkmcnt(0)')
    a(f'v_readfirstlane_b32 s59, v{CF}')
    a('s_cmp_eq_u32 s59, -1')
    a('s_cbranch_scc1 L_coefloop')
    a('s_branch L_coefok')

    a.label('L_helper')
    a('s_mov_b32 s62, 0x05040100'); a('s_mov_b32 s63, 0x07060302')
    a('v_and_b32 v2, 15, v0'); a('v_lshrrev_b32 v3, 4, v0')
    a('s_cmp_eq_u32 s3, 5'); a('s_cbranch_scc1 L_w5')
    if WH: a('s_cmp_gt_u32 s3, 5'); a('s_cbranch_scc1 L_w7')

    def xrow(dst, t):
        a(f'v_lshrrev_b32 v{t}, 2, v2'); a(f'v_lshlrev_b32 v{t}, 1, v{t}'); a(f'v_and_b32 v{dst}, 1, v2'); a(f'v_add_u32 v{dst}, v{dst}, v{t}')
        a(f'v_mul_u32_u24 v{dst}, 896, v{dst}'); a(f'v_lshlrev_b32 v{t}, 4, v3'); a(f'v_add_u32 v{dst}, v{dst}, v{t}')

    def polln(label, srdr, va, offs, D, M0=64, first=None):
        n = len(offs)
        if first is not None:
            for t in range(n):
                a(f'buffer_load_dwordx4 {vr(D+4*t)}, v{va}, {srdr}, {offs[t]}{first}')
            a(f's_branch {label}_w')
        a.label(label)
        for t in range(n):
            a(f's_mov_b64 exec, s[{M0+2*t}:{M0+1+2*t}]')
            a(f'buffer_load_dwordx4 {vr(D+4*t)}, v{va}, {srdr}, {offs[t]} sc1')
        if first is not None: a.label(label + '_w')
        a('s_add_u32 s54, s54, 1')
        a('s_waitcnt vmcnt(0)')
        for t in range(n):
            a(f's_mov_b64 exec, s[{M0+2*t}:{M0+1+2*t}]')
            tagcheck(D + 4 * t, 8, M0 + 2 * t)
        a('s_mov_b64 exec, -1')
        a(f's_or_b64 s[80:81], s[{M0}:{M0+1}], s[{M0+2}:{M0+3}]')
        for t in range(2, n): a(f's_or_b64 s[80:81], s[80:81], s[{M0+2*t}:{M0+1+2*t}]')
        a(f's_cmp_gt_u32 s54, {SPIN}'); a('s_cselect_b64 s[80:81], 0, s[80:81]')
        a('s_cmp_lg_u64 s[80:81], 0')
        a(f's_cbranch_scc1 {label}')

    RAW = 40; XA = 152; BT = 180; AC = 24
    a('s_sub_u32 s56, s2, 16')
    a('s_and_b32 s57, s56, 1'); a('s_lshr_b32 s56, s56, 1')
    a('s_sub_u32 s58, s56, 64')
    a('s_lshr_b32 s59, s58, 1')
    a('s_movk_i32 s64, 3584'); a('s_movk_i32 s66, 256')
    a('s_cmp_lt_u32 s56, 64')
    a('s_cselect_b32 s64, 8192, s64')
    a('s_cselect_b32 s66, 32768, s66')
    a('s_cselect_b32 s59, s56, s59'); a('s_lshl_b32 s59, s59, 7')
    a('s_mul_i32 s65, s64, 25')
    a('s_mul_i32 s60, s64, 224'); a('s_mul_i32 s60, s60, s57'); a('s_add_u32 s59, s59, s60')
    a('s_mul_i32 s67, s64, 223'); a('s_add_u32 s67, s67, 128')
    a('s_lshl_b32 s60, s64, 3'); a('v_mul_u32_u24 v1, s60, v3'); a('v_lshlrev_b32 v9, 3, v2'); a('v_add_u32 v1, v1, v9')
    xrow(10, 9)
    a('s_mul_i32 s60, s57, 448')
    a('s_lshr_b32 s68, s56, 2'); a('s_lshl_b32 s68, s68, 11'); a('s_and_b32 s69, s56, 3'); a('s_lshl_b32 s69, s69, 8'); a('s_add_u32 s68, s68, s69')
    a('s_lshl_b32 s69, s57, 10'); a('s_add_u32 s68, s68, s69'); a(f's_add_u32 s68, s68, {WS_Q}')
    a('s_lshl_b32 s70, s58, 12'); a('s_lshl_b32 s69, s57, 11'); a('s_add_u32 s70, s70, s69'); a(f's_add_u32 s70, s70, {WS_G}')
    a('s_cmp_lt_u32 s56, 64'); a('s_cselect_b32 s68, s68, s70')
    a('s_mov_b32 s61, 0')
    a('s_waitcnt lgkmcnt(0)')
    wsb()
    a(f's_load_dword s4, s[32:33], {WS_EP}')
    a('s_cmp_lt_u32 s2, 16'); a('s_cbranch_scc1 L_nopiece')
    a('s_bitcmp1_b32 s58, 0')
    a('s_cselect_b32 s40, s22, s20'); a('s_cselect_b32 s41, s23, s21')
    a('s_cmp_lt_u32 s56, 64')
    a('s_cselect_b32 s40, s14, s40'); a('s_cselect_b32 s41, s15, s41')
    srd(40, 40, 's59', '0' if noWQ else 's67')
    srd(44, 8, None, 7168)
    for t in range(7):
        a(f'buffer_load_dwordx4 {vr(XA+4*t)}, v10, s[44:47], s60 offen' + (f' offset:{64*t}' if t else ''))
        for j in range(8):
            a(f'buffer_load_dwordx2 {vr(RAW+16*t+2*j, 2)}, v1, s[40:43], s61 offen' + WP_)
            if not (t == 6 and j == 7): a(f's_add_u32 s61, s61, s{64 if j < 7 else 65}')
    a('s_mul_i32 s67, s66, 7'); a('s_add_u32 s67, s67, 256')
    srd(48, 32, 's68', 's67')
    a('s_lshl_b32 s60, s66, 1'); a('v_mul_u32_u24 v1, s60, v3'); a('v_lshlrev_b32 v9, 4, v2'); a('v_add_u32 v1, v1, v9')
    a('s_waitcnt lgkmcnt(0)')
    tag_setup()
    for t in range(7):
        a(f's_waitcnt vmcnt({9*(6-t)})')
        transpose(RAW + 16 * t, BT + 16 * (t & 1))
        for cc in range(4):
            a(f'v_mfma_f32_16x16x32_bf16 {vr(AC+4*cc)}, {vr(XA+4*t)}, {vr(BT+16*(t&1)+4*cc)}, ' + ('0' if t == 0 else vr(AC+4*cc)))
    for i in range(2):
        tagit(RAW + 4 * i, [AC + 4 * cc + i for cc in range(4)])
        a(f'buffer_store_dwordx4 {vr(RAW+4*i)}, v1, s[48:51], ' + ('0' if i == 0 else 's66') + ' offen sc1')
    stamp(1)
    a('s_cmp_eq_u32 s34, 7')
    a('s_cbranch_scc1 L_w4_done')
    a('s_branch L_w4b')
    a.label('L_nopiece')
    a('s_waitcnt lgkmcnt(0)')
    tag_setup()
    a.label('L_w4b')
    a('s_barrier')
    stamp(2)
    WF = 104; RD = 168; DF = 200; GU = 40; FR = 232
    a(f's_mul_i32 s58, s37, {128*896}'); a('s_lshl_b32 s59, s34, 7'); a('s_add_u32 s58, s58, s59')
    srd(40, 16, 's58', 0 if noWO else 127 * 896 + 128)
    a(f's_mul_i32 s58, s37, {64*896}'); a('s_add_u32 s58, s58, s59')
    a('s_cmp_lt_u32 s37, 28'); a(f's_cselect_b32 s60, {0 if noWO else 63*896+128}, 0'); a('s_cselect_b32 s58, s58, 0')
    srd(44, 24, 's58', 's60')
    a(f'v_mul_u32_u24 v1, {8*896}, v3'); a('v_lshlrev_b32 v9, 3, v2'); a('v_add_u32 v1, v1, v9')
    a('s_mov_b32 s59, 0')
    if WOS:
        a('v_mov_b32 v12, 0')
        grp = [('d', 0), ('d', 1), ('o', 0), ('o', 1), ('o', 2), ('o', 3)]
        nl = 0
        for gi, (w_, t) in enumerate(grp):
            if WOS[gi]:
                a('s_mov_b32 s72, 0')
                a.label(f'L_wos{gi}')
                a(f'ds_read_b32 v8, v12 offset:{MODE}')
                a('s_add_u32 s72, s72, 1'); a(f's_cmp_gt_u32 s72, {SPIN}'); a(f's_cbranch_scc1 L_wos{gi}_x')
                a('s_waitcnt lgkmcnt(0)')
                a('v_readfirstlane_b32 s56, v8')
                a(f's_cmp_lt_u32 s56, {32256*WOS[gi]}'); a(f's_cbranch_scc1 L_wos{gi}')
                a.label(f'L_wos{gi}_x')
                a('s_waitcnt lgkmcnt(0)')
            for j in range(8):
                imm = (j & 3) * 896
                if j in (0, 4): a(f's_mov_b32 s59, {(32*t + j)*896}')
                if WOW and nl >= WOW: a(f's_waitcnt vmcnt({WOW-1})')
                nl += 1
                a(f'buffer_load_dwordx2 {vr((RAW if w_ == "o" else RD)+16*t+2*j, 2)}, v1, {"s[40:43]" if w_ == "o" else "s[44:47]"}, s59 offen' + (f' offset:{imm}' if imm else '') + WP_)
        a('s_waitcnt vmcnt(0)')
    else:
      nl = 0
      for t in range(4):
        for j in range(8):
            imm = (j & 3) * 896
            if WOW and nl >= WOW: a(f's_waitcnt vmcnt({WOW-1})')
            nl += 1
            a(f'buffer_load_dwordx2 {vr(RAW+16*t+2*j, 2)}, v1, s[40:43], s59 offen' + (f' offset:{imm}' if imm else '') + WP_)
            if t < 2:
                if WOW and nl >= WOW: a(f's_waitcnt vmcnt({WOW-1})')
                nl += 1
                a(f'buffer_load_dwordx2 {vr(RD+16*t+2*j, 2)}, v1, s[44:47], s59 offen' + (f' offset:{imm}' if imm else '') + WP_)
            if j == 3: a(f's_add_u32 s59, s59, {4*896}')
            if j == 7 and t < 3: a(f's_add_u32 s59, s59, {28*896}')
    a('s_lshl_b32 s58, s37, 13'); a(f's_add_u32 s58, s58, {WS_G}')
    srd(48, 32, 's58', 8192)
    a('v_lshlrev_b32 v10, 4, v0')
    for k in range(16): a(f'v_mov_b32 v{FR+k}, 0')
    for t in range(4):
        a(f's_waitcnt vmcnt({[32, 16, 8, 0][t]})')
        transpose(RAW + 16 * t, WF + 16 * t)
        if t < 2: transpose(RD + 16 * t, DF + 16 * t)
    a('s_cmp_ge_u32 s37, 28'); a('s_cbranch_scc1 L_noffn')
    if noFFN: a('s_branch L_noffn')
    for t in range(8): a(f's_mov_b64 s[{64+2*t}:{65+2*t}], -1')
    a('s_mov_b32 s54, 0'); a('s_mov_b32 s59, 4096')
    polln('L_gupoll', 's[48:51]', 10, [('s59' if t >= 4 else '0') + ' offen' + (f' offset:{1024*(t&3)}' if t & 3 else '') for t in range(8)], GU, first=GP_)
    untag(GU, 32)
    for k in range(8): a(f'v_add_f32 v{16+k}, v{GU+k}, v{GU+8+k}')
    for k in range(8): a(f'v_add_f32 v{24+k}, v{GU+16+k}, v{GU+24+k}')
    rne(16, 16, 16, 32)
    for k in range(8): a(f'v_mul_f32 v{32+k}, {LOG2E ^ 0x80000000:#x}, v{16+k}')
    for k in range(8): a(f'v_exp_f32 v{32+k}, v{32+k}')
    for k in range(8): a(f'v_add_f32 v{32+k}, 1.0, v{32+k}')
    for k in range(8): a(f'v_rcp_f32 v{32+k}, v{32+k}')
    for k in range(8): a(f'v_mul_f32 v{16+k}, v{16+k}, v{32+k}')
    rne(16, 16, 8, 32)
    for k in range(8): a(f'v_mul_f32 v{16+k}, v{16+k}, v{24+k}')
    for k in range(4): a(f'v_cvt_pk_bf16_f32 v{16+k}, v{16+2*k}, v{17+2*k}')
    a(f'v_mul_u32_u24 v9, {HBS}, v3'); a('v_lshlrev_b32 v8, 3, v2'); a('v_add_u32 v9, v9, v8')
    a(f'ds_write_b64 v9, v[16:17] offset:{HB}'); a(f'ds_write_b64 v9, v[18:19] offset:{HB+4*HBS}')
    a('v_lshrrev_b32 v8, 1, v2'); a(f'v_mul_u32_u24 v9, {HBS}, v8'); a('v_and_b32 v8, 1, v2'); a('v_lshlrev_b32 v8, 6, v8'); a('v_add_u32 v9, v9, v8')
    a('v_lshlrev_b32 v8, 4, v3'); a('v_add_u32 v9, v9, v8')
    a(f'ds_read_b128 v[16:19], v9 offset:{HB}')
    a('s_waitcnt lgkmcnt(0)')
    for t in range(2):
        for cc in range(4):
            a(f'v_mfma_f32_16x16x32_bf16 {vr((FR if t == 0 else 40)+4*cc)}, v[16:19], {vr(DF+16*t+4*cc)}, 0')
    for cc in range(4):
        for r in (1, 3): a(f'v_mov_b32 v{FR+4*cc+r}, v{40+4*cc+r}')
    a.label('L_noffn')
    a('s_lshl_b32 s58, s35, 13'); a('s_lshl_b32 s59, s36, 8'); a('s_add_u32 s58, s58, s59'); a(f's_add_u32 s58, s58, {WS_O}')
    srd(44, 32, 's58', 15 * 512 + 256)
    a('s_mul_i32 s58, s37, 1792'); a('s_lshl_b32 s59, s34, 8'); a('s_add_u32 s58, s58, s59'); a(f's_add_u32 s58, s58, {WS_Y}')
    srd(48, 32, 's58', 0)
    a(f'v_mul_u32_u24 v9, {64*1792}, v3'); a('v_lshlrev_b32 v8, 4, v2'); a('v_add_u32 v9, v9, v8')
    a('v_lshlrev_b32 v1, 9, v2'); a('v_lshlrev_b32 v8, 4, v3'); a('v_add_u32 v1, v1, v8')
    a('v_lshlrev_b32 v10, 3, v3')
    a(f's_mov_b32 s59, {32*1792}')
    AF = 40; PA = 56; YR = 72
    a('s_mov_b32 s61, 0')
    for t in range(4): a(f's_mov_b64 s[{64+2*t}:{65+2*t}], 0')
    a.label('L_proj')
    a('s_mov_b32 s72, 0')
    a(f'ds_read_b64 v[12:13], v10 offset:{GMV}')
    a.label('L_ppoll')
    for t in range(4):
        a(f's_mov_b64 exec, s[{64+2*t}:{65+2*t}]')
        a(f'buffer_load_dwordx4 {vr(AF+4*t)}, v1, s[44:47], 0 offen' + (f' offset:{64*t}' if t else '') + ' sc1')
    a('s_mov_b64 exec, -1')
    a('s_add_u32 s72, s72, 1')
    a('s_waitcnt lgkmcnt(0)')
    for k in range(16): a(f'v_mul_f32 v{PA+k}, v{12+((k>>1)&1)}, v{FR+k}')
    a('s_waitcnt vmcnt(0)')
    for t in range(4):
        b = AF + 4 * t
        a(f's_mov_b64 exec, s[{64+2*t}:{65+2*t}]')
        a(f'v_max3_u32 v8, v{b}, v{b+1}, v{b+2}'); a(f'v_max_u32 v8, v8, v{b+3}')
        a(f'v_cmp_eq_u32_e64 s[{64+2*t}:{65+2*t}], -1, v8')
    a('s_mov_b64 exec, -1')
    a('s_or_b64 s[74:75], s[64:65], s[66:67]'); a('s_or_b64 s[76:77], s[68:69], s[70:71]'); a('s_or_b64 s[74:75], s[74:75], s[76:77]')
    a(f's_cmp_gt_u32 s72, {SPIN}'); a('s_cselect_b64 s[74:75], 0, s[74:75]')
    a('s_cmp_lg_u64 s[74:75], 0')
    a('s_cbranch_scc1 L_ppoll')
    for t in range(4):
        for cc in range(4):
            a(f'v_mfma_f32_16x16x32_bf16 {vr(PA+4*cc)}, {vr(AF+4*t)}, {vr(WF+16*t+4*cc)}, {vr(PA+4*cc)}')
    for i in range(2):
        for cc in range(4): a(f'v_add_f32 v{YR+8+cc}, v{PA+4*cc+2*i}, v{PA+4*cc+2*i+1}')
        tagit(YR + 4 * i, [YR + 8 + cc for cc in range(4)])
        a(f'buffer_store_dwordx4 {vr(YR+4*i)}, v9, s[48:51], ' + ('0' if i == 0 else 's59') + ' offen sc1')
    a('s_cmp_eq_u32 s61, 1')
    a('s_cbranch_scc1 L_w4_done')
    a('s_mov_b32 s61, 1')
    a(f's_mov_b32 s50, {7*32*1792 + 256}')
    for t in range(4): a(f's_mov_b64 s[{64+2*t}:{65+2*t}], -1')
    stamp(3)
    a('s_barrier')
    stamp(4)
    a('s_branch L_proj')
    a.label('L_w4_done')
    stamp(6)
    dump_stamps(40)
    a('s_endpgm')

    a.label('L_w5')
    a('v_mov_b32 v8, -1'); a('v_mov_b32 v9, -1'); a('v_mov_b32 v10, -1'); a('v_mov_b32 v11, -1'); a('v_mov_b32 v12, 0')
    a(f'ds_write_b128 v12, v[8:11] offset:{ML}'); a(f'ds_write_b128 v12, v[8:11] offset:{ML+16}'); a(f'ds_write_b128 v12, v[8:11] offset:{COEF}')
    a(f'ds_write_b32 v12, v12 offset:{CNT}')
    if QP: a(f'ds_write_b32 v12, v12 offset:{OP}')
    if WH or RV:
        a('v_mov_b32 v13, 0'); a('v_mov_b32 v14, 0'); a('v_mov_b32 v15, 0')
        a(f'ds_write_b128 v12, v[12:15] offset:{PROG}'); a(f'ds_write_b128 v12, v[12:15] offset:{MODE}')
    a('s_lshl_b32 s59, s35, 13'); a('s_lshl_b32 s60, s39, 9'); a('s_add_u32 s59, s59, s60'); a(f's_add_u32 s59, s59, {WS_O}')
    a('s_lshl_b32 s58, s34, 15'); a('s_lshl_b32 s60, s35, 11'); a('s_add_u32 s58, s58, s60'); a(f's_add_u32 s58, s58, {WS_Q}')
    a('v_lshlrev_b32 v1, 4, v0'); a('v_lshlrev_b32 v13, 3, v0')
    a('s_mul_i32 s57, s34, 896')
    a('s_waitcnt lgkmcnt(0)')
    wsb()
    a(f's_load_dword s4, s[32:33], {WS_EP}')
    srd(48, 32, 's59', 512)
    a('buffer_store_dwordx2 v[8:9], v13, s[48:51], 0 offen sc1')
    srd(40, 32, 's58', 2048)
    srd(44, 8, 's57', 896)
    srd(48, 26, None, 896)
    a('buffer_load_dwordx4 v[40:43], v1, s[44:47], 0 offen')
    a('buffer_load_dwordx4 v[44:47], v1, s[48:51], 0 offen')
    if TV:
        a('s_lshl_b32 s57, s2, 20')
        srd(72, 12, 's57', 64)
        a('buffer_load_dword v48, v12, s[72:75], 0 offen')
    for t in range(2): a(f's_mov_b64 s[{64+2*t}:{65+2*t}], -1')
    a('s_mov_b32 s54, 0')
    a('s_waitcnt lgkmcnt(0)')
    tag_setup()
    a('s_waitcnt vmcnt(0)')
    if QP:
        a('s_mov_b32 s72, 0')
        a.label('L_qwait')
        a(f'ds_read_b32 v16, v12 offset:{OP}')
        a('s_add_u32 s72, s72, 1'); a('s_cmp_gt_u32 s72, 400'); a('s_cbranch_scc1 L_qwait_x')
        a('s_waitcnt lgkmcnt(0)')
        a('v_readfirstlane_b32 s56, v16')
        a('s_cmp_lg_u32 s56, 0xff800000'); a('s_cbranch_scc1 L_qwait')
        a.label('L_qwait_x')
        a('s_waitcnt lgkmcnt(0)')
    polln('L_qpoll', 's[40:43]', 1, ['0 offen', '0 offen offset:1024'], 16)
    untag(16, 8)
    for k in range(4): a(f'v_add_f32 v{16+k}, v{16+k}, v{20+k}')
    a('v_cvt_pk_bf16_f32 v16, v16, v17'); a('v_cvt_pk_bf16_f32 v17, v18, v19')
    a(f'ds_write_b64 v13, v[16:17] offset:{QB}')
    a('s_waitcnt lgkmcnt(0)')
    stamp(1)
    a('s_barrier')
    for k in range(4):
        a(f'v_lshlrev_b32 v{16+2*k}, 16, v{40+k}'); a(f'v_and_b32 v{17+2*k}, 0xffff0000, v{40+k}')
        a(f'v_lshlrev_b32 v{24+2*k}, 16, v{44+k}'); a(f'v_and_b32 v{25+2*k}, 0xffff0000, v{44+k}')
    for k in range(8): a(f'v_mul_f32 v{16+k}, v{16+k}, v{24+k}')
    rne(16, 16, 8, 24)
    for k in range(1, 8): a(f'v_add_f32 v16, v16, v{16+k}')
    for o in wave_reduce('v_add_f32', 16, 17): a(o)
    rne(16, 16, 2, 24)
    a(f'v_mul_f32 v16, {LOG2E ^ 0x80000000:#x}, v16'); a('v_exp_f32 v16, v16'); a('v_add_f32 v16, 1.0, v16'); a('v_rcp_f32 v16, v16')
    rne(16, 16, 2, 24)
    a('v_sub_f32 v18, 1.0, v16')
    rne(18, 18, 2, 24)
    GV = 60; GM = 61
    a(f'v_mov_b32 v{GV}, v16'); a(f'v_lshrrev_b32 v{GM}, 16, v18')
    if RS:
        a('s_and_b32 s58, s35, 7'); a('s_lshl_b32 s58, s58, 12'); a('s_lshr_b32 s57, s35, 3'); a('s_lshl_b32 s57, s57, 8')
        a('s_add_u32 s58, s58, s57'); a('s_add_u32 s58, s58, 0x8000')
    else:
        a('s_lshl_b32 s58, s35, 8'); a(f's_add_u32 s58, s58, {WS_REC}')
    srd(40, 32, 's58', 256)
    a('s_lshl_b32 s57, s39, 4')
    a(f's_mov_b32 s61, {CSC:#x}')
    a('s_mov_b32 s72, 0')
    a.label('L_pollml')
    a(f'ds_read_b128 v[16:19], v12 offset:{ML}'); a(f'ds_read_b128 v[20:23], v12 offset:{ML+16}')
    a('s_add_u32 s72, s72, 1'); a(f's_cmp_gt_u32 s72, {SPIN*8}'); a('s_cbranch_scc1 L_pollml_x')
    a('s_waitcnt lgkmcnt(0)')
    a('v_max3_u32 v24, v16, v17, v18'); a('v_max3_u32 v24, v24, v19, v20'); a('v_max3_u32 v24, v24, v21, v22'); a('v_max_u32 v24, v24, v23')
    a('v_readfirstlane_b32 s56, v24')
    a('s_cmp_eq_u32 s56, -1'); a('s_cbranch_scc1 L_pollml')
    a.label('L_pollml_x')
    a('s_waitcnt lgkmcnt(0)')
    a('v_max_f32 v24, v16, v17'); a('v_max3_f32 v24, v24, v18, v19')
    for k in range(4): a(f'v_sub_f32 v{28+k}, v{16+k}, v24')
    for k in range(4): a(f'v_mul_f32 v{28+k}, s61, v{28+k}')
    for k in range(4): a(f'v_exp_f32 v{28+k}, v{28+k}')
    a('v_mul_f32 v25, v28, v20')
    for k in range(1, 4): a(f'v_fmac_f32 v25, v{28+k}, v{20+k}')
    a(f'v_or_b32 v32, v24, v{GM}'); a('v_mov_b32 v33, v25'); a(f'v_mov_b32 v34, v{TG}'); a(f'v_mov_b32 v35, v{TG}')
    a('s_mov_b64 exec, 1')
    a('buffer_store_dwordx4 v[32:35], v12, s[40:43], s57 offen sc1')
    a('s_mov_b64 exec, -1')
    stamp(2)
    a('v_lshlrev_b32 v14, 4, v2')
    a('v_lshrrev_b32 v15, 1, v2'); a('v_lshlrev_b32 v15, 2, v15')
    if RV:
        a('s_mov_b32 s72, 0')
        a.label('L_rwait')
        a(f'ds_read_b32 v8, v12 offset:{PROG}')
        a('s_add_u32 s72, s72, 1'); a(f's_cmp_gt_u32 s72, {SPIN}'); a('s_cbranch_scc1 L_rwait_x')
        a('s_waitcnt lgkmcnt(0)')
        a('v_readfirstlane_b32 s56, v8')
        a(f's_cmp_lt_u32 s56, {32256*((2*RV + 13) if CKH else (RV + (7 if WH else 0)))}'); a('s_cbranch_scc1 L_rwait')
        a.label('L_rwait_x')
        a('s_waitcnt lgkmcnt(0)')
    a('s_mov_b32 s72, 0')
    a('s_mov_b64 s[64:65], 0xffff')
    a.label('L_recpoll')
    a('s_mov_b64 exec, s[64:65]')
    a('buffer_load_dwordx4 v[36:39], v14, s[40:43], 0 offen sc1')
    a('s_add_u32 s72, s72, 1')
    a('s_waitcnt vmcnt(0)')
    a(f'v_xor_b32 v8, v38, v{TG}'); a(f'v_xor_b32 v9, v39, v{TG}'); a('v_or_b32 v8, v8, v9')
    a('v_cmp_ne_u32_e64 s[64:65], 0, v8')
    a('s_mov_b64 exec, -1')
    a(f's_cmp_gt_u32 s72, {SPIN}'); a('s_cselect_b64 s[64:65], 0, s[64:65]')
    a('s_cmp_lg_u64 s[64:65], 0')
    a('s_cbranch_scc1 L_recpoll')
    a('s_xor_b32 s56, s39, 1')
    a('v_readlane_b32 s58, v36, s56'); a('v_readlane_b32 s59, v37, s56')
    a('v_lshlrev_b32 v8, 16, v36')
    a('s_mov_b64 exec, 0xffff')
    a(f'ds_write_b32 v15, v8 offset:{GMV}')
    a('s_mov_b64 exec, -1')
    a('s_and_b32 s58, s58, 0xffff0000')
    a('v_max_f32 v26, s58, v24')
    a('v_sub_f32 v27, s58, v26'); a('v_sub_f32 v24, v24, v26')
    a('v_mul_f32 v27, s61, v27'); a('v_mul_f32 v24, s61, v24')
    a('v_exp_f32 v27, v27'); a('v_exp_f32 v24, v24')
    a('v_mul_f32 v27, s59, v27'); a('v_fmac_f32 v27, v24, v33')
    a('v_rcp_f32 v27, v27')
    a('v_mul_f32 v27, v27, v24')
    a(f'v_mul_f32 v27, v{GV}, v27')
    for k in range(4): a(f'v_mul_f32 v{28+k}, v27, v{28+k}')
    for k in range(4): a(f'v_min_u32 v{28+k}, -2, v{28+k}')
    a(f'ds_write_b128 v12, v[28:31] offset:{COEF}')
    a('s_waitcnt lgkmcnt(0)')
    stamp(3)
    a('s_cmp_lt_u32 s37, 14')
    a('s_cbranch_scc1 L_fin')
    dump_stamps(40)
    a('s_endpgm')
    a.label('L_fin')
    a(f's_mul_i32 s58, s34, {32*1792}'); a(f's_add_u32 s58, s58, {WS_Y}')
    srd(40, 32, 's58', 32 * 1792)
    a('v_lshrrev_b32 v16, 3, v0'); a('v_mul_u32_u24 v1, 1792, v16'); a('v_and_b32 v16, 7, v0'); a('v_lshlrev_b32 v16, 4, v16'); a('v_add_u32 v1, v1, v16')
    a('s_lshl_b32 s59, s37, 7'); a('v_add_u32 v1, s59, v1')
    for u in range(1, 4): a(f's_mov_b32 s{75+u}, {u*8*1792}')
    a('s_mul_i32 s59, s34, 896')
    srd(44, 28, 's59', 0)
    a('s_lshl_b32 s59, s37, 6'); a('v_add_u32 v13, s59, v13')
    a('v_cmp_gt_u32 vcc, 8, v0'); a(f'v_mov_b32 v16, {OOB:#x}'); a('v_cndmask_b32 v13, v16, v13, vcc')
    a('s_mov_b32 s61, 0')
    for t in range(4): a(f's_mov_b64 s[{64+2*t}:{65+2*t}], 0')
    a.label('L_gather')
    a('s_mov_b32 s54, 0')
    polln('L_gpoll', 's[40:43]', 1, ['0 offen', 's76 offen', 's77 offen', 's78 offen'], 16)
    if UY: untag(16, 16)
    for k in range(4): a(f'v_add_f32 v{16+k}, v{16+k}, v{20+k}')
    for k in range(4): a(f'v_add_f32 v{24+k}, v{24+k}, v{28+k}')
    for k in range(4): a(f'v_add_f32 v{48+k}, v{16+k}, v{24+k}')
    for k in range(4): a(f'v_add_f32_dpp v{48+k}, v{48+k}, v{48+k} row_ror:8 row_mask:0xf bank_mask:0xf')
    for sw in ('v_permlane16_swap_b32', 'v_permlane32_swap_b32'):
        for k in range(4): a(f'v_mov_b32 v{52+k}, v{48+k}')
        for k in range(4): a(f'{sw} v{48+k}, v{52+k}')
        for k in range(4): a(f'v_add_f32 v{48+k}, v{48+k}, v{52+k}')
    a('v_cvt_pk_bf16_f32 v52, v48, v49'); a('v_cvt_pk_bf16_f32 v53, v50, v51')
    a('buffer_store_dwordx2 v[52:53], v13, s[44:47], 0 offen')
    a('s_cmp_eq_u32 s61, 1')
    a('s_cbranch_scc1 L_fin_done')
    a('s_mov_b32 s61, 1')
    a('s_mov_b32 s46, 896')
    for t in range(4): a(f's_mov_b64 s[{64+2*t}:{65+2*t}], -1')
    stamp(4)
    a('s_barrier')
    if B3: a('s_barrier')
    stamp(5)
    a('s_branch L_gather')
    a.label('L_fin_done')
    stamp(6)
    if DBG:
        a('s_memrealtime s[86:87]'); a('s_cmp_lg_u32 s37, 0'); a('s_cbranch_scc1 L_nodbg')
        a('s_waitcnt lgkmcnt(0)'); a('s_sub_u32 s86, s86, s84'); a('v_mov_b32 v70, s86'); a('s_lshl_b32 s86, s34, 2'); a('v_mov_b32 v71, s86')
        a('global_store_dword v71, v70, s[30:31]')
        a.label('L_nodbg')
    a('s_cmp_lg_u32 s2, 0')
    a('s_cbranch_scc1 L_noep')
    a('s_mov_b64 exec, 1')
    a(f'global_store_dword v12, v{TG}, s[32:33] offset:{WS_EP}')
    a('s_mov_b64 exec, -1')
    a.label('L_noep')
    dump_stamps(80)
    a('s_endpgm')

    if WH and WC == 8:
        RN = RM + 1
        a.label('L_w7')
        a('v_mov_b32 v1, 0')
        a('s_getreg_b32 s67, hwreg(HW_REG_XCC_ID, 0, 3)')
        a('s_mov_b32 s57, 0'); a('s_mov_b32 s58, 0'); a('s_mov_b32 s72, 0'); a('s_mov_b32 s68, 0')
        T_ = sum((x & 15) << (4 * k) for k, x in enumerate(XQ or (0,) * 8))
        a('s_lshl_b32 s60, s67, 2'); a(f's_lshr_b32 s66, {T_:#x}, s60'); a('s_bfe_i32 s66, s66, 0x40000')
        a('s_lshl_b32 s59, s67, 13'); a(f's_add_u32 s59, s59, {WS_CTR}')
        a('s_lshr_b32 s60, s2, 3')
        a('v_lshlrev_b32 v13, 2, v0'); a('v_add_u32 v8, s59, v13')
        a('s_lshl_b32 s61, s60, 8'); a('v_add_u32 v9, s61, v8')
        a('s_lshl_b32 s62, 1, s60'); a('s_mov_b32 s63, 0')
        a('v_lshlrev_b32 v12, 8, v0'); a('s_add_u32 s59, s59, 384'); a('v_add_u32 v12, s59, v12')
        a('v_and_b32 v10, 1, v0'); a('v_lshlrev_b32 v10, 12, v10'); a('s_lshl_b32 s60, s67, 2'); a('s_add_u32 s60, s60, 0x2000'); a('v_add_u32 v10, s60, v10')
        a('s_and_b32 s60, s67, 1'); a('s_lshl_b32 s60, s60, 12'); a('s_add_u32 s60, s60, 0x2000'); a('v_add_u32 v11, s60, v13')
        a('s_lshl_b32 s64, 1, s67'); a('s_xor_b32 s64, s64, 0xff'); a('s_mov_b32 s65, 0')
        a('s_waitcnt lgkmcnt(0)')
        wsb()
        a(f's_load_dword s4, s[32:33], {WS_EP}')
        a('global_store_dword v9, v1, s[32:33]')
        a('s_waitcnt lgkmcnt(0)')
        a('s_add_u32 s4, s4, 0x01010101'); a('s_or_b32 s4, s4, 0x100'); a('s_andn2_b32 s4, s4, 0xff'); a('v_mov_b32 v3, s4')
        a('s_barrier')
        a.label('L_w7poll')
        a(f'ds_read_b128 v[4:7], v1 offset:{PROG}')
        a('s_add_u32 s72, s72, 1'); a(f's_cmp_gt_u32 s72, {SPIN*8}'); a('s_cbranch_scc1 L_end')
        a('s_waitcnt lgkmcnt(0)')
        a('v_min_u32 v4, v4, v5'); a('v_min3_u32 v4, v4, v6, v7')
        a('v_readfirstlane_b32 s59, v4')
        a('s_cmp_lt_u32 s59, s57'); a('s_cbranch_scc1 L_w7poll')
        a('s_mov_b64 exec, s[62:63]')
        a('global_store_dword v8, v3, s[32:33]')
        a('s_mov_b64 exec, -1')
        a('global_load_dword v2, v8, s[32:33]' + BL_)
        a('s_add_u32 s57, s57, 32256')
        a('s_and_b32 s60, s58, 3'); a('s_add_u32 s60, s60, s66'); a('s_ashr_i32 s60, s60, 2')
        a('s_waitcnt vmcnt(0)')
        a('v_cmp_eq_u32 vcc, v2, v3')
        a('v_readlane_b32 s61, v2, 32')
        a('v_add_u32 v8, 0x100, v8')
        a('s_andn2_b32 s59, vcc_lo, s62')
        a('s_bcnt1_i32_b32 s59, s59')
        a('s_sub_u32 s61, s61, s4'); a('s_cmp_lt_u32 s61, 0x40'); a('s_cselect_b32 s68, s61, s68')
        a('s_cmp_eq_u32 s68, 0'); a('s_cselect_b32 s61, 32, s68')
        a('s_add_u32 s60, s60, s61'); a('s_add_u32 s60, s60, s59')
        if not THS: a(f's_cmp_ge_i32 s60, {TH+32}'); a('s_cselect_b32 s60, 1, 0')
        for k in range(4): a(f'v_mov_b32 v{4+k}, s60')
        a(f'ds_write_b128 v1, v[4:7] offset:{MODE}')
        if XT:
            TT = sum((x & 15) << (4 * k) for k, x in enumerate(XT))
            a(f's_and_b32 s60, s58, {RM}'); a('s_lshl_b32 s60, s60, 8'); a('s_or_b32 s60, s60, s59')
            a(f's_cmp_lg_u32 s60, {RO*256+R0}'); a('s_cbranch_scc1 L_w7n')
            a('s_mov_b64 exec, 3')
            a('global_store_dword v10, v3, s[32:33] sc1')
            a('s_mov_b64 exec, s[64:65]')
            a('global_load_dword v2, v11, s[32:33]' + CP_)
            a('s_waitcnt vmcnt(0)')
            a('v_cmp_eq_u32 vcc, v2, v3')
            a(f's_mov_b64 exec, {(1 << RN) - 1}')
            a('s_bcnt1_i32_b64 s59, vcc')
            a('s_lshl_b32 s59, s59, 2'); a(f's_lshr_b32 s59, {TT:#x}, s59'); a('s_bfe_i32 s59, s59, 0x40000')
            a('s_add_u32 s59, s59, 32'); a('s_add_u32 s59, s59, s4')
            a('v_mov_b32 v2, s59')
            a('global_store_dword v12, v2, s[32:33]')
            a('s_mov_b64 exec, -1')
            a.label('L_w7n')
            a('v_add_u32 v10, 0x80, v10'); a('v_add_u32 v11, 0x80, v11'); a('v_add_u32 v12, 0x100, v12')
        a('s_add_u32 s58, s58, 1')
        a(f's_cmp_lt_u32 s58, {NCK}'); a('s_cbranch_scc1 L_w7poll')
        a('s_waitcnt lgkmcnt(0)')
    elif WH and WC == 7:
        a.label('L_w7')
        a('v_mov_b32 v1, 0')
        a('s_getreg_b32 s59, hwreg(HW_REG_XCC_ID, 0, 3)')
        a('s_mov_b32 s57, 0'); a('s_mov_b32 s58, 0'); a('s_mov_b32 s72, 0')
        if XBI:
            T_ = sum((x & 15) << (4 * k) for k, x in enumerate(XBI))
            a('s_lshl_b32 s60, s59, 2'); a(f's_lshr_b32 s66, {T_:#x}, s60'); a('s_bfe_i32 s66, s66, 0x40000')
        a('s_lshl_b32 s59, s59, 12'); a(f's_add_u32 s59, s59, {WS_CTR}')
        a('s_lshr_b32 s60, s2, 3')
        a('v_lshlrev_b32 v8, 2, v0'); a('v_add_u32 v8, s59, v8')
        a('s_lshl_b32 s61, s60, 7'); a('v_add_u32 v9, s61, v8')
        a('s_lshl_b32 s62, 1, s60'); a('s_mov_b32 s63, 0')
        a('s_not_b32 s64, s62'); a('s_mov_b32 s65, 0')
        a('s_mov_b64 exec, 0xffffffff' if False else 's_mov_b32 exec_hi, 0')
        a('s_waitcnt lgkmcnt(0)')
        wsb()
        a(f's_load_dword s4, s[32:33], {WS_EP}')
        a('global_store_dword v9, v1, s[32:33]')
        a('s_waitcnt lgkmcnt(0)')
        a('s_add_u32 s4, s4, 0x01010101'); a('s_or_b32 s4, s4, 1'); a('v_mov_b32 v3, s4')
        a('s_barrier')
        a.label('L_w7poll')
        a(f'ds_read_b128 v[4:7], v1 offset:{PROG}')
        a('s_add_u32 s72, s72, 1'); a(f's_cmp_gt_u32 s72, {SPIN*8}'); a('s_cbranch_scc1 L_end')
        a('s_waitcnt lgkmcnt(0)')
        a('v_min_u32 v4, v4, v5'); a('v_min3_u32 v4, v4, v6, v7')
        a('v_readfirstlane_b32 s59, v4')
        a('s_cmp_lt_u32 s59, s57'); a('s_cbranch_scc1 L_w7poll')
        a('s_mov_b64 exec, s[62:63]')
        a('global_store_dword v8, v3, s[32:33]')
        a('s_mov_b64 exec, s[64:65]')
        a('global_load_dword v2, v8, s[32:33]' + BL_)
        a('s_add_u32 s57, s57, 32256'); a('s_add_u32 s58, s58, 1')
        a('s_waitcnt vmcnt(0)')
        a('v_cmp_eq_u32 vcc, v2, v3')
        a('s_mov_b32 exec_lo, -1')
        a('v_add_u32 v8, 0x80, v8')
        a('s_bcnt1_i32_b64 s59, vcc')
        if XBI: a('s_add_u32 s59, s59, s66')
        a(f's_cmp_ge_i32 s59, {TH}'); a('s_cselect_b32 s56, 1, 0')
        for k in range(4): a(f'v_mov_b32 v{4+k}, s56')
        a(f'ds_write_b128 v1, v[4:7] offset:{MODE}')
        a(f's_cmp_lt_u32 s58, {NCK}'); a('s_cbranch_scc1 L_w7poll')
        a('s_waitcnt lgkmcnt(0)')
    elif WH and WC == 6:
        a.label('L_w7')
        a('v_mov_b32 v1, 0'); a('v_mov_b32 v2, 1')
        a('s_getreg_b32 s59, hwreg(HW_REG_XCC_ID, 0, 3)')
        a('s_mov_b32 s57, 0'); a('s_mov_b32 s58, 0'); a('s_mov_b32 s72, 0')
        a('s_lshl_b32 s59, s59, 8'); a(f's_add_u32 s59, s59, {WS_CTR+256}')
        a('v_lshlrev_b32 v9, 2, v0'); a(f'v_add_u32 v9, {WS_CTR}, v9')
        a('v_lshlrev_b32 v8, 2, v0'); a('v_add_u32 v8, s59, v8')
        a('s_mov_b64 exec, 0xffff')
        a('s_waitcnt lgkmcnt(0)')
        wsb()
        a('global_load_dword v10, v8, s[32:33]')
        if XB: a('global_load_dword v11, v9, s[32:33]')
        a('s_waitcnt vmcnt(0)')
        a('s_mov_b64 exec, 1')
        a('s_barrier')
        a.label('L_w7poll')
        a(f'ds_read_b128 v[4:7], v1 offset:{PROG}')
        a('s_add_u32 s72, s72, 1'); a(f's_cmp_gt_u32 s72, {SPIN*8}'); a('s_cbranch_scc1 L_end')
        a('s_waitcnt lgkmcnt(0)')
        a('v_min_u32 v4, v4, v5'); a('v_min3_u32 v4, v4, v6, v7')
        a('v_readfirstlane_b32 s59, v4')
        a('s_cmp_lt_u32 s59, s57'); a('s_cbranch_scc1 L_w7poll')
        a('global_atomic_add v3, v8, v2, s[32:33] sc0')
        a('v_readlane_b32 s60, v10, s58')
        if XB: a('v_readlane_b32 s61, v11, s58')
        a('s_add_u32 s57, s57, 32256'); a('s_add_u32 s58, s58, 1')
        a('s_waitcnt vmcnt(0)')
        a('v_readfirstlane_b32 s59, v3')
        a('v_add_u32 v8, 4, v8')
        a('s_sub_u32 s59, s59, s60')
        a('s_ashr_i32 s60, s59, 16'); a('s_and_b32 s59, s59, 0xffff')
        a('s_add_u32 s60, s60, s59')
        a(f's_cmp_ge_i32 s60, {TH}'); a('s_cselect_b32 s56, 1, 0')
        for k in range(4): a(f'v_mov_b32 v{4+k}, s56')
        a(f'ds_write_b128 v1, v[4:7] offset:{MODE}')
        if XB:
            a(f's_cmp_lg_u32 s59, {XR_}'); a('s_cbranch_scc1 L_w7n')
            a('global_atomic_add v3, v9, v2, s[32:33] sc0 sc1')
            a('s_waitcnt vmcnt(0)')
            a('v_subrev_u32 v3, s61, v3'); a('v_min_u32 v3, 7, v3')
            a(f'v_mul_u32_u24 v3, {2*XB<<16}, v3'); a(f'v_subrev_u32 v3, {7*XB<<16}, v3')
            a('global_atomic_add v8, v3, s[32:33]')
            a.label('L_w7n')
            a('v_add_u32 v9, 4, v9')
        a(f's_cmp_lt_u32 s58, {NCK}'); a('s_cbranch_scc1 L_w7poll')
        a('s_waitcnt lgkmcnt(0)')
    elif WH and WC:
        a.label('L_w7')
        a('v_mov_b32 v1, 0'); a('v_mov_b32 v2, 1')
        a('s_mov_b64 exec, 1')
        a('s_mov_b32 s57, 0'); a('s_mov_b32 s58, 0'); a('s_mov_b32 s72, 0')
        a('s_waitcnt lgkmcnt(0)')
        wsb()
        a(f's_load_dword s4, s[32:33], {WS_EP}')
        a('s_lshr_b32 s59, s2, 3'); a('s_lshl_b32 s59, s59, 11'); a(f's_add_u32 s60, s59, {WS_CTR}')
        a('s_and_b32 s59, s2, 7'); a('s_lshl_b32 s61, s59, 2'); a('s_add_u32 s61, s61, s60'); a('v_mov_b32 v8, s61')
        a('s_lshr_b32 s61, 0x80, s59')
        if WC == 5:
            a('s_mov_b64 exec, -1')
            a('s_lshl_b32 s60, s2, 11'); a(f's_add_u32 s60, s60, {WS_MB}')
            a('s_andn2_b32 s62, s2, 7'); a('s_lshl_b32 s62, s62, 11'); a('s_lshl_b32 s56, s59, 2'); a('s_add_u32 s62, s62, s56'); a(f's_add_u32 s62, s62, {WS_MB}')
            a('v_lshlrev_b32 v8, 11, v0'); a('v_add_u32 v8, s62, v8')
            a('s_lshl_b32 s62, 1, s59'); a('s_xor_b32 s62, s62, 0xff'); a('s_mov_b32 s63, 0')
        a('s_waitcnt lgkmcnt(0)')
        a('s_add_u32 s4, s4, 0x01010101'); a('v_mov_b32 v3, s4')
        a('s_mov_b64 exec, 1')
        a('s_barrier')
        a.label('L_w7poll')
        a(f'ds_read_b128 v[4:7], v1 offset:{PROG}')
        a('s_add_u32 s72, s72, 1'); a(f's_cmp_gt_u32 s72, {SPIN*8}'); a('s_cbranch_scc1 L_end')
        a('s_waitcnt lgkmcnt(0)')
        a('v_min_u32 v4, v4, v5'); a('v_min3_u32 v4, v4, v6, v7')
        a('v_readfirstlane_b32 s59, v4')
        a('s_cmp_lt_u32 s59, s57'); a('s_cbranch_scc1 L_w7poll')
        if WC in (1, 3): a('global_store_dword v8, v3, s[32:33]' + WS_)
        if WC == 5:
            a('s_mov_b64 exec, s[62:63]'); a('global_store_dword v8, v3, s[32:33]' + WS_); a('v_add_u32 v8, 0x80, v8'); a('s_mov_b64 exec, 1')
        if WC != 3: a('s_load_dwordx8 s[64:71], s[32:33], s60')
        a(f's_add_u32 s57, s57, {32256*CKS}'); a('s_add_u32 s58, s58, 1'); a('s_add_u32 s60, s60, 128')
        a('s_mov_b32 s56, 0')
        a('s_waitcnt lgkmcnt(0)')
        if WC == 2: a('global_store_dword v8, v3, s[32:33]' + WS_)
        for k in range(8): a(f's_cmp_eq_u32 s{64+k}, s4'); a('s_addc_u32 s56, s56, s56')
        a('s_andn2_b32 s56, s56, s61'); a('s_bcnt1_i32_b32 s56, s56')
        a(f's_cmp_ge_u32 s56, {TH}'); a('s_cselect_b32 s56, 1, 0')
        if WC != 5: a('v_add_u32 v8, 0x80, v8')
        for k in range(4): a(f'v_mov_b32 v{4+k}, s56')
        a(f'ds_write_b128 v1, v[4:7] offset:{MODE}')
        a(f's_cmp_lt_u32 s58, {NCK}'); a('s_cbranch_scc1 L_w7poll')
        a('s_waitcnt lgkmcnt(0)')
    elif WH:
        a.label('L_w7')
        a('v_mov_b32 v1, 0'); a('v_mov_b32 v2, 1')
        a('s_mov_b64 exec, 1')
        a(f's_mov_b32 s56, {TH}'); a('s_mov_b32 s57, 0'); a('s_mov_b32 s58, 0'); a('s_mov_b32 s72, 0')
        a('s_waitcnt lgkmcnt(0)')
        wsb()
        a(f's_lshr_b32 s59, s2, {GS}'); a('s_lshl_b32 s59, s59, 8'); a(f's_add_u32 s59, s59, {WS_CTR}'); a('v_mov_b32 v8, s59')
        a(f's_and_b32 s59, s2, {(1<<GS)-1}')
        a('s_cmp_lg_u32 s59, 0'); a('s_cbranch_scc1 L_w7b')
        a(f'global_store_dword v8, v1, s[32:33] sc1')
        a.label('L_w7b')
        a('s_barrier')
        a.label('L_w7poll')
        a(f'ds_read_b128 v[4:7], v1 offset:{PROG}')
        a('s_add_u32 s72, s72, 1'); a(f's_cmp_gt_u32 s72, {SPIN*8}'); a('s_cbranch_scc1 L_end')
        a('s_waitcnt lgkmcnt(0)')
        a('v_min_u32 v4, v4, v5'); a('v_min3_u32 v4, v4, v6, v7')
        a('v_readfirstlane_b32 s59, v4')
        a('s_cmp_lt_u32 s59, s57'); a('s_cbranch_scc1 L_w7poll')
        a(f'global_atomic_add v3, v8, v2, s[32:33] sc0 sc1')
        a('s_add_u32 s57, s57, 32256'); a('s_add_u32 s58, s58, 1')
        a('s_waitcnt vmcnt(0)')
        a('v_cmp_le_i32 vcc, s56, v3')
        a(f's_add_u32 s56, s56, {1<<GS}')
        for k in range(4): a(f'v_cndmask_b32 v{4+k}, v1, v2, vcc')
        a(f'ds_write_b128 v1, v[4:7] offset:{MODE}')
        a(f's_cmp_lt_u32 s58, {NCK}'); a('s_cbranch_scc1 L_w7poll')
        a('s_waitcnt lgkmcnt(0)')
    a.label('L_end')
    a('s_endpgm')
    a.raw('.section .rodata,"a"'); a.raw('.p2align 6'); a.raw(f'.amdhsa_kernel {NAME}')
    a.raw('  .amdhsa_next_free_vgpr 256'); a.raw('  .amdhsa_next_free_sgpr 102'); a.raw('  .amdhsa_accum_offset 256')
    a.raw('  .amdhsa_group_segment_fixed_size 0'); a.raw('  .amdhsa_kernarg_size 104'); a.raw('  .amdhsa_user_sgpr_count 2')
    a.raw('  .amdhsa_user_sgpr_kernarg_segment_ptr 1'); a.raw('  .amdhsa_system_sgpr_workgroup_id_x 1'); a.raw('.end_amdhsa_kernel')
    return a.text()

if __name__ == '__main__':
    kw = eval('dict(' + (sys.argv[2] if len(sys.argv) > 2 else '') + ')')
    open(sys.argv[1], 'w').write(gen(**kw))
```

```python
import sys
sys.path.insert(0, 'gen')
from asmlib import Asm

NAME = 'gated_mix__mha_block_cached__swiglu_ffn__decode_kernel'
HEADER = open('gated_mix__mha_block_cached__swiglu_ffn__decode.s.ref').read().split('; Override launch')[0]

QB = 0
OP = 512
ML = 4608
COEF = 4640
CNT = 4656
PROG = 4672
MODE = 4688
GMV = 4704
HB = 4736
HBS = 144
LDS = 8192
WS_EP = 0
WS_CTR = 0x10000
WS_REC = 0x1000
WS_O = 0x20000
WS_Q = 0x80000
WS_Y = 0x100000
WS_G = 0x180000
WS_MB = 0x200000
WS_ST = 0x200000
CSC = 0x3db8aa3b
LOG2E = 0x3fb8aa3b
SPIN = 20000
OOB = 0x40000000

def rev5(i): return int(f'{i:05b}'[::-1], 2)
def vr(b, n=4): return f'v[{b}:{b+n-1}]'

def gen(W=5, LK=7, LV=9, P=54, G=1, stamps=False, PRIO=3, W0=5, noWO=False, noWQ=False, DBG=0, KP_=' nt', VP_=' nt', WP_=' nt', GP_='', WH=0, WP=5, TH=4, GS=3, NCK=15, SMP=(6, 22), WSB=0x3fc00000, B3=1, CS=0, CU=9, noFFN=False, UY=1, TV=0, VX=0, RV=0, QP=0, WC=0, CKS=1, WS_=' sc1', XB=0, XR_=16, EW=0, ET=5, XM=None, XL=None, RS=0, WOW=0, WOS=None, CKH=0, XBI=None, BL_='', XT=None, RM=3, RO=2, R0=16, XQ=None, CP_=' sc1', THS=None, R1=0, R2=0, XBAR=0, LY=0, LP_=' nt', NA=40, EG=0, WE=0):
    NW = 7 if WH else 6
    a = Asm()
    a.raw(HEADER.rstrip('\n'))
    a.raw(f'; @launch grid=(256,1,1) block=({NW*64},1,1) lds={LDS}')
    a.raw('.amdgcn_target "amdgcn-amd-amdhsa--gfx950"')
    a.raw('.text'); a.raw(f'.globl {NAME}'); a.raw('.p2align 8'); a.raw(f'.type {NAME},@function'); a.raw(f'{NAME}:')

    def stamp(k):
        if stamps: a(f's_memrealtime s[{84+2*k}:{85+2*k}]')
    def dump_stamps(tmp):
        if not stamps: return
        a('s_waitcnt lgkmcnt(0)')
        a(f's_mul_i32 s60, s2, {NW}'); a('s_add_u32 s60, s60, s3'); a('s_lshl_b32 s60, s60, 6'); a(f's_add_u32 s60, s60, {WS_ST}')
        a(f'v_mov_b32 v{tmp}, s60')
        for k in range(16): a(f'v_mov_b32 v{tmp+2+k}, s{84+k}')
        for k in range(4): a(f'global_store_dwordx4 v{tmp}, {vr(tmp+2+4*k)}, s[52:53] offset:{16*k}')

    def wsb():
        if stamps: a('s_mov_b64 s[52:53], s[32:33]')
        if WSB: a(f's_add_u32 s32, s32, {WSB:#x}'); a('s_addc_u32 s33, s33, 0')
    def srd(d, plo, off, size):
        if off is None:
            a(f's_mov_b32 s{d}, s{plo}'); a(f's_mov_b32 s{d+1}, s{plo+1}')
        else:
            a(f's_add_u32 s{d}, s{plo}, {off}'); a(f's_addc_u32 s{d+1}, s{plo+1}, 0')
        a(f's_mov_b32 s{d+2}, {size}'); a(f's_mov_b32 s{d+3}, 0x20000')

    def sel2_ops(sel, t):
        L = [f'v_lshrrev_b32 v{t}, 5, v0', f'v_mul_u32_u24 v{t}, 0x202, v{t}', f'v_add_u32 v{t}, 0x100, v{t}',
             f'v_or_b32 v{t+1}, 0xc0c0000, v{t}', f'v_lshlrev_b32 v{t+2}, 16, v{t}', f'v_or_b32 v{t+2}, 0xc0c, v{t+2}',
             f'v_and_b32 v{t+3}, 1, v0', f'v_cmp_eq_u32 vcc, 1, v{t+3}', f'v_cndmask_b32 v{t+1}, v{t+1}, v{t+2}, vcc',
             f'v_lshrrev_b32 v{t+2}, 1, v0', f'v_xor_b32 v{t+3}, v0, v{t+2}', f'v_and_b32 v{t+3}, 8, v{t+3}',
             f'v_and_b32 v{t+2}, 3, v{t+2}', f'v_or_b32 v{t+2}, v{t+2}, v{t+3}', f'v_mov_b32 v{t+3}, 0xc0c0c0c']
        for rr in range(4):
            L += [f'v_cmp_eq_u32 vcc, {rr}, v{t+2}', f'v_cndmask_b32 v{sel+rr}, v{t+3}, v{t+1}, vcc']
        return L

    def wave_reduce(op, v, t):
        L = []
        for r in (8, 4, 2, 1):
            L.append(f'{op}_dpp v{v}, v{v}, v{v} row_ror:{r} row_mask:0xf bank_mask:0xf')
        for sw in ('v_permlane16_swap_b32', 'v_permlane32_swap_b32'):
            L += [f'v_mov_b32 v{t}, v{v}', f'{sw} v{v}, v{t}', f'{op} v{v}, v{v}, v{t}']
        return L

    def rne(dst, src, n, t):
        for k in range(0, n, 2): a(f'v_cvt_pk_bf16_f32 v{t+k//2}, v{src+k}, v{src+k+1}')
        for k in range(0, n, 2):
            a(f'v_lshlrev_b32 v{dst+k}, 16, v{t+k//2}'); a(f'v_and_b32 v{dst+k+1}, 0xffff0000, v{t+k//2}')

    def transpose(tmp, dst):
        for cc in range(4):
            for jj in range(4):
                a(f'v_perm_b32 v{dst+4*cc+jj}, v{tmp+2*(2*jj+1)+(cc>>1)}, v{tmp+2*(2*jj)+(cc>>1)}, s{62+(cc&1)}')

    TG = 4
    def tag_setup():
        a('s_add_u32 s4, s4, 0x01010101')
        a('s_mov_b32 s5, 0xff'); a('s_mov_b32 s6, 0x0c0c0400'); a('s_mov_b32 s7, 0x04000c0c')
        a(f'v_mov_b32 v{TG}, s4'); a('v_mov_b32 v11, 0x80')
        for k in range(1, 4): a(f'v_lshrrev_b32 v{TG+k}, {8*k}, v{TG}')
    def tagit(dst, srcs):
        for k in range(4): a(f'v_bfi_b32 v{dst+k}, s5, v{TG+k}, v{srcs[k]}')
    def untag(d, n):
        for k in range(n): a(f'v_bfi_b32 v{d+k}, s5, v11, v{d+k}')
    def tagcheck(d, t, mask):
        a(f'v_perm_b32 v{t}, v{d+1}, v{d}, s6'); a(f'v_perm_b32 v{t+1}, v{d+3}, v{d+2}, s7')
        a(f'v_or_b32 v{t}, v{t}, v{t+1}')
        a(f'v_cmp_ne_u32_e64 s[{mask}:{mask+1}], v{t}, v{TG}')
        a(f's_wqm_b64 s[{mask}:{mask+1}], s[{mask}:{mask+1}]')

    a('s_cmp_ge_u32 s2, 256')
    a('s_cbranch_scc1 L_end')
    a('s_load_dwordx16 s[8:23], s[0:1], 0')
    a('s_load_dwordx8 s[24:31], s[0:1], 64')
    a('s_load_dwordx2 s[32:33], s[0:1], 96')
    if stamps:
        for k in range(2, 16, 2): a(f's_mov_b64 s[{84+k}:{85+k}], 0')
    stamp(0)
    if DBG: a('s_memrealtime s[84:85]')
    a('v_lshrrev_b32 v1, 6, v0')
    a('v_and_b32 v0, 63, v0')
    a('v_readfirstlane_b32 s3, v1')
    a('s_bfe_u32 s35, s2, 0x40001'); a('s_and_b32 s36, s2, 1')
    a('s_lshr_b32 s34, s2, 5')
    a('s_and_b32 s37, s2, 31')
    a('s_lshl_b32 s39, s34, 1'); a('s_or_b32 s39, s39, s36')
    a('s_cmp_ge_u32 s3, 4')
    a('s_cbranch_scc1 L_helper')

    RING = 40; XR = RING + 128
    NX = max(P - 32, 0)
    assert XR + 4 * NX <= 256
    Q = 2; SEL = 6; SC = 10; TMP = 18; RMAX = 34; LA = 35; LB = 36; CF = 37; OA = 38; OG = 39
    S0 = 18; ACC = 26
    if PRIO: a(f's_setprio {PRIO}')
    a('v_lshlrev_b32 v1, 4, v0')
    a(f's_mul_i32 s56, s3, {G*1024}')
    if XM:
        assert G == 1
        lo, hi = XM
        T_ = 0
        for idx in range(16):
            c, d, a_, b_ = idx & 1, idx >> 1 & 1, idx >> 2 & 1, idx >> 3 & 1
            T_ |= ((a_ & c ^ b_ & d) | (a_ & d ^ b_ & (c ^ d)) << 1) << (2 * idx)
        a(f's_bfe_u32 s66, s2, {0x20000 | lo:#x}'); a(f's_bfe_u32 s67, s2, {0x20000 | hi:#x}')
        a('s_lshl2_add_u32 s66, s67, s66'); a('s_lshl_b32 s66, s66, 1'); a(f's_lshr_b32 s66, {T_:#x}, s66')
        a('s_and_b32 s66, s66, 3'); a('s_lshl_b32 s66, s66, 17')
        a('s_mov_b32 s67, s56'); a('s_mov_b32 s68, s56'); a('s_xor_b32 s56, s56, s66')
    if XL:
        assert G == 1 and not XM
        first = True
        for k, c in enumerate(XL):
            if not c: continue
            a(f's_bitcmp1_b32 s2, {k}'); a(f's_cselect_b32 s{66 if first else 67}, {c << 12:#x}, 0')
            if not first: a('s_xor_b32 s66, s66, s67')
            first = False
        a('s_mov_b32 s67, s56'); a('s_mov_b32 s68, s56'); a('s_xor_b32 s56, s56, s66')
    a('s_mov_b32 s58, s56')
    a('s_lshl_b32 s57, s2, 20')
    a('s_waitcnt lgkmcnt(0)')
    srd(40, 10, 's57', 1 << 20)

    def slot_reg(n):
        if n < NX: return XR + 4 * n
        if P <= n < min(64, P + NX): return XR + 4 * (n - P)
        return RING + 4 * (n % 32)
    def prev_user(n):
        r = slot_reg(n)
        for m in range(n - 1, -1, -1):
            if slot_reg(m) == r: return m
        return -1
    st = {'issued': 0, 'landed': -1}
    def issue(endmode=None):
        n = st['issued']
        if endmode is not None:
            if endmode: a(f's_waitcnt vmcnt({endmode-1})'); st['landed'] = max(st['landed'], n - endmode)
        elif WH and n >= P:
            st['lab'] = st.get('lab', 0) + 1
            a.raw(f'  s_cbranch_vccnz L_em{st["lab"]}'); a.pos += 1
            a.raw(f'  s_waitcnt vmcnt({W-1})')
            a.raw(f'L_em{st["lab"]}:')
            a(f's_waitcnt vmcnt({WH-1})'); st['landed'] = max(st['landed'], n - WH)
        elif EW and st.get('inv'):
            st['lab'] = st.get('lab', 0) + 1
            a.raw(f'  s_cbranch_vccnz L_em{st["lab"]}'); a.pos += 1
            a.raw(f'  s_waitcnt vmcnt({W-1})')
            a.raw(f'L_em{st["lab"]}:')
            a(f's_waitcnt vmcnt({EW-1})'); st['landed'] = max(st['landed'], n - EW)
        elif n >= W0:
            w = WP if n < P else W
            a(f's_waitcnt vmcnt({w-1})'); st['landed'] = max(st['landed'], n - w)
        st['issued'] += 1
        srdr, so = ('s[40:43]', 's56') if n < 256 else ('s[44:47]', 's58')
        j = n % G
        imm = (j % 4) * 1024
        a(f'buffer_load_dwordx4 {vr(slot_reg(n))}, v1, {srdr}, {so} offen' + (f' offset:{imm}' if imm else '') + (KP_ if n < 256 else VP_))
        if XL:
            cn = 's67' if n < 256 else 's68'
            a(f's_add_u32 {cn}, {cn}, 0x1000'); a(f's_xor_b32 {so}, {cn}, s66')
        elif XM and n % 32 == 31:
            cn = 's67' if n < 256 else 's68'
            a(f's_add_u32 {cn}, {cn}, 0x20000'); a(f's_xor_b32 {so}, {cn}, s66')
        elif j == G - 1: a(f's_add_u32 {so}, {so}, {4*G*1024 - (G-1)//4*4096}')
        elif j % 4 == 3: a(f's_add_u32 {so}, {so}, 4096')
    WM = max(W, WH)
    def sample(i):
        if not WH: return
        if (i & 31) in SMP: a(f'ds_read_b32 v0, v{LA} offset:{MODE}')
        if ((i - 2) & 31) in SMP:
            a('s_waitcnt lgkmcnt(0)')
            if THS: a(f'v_cmp_le_i32 vcc, {32 + THS[SMP.index((i - 2) & 31) % len(THS)]}, v0')
            else: a('v_cmp_ne_u32 vcc, 0, v0')
    def checkpoint(v=0):
        if WH or (RV and v): a(f'ds_add_u32 v{LA}, v1 offset:{PROG}')
        if WOS: a(f'ds_add_u32 v{LA}, v1 offset:{MODE}')
    def ensure(n):
        if st['landed'] < n:
            a(f's_waitcnt vmcnt({st["issued"]-1-n})'); st['landed'] = n
    for i in range(W0): issue()
    srd(44, 12, 's57', 1 << 20)
    wsb()
    a('s_lshl_b32 s59, s35, 13'); a('s_lshl_b32 s60, s39, 9'); a('s_add_u32 s59, s59, s60'); a(f's_add_u32 s59, s59, {WS_O}')
    srd(48, 32, 's59', 512)
    pre = sel2_ops(SEL, TMP)
    pre += [f'v_and_b32 v{LA}, 31, v0', f'v_lshlrev_b32 v{LA}, 4, v{LA}',
            f'v_mov_b32 v{RMAX}, 0xff800000',
            's_mov_b32 s60, 0xcccccccc', 's_mov_b32 s61, 0xcccccccc', 's_mov_b32 s62, 0xaaaaaaaa', 's_mov_b32 s63, 0xaaaaaaaa',
            f'v_lshrrev_b32 v{OG}, 5, v0', f'v_lshlrev_b32 v{OG}, 8, v{OG}', f'v_and_b32 v{OA}, 15, v0', f'v_lshlrev_b32 v{OA}, 4, v{OA}',
            f'v_add_u32 v{OG}, v{OG}, v{OA}', f'v_bfe_u32 v{OA}, v0, 4, 1', f'v_lshlrev_b32 v{OA}, 3, v{OA}', f'v_add_u32 v{OG}, v{OG}, v{OA}',
            's_lshl_b32 s59, s3, 10', f'v_add_u32 v{OA}, s59, v1']
    for o in pre: a(o)
    while st['issued'] < P:
        issue()
        if QP and st['issued'] == QP: a(f'ds_write_b32 v{OA}, v{RMAX} offset:{OP}')
        if CS == 2 and st['issued'] in (6, 12, 24, 40): stamp(4 + (6, 12, 24, 40).index(st['issued']))
    stamp(1)
    a('s_barrier')
    a(f'ds_read_b128 {vr(Q)}, v{LA} offset:{QB}')
    a('s_lshl_b32 s59, s3, 2')
    a(f'v_mov_b32 v{LA}, s59')
    stamp(2)
    a('s_mov_b64 vcc, 0')
    a('s_waitcnt lgkmcnt(0)')

    T = [TMP, TMP + 1, TMP + 2, TMP + 3]; RB = TMP + 4; RC = TMP + 5; RD0 = TMP + 6; RD1 = TMP + 7; RE0 = TMP + 8; RE1 = TMP + 9
    class KP:
        def __init__(s): s.q = []; s.since = 0
        def emit(s, o):
            a(o); s.since += 1
            if s.q and s.since >= 2:
                a(s.q.pop(0)); s.since = 0
        def flush(s):
            while s.q: a(s.q.pop(0))
        def step(s, n):
            i = n & 31
            if (i & 1) == 0:
                while s.q and any(f'v{T[i&3]}' in o.replace(',', ' ').split() or f'v{T[(i+1)&3]}' in o.replace(',', ' ').split() for o in s.q):
                    a(s.q.pop(0))
            t = T[i & 3]; k = slot_reg(n)
            for r in range(4):
                s.emit(f'v_dot2_f32_bf16 v{t}, v{k+r}, v{Q+r}, ' + ('0' if r == 0 else f'v{t}'))
            if i & 1:
                ta, tb = T[(i - 1) & 3], t
                m = [f'v_permlane16_swap_b32 v{ta}, v{tb}', f'v_add_f32 v{ta}, v{ta}, v{tb}']
                b1 = (i >> 1) & 1
                m.append(f'v_add_f32_dpp v{RB}, v{ta}, v{ta} row_ror:8 row_mask:0xf bank_mask:' + ('0xc' if b1 else '0xf'))
                if b1:
                    b2 = (i >> 2) & 1
                    m.append(f'v_add_f32_dpp v{RC}, v{RB}, v{RB} row_half_mirror row_mask:0xf bank_mask:' + ('0xa' if b2 else '0xf'))
                    if b2:
                        b3 = (i >> 3) & 1
                        m.append(f'v_add_f32_dpp v{RD1 if b3 else RD0}, v{RC}, v{RC} quad_perm:[2,3,0,1] row_mask:0xf bank_mask:0xf')
                        if b3:
                            m.append(f'v_cndmask_b32 v{RD0}, v{RD0}, v{RD1}, s[60:61]')
                            b4 = (i >> 4) & 1
                            m.append(f'v_add_f32_dpp v{RE1 if b4 else RE0}, v{RD0}, v{RD0} quad_perm:[1,0,3,2] row_mask:0xf bank_mask:0xf')
                            if b4:
                                m.append(f'v_cndmask_b32 v{RE0}, v{RE0}, v{RE1}, s[62:63]')
                                m.append(f'v_cvt_pk_bf16_f32 v{RE0}, v{RE0}, v{RE0}')
                                m.append(f'v_lshlrev_b32 v{SC+7}, 16, v{RE0}')
                                m.append(f'v_max_f32 v{RMAX}, v{RMAX}, v{SC+7}')
                s.q += m
    def shift_sc():
        for k in range(7): a(f'v_mov_b32 v{SC+k}, v{SC+k+1}')

    kp = KP()
    tot = 64 + LK - P
    for n in range(64):
        if n == 32: kp.flush(); a(f'v_mov_b32 v{SC+6}, v{SC+7}')
        if CS == 1 and n in (8, 24, 40, 56): stamp(4 + (n - 8) // 16); print('CS', n, 'issued', st['issued'])
        ensure(n)
        kp.step(n)
        if n >= 32: sample(n)
        want = max(P + min(n // CU + 1, tot), n + 1 + LK)
        while st['issued'] < want and prev_user(st['issued']) <= n:
            if n == 63: kp.flush()
            issue()
    kp.flush()
    assert st['issued'] == 64 + LK, st
    checkpoint()
    stamp(3)
    a('s_mov_b32 s59, 0')
    a.label('L_kloop')
    st['landed'] = st['issued'] - 1 - WM
    kp = KP()
    shift_sc()
    for n in range(64, 96):
        assert st['landed'] >= n
        kp.step(n)
        sample(n)
        if n == 95: kp.flush()
        if CKH and n == 79: checkpoint()
        issue()
    checkpoint()
    a('s_add_u32 s59, s59, 1')
    a('s_cmp_lt_u32 s59, 5')
    a('s_cbranch_scc1 L_kloop')
    st['issued'] += 128; st['landed'] += 128
    kp = KP()
    shift_sc()
    for n in range(224, 256):
        assert st['landed'] >= n
        kp.step(n)
        sample(n)
        if CKH and n == 239: checkpoint()
        if n < 255: issue()
    kp.flush()
    checkpoint()
    if CS in (0, 3): stamp(4)
    sm = ['@issue'] + wave_reduce('v_max_f32', RMAX, TMP)
    sm.append(f'v_mov_b32 v{TMP+1}, {CSC:#x}')
    sm.append(f'v_mul_f32 v{TMP+2}, v{RMAX}, v{TMP+1}')
    for k in range(8): sm.append(f'v_fma_f32 v{SC+k}, v{SC+k}, v{TMP+1}, -v{TMP+2}')
    for k in range(8): sm.append(f'v_exp_f32 v{SC+k}, v{SC+k}')
    sm.append('@issue')
    sm.append(f'v_add_f32 v{LB}, v{SC}, v{SC+1}')
    for k in range(2, 8): sm.append(f'v_add_f32 v{LB}, v{LB}, v{SC+k}')
    for k in range(8): sm.append(f'v_mov_b32 v{TMP+k}, v{SC+k}')
    for k in range(8): sm.append(f'v_permlane32_swap_b32 v{SC+k}, v{TMP+k}')
    for k in range(8): sm.append(f'v_cvt_pk_bf16_f32 v{SC+k}, v{SC+k}, v{TMP+k}')
    sm.append('@issue')
    sm += wave_reduce('v_add_f32', LB, TMP)
    sm.append(f'ds_write2_b32 v{LA}, v{RMAX}, v{LB} offset0:{ML//4 - 1024} offset1:{ML//4 - 1024 + 4}' if False else f'v_add_u32 v{TMP}, {ML}, v{LA}')
    sm.append(f'ds_write2_b32 v{TMP}, v{RMAX}, v{LB} offset0:0 offset1:4')
    sm.append(f'v_readlane_b32 s64, v{SC}, {rev5(0)}')
    sm.append(f'v_readlane_b32 s65, v{SC}, {rev5(1)}')
    for k in range(8): sm.append(f'v_mov_b32 v{ACC+k}, 0')
    for r in range(4): sm.append(f'v_perm_b32 v{S0+r}, s64, s64, v{SEL+r}')
    sm.append(f'v_mov_b32 v{LB}, 1'); sm.append(f'v_mov_b32 v{RMAX}, 0')
    for o in sm:
        if o == '@issue':
            if st['issued'] < 256 + LV: issue()
        else: a(o)
    while st['issued'] < 256 + LV: issue()
    if CS in (0, 3): stamp(5)
    a('s_mov_b32 s59, 0')
    if EW: a('s_mov_b64 vcc, 0'); st['inv'] = 1
    a.label('L_vloop')
    st['landed'] = st['issued'] - 1 - max(WM, EW)
    def vstep(i, n):
        j = i + 2
        if not VX & 1:
            a(f'v_readlane_b32 s{64 + (i & 1)}, v{SC + (1 if j >= 32 else 0)}, {rev5(j & 31)}')
            sp = 64 + ((i + 1) & 1)
            for r in range(4): a(f'v_perm_b32 v{S0 + 4*((i+1)&1) + r}, s{sp}, s{sp}, v{SEL+r}')
        ac = ACC + 4 * (i & 1)
        if n is not None: ensure(n)
        if not VX & 2: a(f'v_mfma_f32_16x16x32_bf16 {vr(ac)}, {vr(S0 + 4*(i&1))}, {vr(slot_reg(256 + i))}, {vr(ac)}')
    for i in range(32):
        assert st['landed'] >= 256 + i
        vstep(i, None)
        sample(i)
        if CKH and i == 15: checkpoint(1)
        if i == 26 and not EG: a(f'ds_read_b32 v{CF}, v{LA} offset:{COEF}')
        if i == 31:
            a('s_add_u32 s59, s59, 1')
            if CS == 3:
                for q_ in (2, 4, 6):
                    a(f's_cmp_lg_u32 s59, {q_}'); a(f's_cbranch_scc1 L_vq{q_}'); stamp(q_ // 2); a.label(f'L_vq{q_}')
            if not EG:
                a('s_cmp_lt_u32 s59, 8')
                a('s_cbranch_scc0 L_vdone')
            shift_sc()
            checkpoint(1)
            if EW: a(f's_cmp_ge_u32 s59, {ET}'); a('s_cselect_b64 vcc, -1, 0')
        issue()
    if EG:
        a('s_cmp_lt_u32 s59, 7')
        a('s_cbranch_scc1 L_vloop')
        st['issued'] += 192; st['landed'] += 192
        for i in range(32):
            while 512 - EG <= st['issued'] < 512: issue(WE)
            vstep(i, 480 + i)
            if st['issued'] < 512 - EG: sample(i)
            if i == 26: a(f'ds_read_b32 v{CF}, v{LA} offset:{COEF}')
            if st['issued'] < 512 - EG: issue()
    else:
        a('s_branch L_vloop')
    a.label('L_vdone')
    if CS in (0, 3): stamp(7)
    a('s_waitcnt lgkmcnt(0)')
    a(f'v_readfirstlane_b32 s59, v{CF}')
    for k in range(4): a(f'v_add_f32 v{ACC+k}, v{ACC+k}, v{ACC+4+k}')
    a('s_cmp_eq_u32 s59, -1')
    a('s_cbranch_scc1 L_coefwait')
    a.label('L_coefok')
    for k in range(4): a(f'v_mul_f32 v{ACC+k}, v{CF}, v{ACC+k}')
    a(f'ds_write_b128 v{OA}, {vr(ACC)} offset:{OP}')
    a('s_mov_b64 exec, 1')
    a(f'ds_add_rtn_u32 v{LB}, v{RMAX}, v{LB} offset:{CNT}')
    a('s_mov_b64 exec, -1')
    for w in range(4): a(f'ds_read_b128 {vr(XR+4*w)}, v1 offset:{OP+1024*w}')
    a('s_waitcnt lgkmcnt(4)')
    a(f'v_readfirstlane_b32 s59, v{LB}')
    a('s_cmp_lg_u32 s59, 3')
    a('s_cbranch_scc1 L_sdone')
    a('s_waitcnt lgkmcnt(2)')
    for k in range(4): a(f'v_add_f32 v{XR+k}, v{XR+k}, v{XR+4+k}')
    a('s_waitcnt lgkmcnt(0)')
    for k in range(4): a(f'v_add_f32 v{XR+8+k}, v{XR+8+k}, v{XR+12+k}')
    for k in range(4): a(f'v_add_f32 v{XR+k}, v{XR+k}, v{XR+8+k}')
    a(f'v_cvt_pk_bf16_f32 v{XR}, v{XR}, v{XR+1}')
    a(f'v_cvt_pk_bf16_f32 v{XR+1}, v{XR+2}, v{XR+3}')
    a(f'v_min_u32 v{XR}, -2, v{XR}'); a(f'v_min_u32 v{XR+1}, -2, v{XR+1}')
    a(f'buffer_store_dwordx2 {vr(XR, 2)}, v{OG}, s[48:51], 0 offen sc1')
    if DBG:
        a('s_memrealtime s[86:87]'); a('s_cmp_lg_u32 s37, 5'); a('s_cbranch_scc1 L_sdone')
        a('s_waitcnt lgkmcnt(0)'); a('s_sub_u32 s86, s86, s84'); a('v_mov_b32 v200, s86'); a('s_lshl_b32 s86, s34, 2'); a('v_mov_b32 v201, s86')
        a('global_store_dword v201, v200, s[30:31] offset:32')
    a.label('L_sdone')
    if CS in (0, 3): stamp(6)
    if XBAR & 1: a('s_barrier')
    dump_stamps(200)
    a('s_endpgm')
    a.label('L_coefwait')
    a('s_mov_b32 s70, 0')
    a.label('L_coefloop')
    a(f'ds_read_b32 v{CF}, v{LA} offset:{COEF}')
    a('s_add_u32 s70, s70, 1'); a(f's_cmp_gt_u32 s70, {SPIN*8}'); a('s_cbranch_scc1 L_coefok')
    a('s_waitcnt lgkmcnt(0)')
    a(f'v_readfirstlane_b32 s59, v{CF}')
    a('s_cmp_eq_u32 s59, -1')
    a('s_cbranch_scc1 L_coefloop')
    a('s_branch L_coefok')

    a.label('L_helper')
    a('s_mov_b32 s62, 0x05040100'); a('s_mov_b32 s63, 0x07060302')
    a('v_and_b32 v2, 15, v0'); a('v_lshrrev_b32 v3, 4, v0')
    a('s_cmp_eq_u32 s3, 5'); a('s_cbranch_scc1 L_w5')
    if WH: a('s_cmp_gt_u32 s3, 5'); a('s_cbranch_scc1 L_w7')

    def xrow(dst, t):
        a(f'v_lshrrev_b32 v{t}, 2, v2'); a(f'v_lshlrev_b32 v{t}, 1, v{t}'); a(f'v_and_b32 v{dst}, 1, v2'); a(f'v_add_u32 v{dst}, v{dst}, v{t}')
        a(f'v_mul_u32_u24 v{dst}, 896, v{dst}'); a(f'v_lshlrev_b32 v{t}, 4, v3'); a(f'v_add_u32 v{dst}, v{dst}, v{t}')

    def polln(label, srdr, va, offs, D, M0=64, first=None, R=0, T=0, pol=' sc1', lim=None):
        n = len(offs)
        if R:
            for t in range(4*n): a(f'v_not_b32 v{D+t}, v{TG+(t&3)}')
        if first is not None:
            for t in range(n):
                a(f'buffer_load_dwordx4 {vr(D+4*t)}, v{va}, {srdr}, {offs[t]}{first}')
            a(f's_branch {label}_w')
        a.label(label)
        for t in range(n):
            a(f's_mov_b64 exec, s[{M0+2*t}:{M0+1+2*t}]')
            a(f'buffer_load_dwordx4 {vr(D+4*t)}, v{va}, {srdr}, {offs[t]}{pol}')
        if first is not None: a.label(label + '_w')
        a('s_add_u32 s54, s54, 1')
        a(f's_waitcnt vmcnt({n*(R-1) if R else 0})')
        for t in range(n):
            a(f's_mov_b64 exec, s[{M0+2*t}:{M0+1+2*t}]')
            if R:
                for k in range(4): a(f'v_mov_b32 v{T+4*t+k}, v{D+4*t+k}')
            tagcheck((T if R else D) + 4 * t, 8, M0 + 2 * t)
        a('s_mov_b64 exec, -1')
        a(f's_or_b64 s[80:81], s[{M0}:{M0+1}], s[{M0+2}:{M0+3}]')
        for t in range(2, n): a(f's_or_b64 s[80:81], s[80:81], s[{M0+2*t}:{M0+1+2*t}]')
        a(f's_cmp_gt_u32 s54, {lim or SPIN*(8 if R else 1)}'); a('s_cselect_b64 s[80:81], 0, s[80:81]')
        a('s_cmp_lg_u64 s[80:81], 0')
        a(f's_cbranch_scc1 {label}')

    RAW = 40; XA = 152; BT = 180; AC = 24
    if LY:
        a('s_and_b32 s34, s2, 7'); a('s_lshr_b32 s37, s2, 3'); a('s_lshr_b32 s35, s2, 4'); a('s_and_b32 s36, s37, 1')
    a('s_sub_u32 s56, s2, 16')
    a('s_and_b32 s57, s56, 1'); a('s_lshr_b32 s56, s56, 1')
    a('s_sub_u32 s58, s56, 64')
    a('s_lshr_b32 s59, s58, 1')
    a('s_movk_i32 s64, 3584'); a('s_movk_i32 s66, 256')
    a('s_cmp_lt_u32 s56, 64')
    a('s_cselect_b32 s64, 8192, s64')
    a('s_cselect_b32 s66, 32768, s66')
    a('s_cselect_b32 s59, s56, s59'); a('s_lshl_b32 s59, s59, 7')
    a('s_mul_i32 s65, s64, 25')
    a('s_mul_i32 s60, s64, 224'); a('s_mul_i32 s60, s60, s57'); a('s_add_u32 s59, s59, s60')
    a('s_mul_i32 s67, s64, 223'); a('s_add_u32 s67, s67, 128')
    a('s_lshl_b32 s60, s64, 3'); a('v_mul_u32_u24 v1, s60, v3'); a('v_lshlrev_b32 v9, 3, v2'); a('v_add_u32 v1, v1, v9')
    xrow(10, 9)
    a('s_mul_i32 s60, s57, 448')
    a('s_lshr_b32 s68, s56, 2'); a('s_lshl_b32 s68, s68, 11'); a('s_and_b32 s69, s56, 3'); a('s_lshl_b32 s69, s69, 8'); a('s_add_u32 s68, s68, s69')
    a('s_lshl_b32 s69, s57, 10'); a('s_add_u32 s68, s68, s69'); a(f's_add_u32 s68, s68, {WS_Q}')
    a('s_lshl_b32 s70, s58, 12'); a('s_lshl_b32 s69, s57, 11'); a('s_add_u32 s70, s70, s69'); a(f's_add_u32 s70, s70, {WS_G}')
    a('s_cmp_lt_u32 s56, 64'); a('s_cselect_b32 s68, s68, s70')
    a('s_mov_b32 s61, 0')
    a('s_waitcnt lgkmcnt(0)')
    wsb()
    a(f's_load_dword s4, s[32:33], {WS_EP}')
    a('s_cmp_lt_u32 s2, 16'); a('s_cbranch_scc1 L_nopiece')
    a('s_bitcmp1_b32 s58, 0')
    a('s_cselect_b32 s40, s22, s20'); a('s_cselect_b32 s41, s23, s21')
    a('s_cmp_lt_u32 s56, 64')
    a('s_cselect_b32 s40, s14, s40'); a('s_cselect_b32 s41, s15, s41')
    srd(40, 40, 's59', '0' if noWQ else 's67')
    srd(44, 8, None, 7168)
    for t in range(7):
        a(f'buffer_load_dwordx4 {vr(XA+4*t)}, v10, s[44:47], s60 offen' + (f' offset:{64*t}' if t else ''))
        for j in range(8):
            a(f'buffer_load_dwordx2 {vr(RAW+16*t+2*j, 2)}, v1, s[40:43], s61 offen' + WP_)
            if not (t == 6 and j == 7): a(f's_add_u32 s61, s61, s{64 if j < 7 else 65}')
    a('s_mul_i32 s67, s66, 7'); a('s_add_u32 s67, s67, 256')
    srd(48, 32, 's68', 's67')
    a('s_lshl_b32 s60, s66, 1'); a('v_mul_u32_u24 v1, s60, v3'); a('v_lshlrev_b32 v9, 4, v2'); a('v_add_u32 v1, v1, v9')
    a('s_waitcnt lgkmcnt(0)')
    tag_setup()
    for t in range(7):
        a(f's_waitcnt vmcnt({9*(6-t)})')
        transpose(RAW + 16 * t, BT + 16 * (t & 1))
        for cc in range(4):
            a(f'v_mfma_f32_16x16x32_bf16 {vr(AC+4*cc)}, {vr(XA+4*t)}, {vr(BT+16*(t&1)+4*cc)}, ' + ('0' if t == 0 else vr(AC+4*cc)))
    for i in range(2):
        tagit(RAW + 4 * i, [AC + 4 * cc + i for cc in range(4)])
        a(f'buffer_store_dwordx4 {vr(RAW+4*i)}, v1, s[48:51], ' + ('0' if i == 0 else 's66') + ' offen sc1')
    stamp(1)
    a('s_cmp_eq_u32 s34, 7')
    a('s_cbranch_scc1 L_w4_done')
    a('s_branch L_w4b')
    a.label('L_nopiece')
    a('s_waitcnt lgkmcnt(0)')
    tag_setup()
    if LY: a('s_cmp_eq_u32 s34, 7'); a('s_cbranch_scc1 L_w4_done')
    a.label('L_w4b')
    a('s_barrier')
    stamp(2)
    WF = 104; RD = 168; DF = 200; GU = 40; FR = 232
    a(f's_mul_i32 s58, s37, {128*896}'); a('s_lshl_b32 s59, s34, 7'); a('s_add_u32 s58, s58, s59')
    srd(40, 16, 's58', 0 if noWO else 127 * 896 + 128)
    a(f's_mul_i32 s58, s37, {64*896}'); a('s_add_u32 s58, s58, s59')
    a('s_cmp_lt_u32 s37, 28'); a(f's_cselect_b32 s60, {0 if noWO else 63*896+128}, 0'); a('s_cselect_b32 s58, s58, 0')
    srd(44, 24, 's58', 's60')
    a(f'v_mul_u32_u24 v1, {8*896}, v3'); a('v_lshlrev_b32 v9, 3, v2'); a('v_add_u32 v1, v1, v9')
    a('s_mov_b32 s59, 0')
    if WOS:
        a('v_mov_b32 v12, 0')
        grp = [('d', 0), ('d', 1), ('o', 0), ('o', 1), ('o', 2), ('o', 3)]
        nl = 0
        for gi, (w_, t) in enumerate(grp):
            if WOS[gi]:
                a('s_mov_b32 s72, 0')
                a.label(f'L_wos{gi}')
                a(f'ds_read_b32 v8, v12 offset:{MODE}')
                a('s_add_u32 s72, s72, 1'); a(f's_cmp_gt_u32 s72, {SPIN}'); a(f's_cbranch_scc1 L_wos{gi}_x')
                a('s_waitcnt lgkmcnt(0)')
                a('v_readfirstlane_b32 s56, v8')
                a(f's_cmp_lt_u32 s56, {32256*WOS[gi]}'); a(f's_cbranch_scc1 L_wos{gi}')
                a.label(f'L_wos{gi}_x')
                a('s_waitcnt lgkmcnt(0)')
            for j in range(8):
                imm = (j & 3) * 896
                if j in (0, 4): a(f's_mov_b32 s59, {(32*t + j)*896}')
                if WOW and nl >= WOW: a(f's_waitcnt vmcnt({WOW-1})')
                nl += 1
                a(f'buffer_load_dwordx2 {vr((RAW if w_ == "o" else RD)+16*t+2*j, 2)}, v1, {"s[40:43]" if w_ == "o" else "s[44:47]"}, s59 offen' + (f' offset:{imm}' if imm else '') + WP_)
        a('s_waitcnt vmcnt(0)')
    else:
      nl = 0
      for t in range(4):
        for j in range(8):
            imm = (j & 3) * 896
            if WOW and nl >= WOW: a(f's_waitcnt vmcnt({WOW-1})')
            nl += 1
            a(f'buffer_load_dwordx2 {vr(RAW+16*t+2*j, 2)}, v1, s[40:43], s59 offen' + (f' offset:{imm}' if imm else '') + WP_)
            if t < 2:
                if WOW and nl >= WOW: a(f's_waitcnt vmcnt({WOW-1})')
                nl += 1
                a(f'buffer_load_dwordx2 {vr(RD+16*t+2*j, 2)}, v1, s[44:47], s59 offen' + (f' offset:{imm}' if imm else '') + WP_)
            if j == 3: a(f's_add_u32 s59, s59, {4*896}')
            if j == 7 and t < 3: a(f's_add_u32 s59, s59, {28*896}')
    a('s_lshl_b32 s58, s37, 13'); a(f's_add_u32 s58, s58, {WS_G}')
    srd(48, 32, 's58', 8192)
    a('v_lshlrev_b32 v10, 4, v0')
    for k in range(16): a(f'v_mov_b32 v{FR+k}, 0')
    for t in range(4):
        a(f's_waitcnt vmcnt({[32, 16, 8, 0][t]})')
        transpose(RAW + 16 * t, WF + 16 * t)
        if t < 2: transpose(RD + 16 * t, DF + 16 * t)
    a('s_cmp_ge_u32 s37, 28'); a('s_cbranch_scc1 L_noffn')
    if noFFN: a('s_branch L_noffn')
    for t in range(8): a(f's_mov_b64 s[{64+2*t}:{65+2*t}], -1')
    a('s_mov_b32 s54, 0'); a('s_mov_b32 s59, 4096')
    polln('L_gupoll', 's[48:51]', 10, [('s59' if t >= 4 else '0') + ' offen' + (f' offset:{1024*(t&3)}' if t & 3 else '') for t in range(8)], GU, first=GP_)
    untag(GU, 32)
    for k in range(8): a(f'v_add_f32 v{16+k}, v{GU+k}, v{GU+8+k}')
    for k in range(8): a(f'v_add_f32 v{24+k}, v{GU+16+k}, v{GU+24+k}')
    rne(16, 16, 16, 32)
    for k in range(8): a(f'v_mul_f32 v{32+k}, {LOG2E ^ 0x80000000:#x}, v{16+k}')
    for k in range(8): a(f'v_exp_f32 v{32+k}, v{32+k}')
    for k in range(8): a(f'v_add_f32 v{32+k}, 1.0, v{32+k}')
    for k in range(8): a(f'v_rcp_f32 v{32+k}, v{32+k}')
    for k in range(8): a(f'v_mul_f32 v{16+k}, v{16+k}, v{32+k}')
    rne(16, 16, 8, 32)
    for k in range(8): a(f'v_mul_f32 v{16+k}, v{16+k}, v{24+k}')
    for k in range(4): a(f'v_cvt_pk_bf16_f32 v{16+k}, v{16+2*k}, v{17+2*k}')
    a(f'v_mul_u32_u24 v9, {HBS}, v3'); a('v_lshlrev_b32 v8, 3, v2'); a('v_add_u32 v9, v9, v8')
    a(f'ds_write_b64 v9, v[16:17] offset:{HB}'); a(f'ds_write_b64 v9, v[18:19] offset:{HB+4*HBS}')
    a('v_lshrrev_b32 v8, 1, v2'); a(f'v_mul_u32_u24 v9, {HBS}, v8'); a('v_and_b32 v8, 1, v2'); a('v_lshlrev_b32 v8, 6, v8'); a('v_add_u32 v9, v9, v8')
    a('v_lshlrev_b32 v8, 4, v3'); a('v_add_u32 v9, v9, v8')
    a(f'ds_read_b128 v[16:19], v9 offset:{HB}')
    a('s_waitcnt lgkmcnt(0)')
    for t in range(2):
        for cc in range(4):
            a(f'v_mfma_f32_16x16x32_bf16 {vr((FR if t == 0 else 40)+4*cc)}, v[16:19], {vr(DF+16*t+4*cc)}, 0')
    for cc in range(4):
        for r in (1, 3): a(f'v_mov_b32 v{FR+4*cc+r}, v{40+4*cc+r}')
    a.label('L_noffn')
    a('s_lshl_b32 s58, s35, 13'); a('s_lshl_b32 s59, s36, 8'); a('s_add_u32 s58, s58, s59'); a(f's_add_u32 s58, s58, {WS_O}')
    srd(44, 32, 's58', 15 * 512 + 256)
    a('s_mul_i32 s58, s37, 1792'); a('s_lshl_b32 s59, s34, 8'); a('s_add_u32 s58, s58, s59'); a(f's_add_u32 s58, s58, {WS_Y}')
    srd(48, 32, 's58', 0)
    a(f'v_mul_u32_u24 v9, {64*1792}, v3'); a('v_lshlrev_b32 v8, 4, v2'); a('v_add_u32 v9, v9, v8')
    a('v_lshlrev_b32 v1, 9, v2'); a('v_lshlrev_b32 v8, 4, v3'); a('v_add_u32 v1, v1, v8')
    a('v_lshlrev_b32 v10, 3, v3')
    a(f's_mov_b32 s59, {32*1792}')
    if LY: a('s_mov_b32 s78, 0x100000'); a(f's_mov_b32 s79, {0x100000 + 32*1792}')
    AF = 40; PA = 56; YR = 72
    a('s_mov_b32 s61, 0')
    for t in range(4): a(f's_mov_b64 s[{64+2*t}:{65+2*t}], 0')
    a.label('L_proj')
    a('s_mov_b32 s72, 0')
    a(f'ds_read_b64 v[12:13], v10 offset:{GMV}')
    AT = 88 if R1 else AF
    if R1:
        for t in range(16): a(f'v_mov_b32 v{AF+t}, -1')
        a('s_waitcnt lgkmcnt(0)')
        for k in range(16): a(f'v_mul_f32 v{PA+k}, v{12+((k>>1)&1)}, v{FR+k}')
    a.label('L_ppoll')
    for t in range(4):
        a(f's_mov_b64 exec, s[{64+2*t}:{65+2*t}]')
        a(f'buffer_load_dwordx4 {vr(AF+4*t)}, v1, s[44:47], 0 offen' + (f' offset:{64*t}' if t else '') + ' sc1')
    a('s_mov_b64 exec, -1')
    a('s_add_u32 s72, s72, 1')
    if not R1:
        a('s_waitcnt lgkmcnt(0)')
        for k in range(16): a(f'v_mul_f32 v{PA+k}, v{12+((k>>1)&1)}, v{FR+k}')
    a(f's_waitcnt vmcnt({4*(R1-1) if R1 else 0})')
    for t in range(4):
        b = AT + 4 * t
        a(f's_mov_b64 exec, s[{64+2*t}:{65+2*t}]')
        if R1:
            for k in range(4): a(f'v_mov_b32 v{b+k}, v{AF+4*t+k}')
        a(f'v_max3_u32 v8, v{b}, v{b+1}, v{b+2}'); a(f'v_max_u32 v8, v8, v{b+3}')
        a(f'v_cmp_eq_u32_e64 s[{64+2*t}:{65+2*t}], -1, v8')
    a('s_mov_b64 exec, -1')
    a('s_or_b64 s[74:75], s[64:65], s[66:67]'); a('s_or_b64 s[76:77], s[68:69], s[70:71]'); a('s_or_b64 s[74:75], s[74:75], s[76:77]')
    a(f's_cmp_gt_u32 s72, {SPIN*(8 if R1 else 1)}'); a('s_cselect_b64 s[74:75], 0, s[74:75]')
    a('s_cmp_lg_u64 s[74:75], 0')
    a('s_cbranch_scc1 L_ppoll')
    for t in range(4):
        for cc in range(4):
            a(f'v_mfma_f32_16x16x32_bf16 {vr(PA+4*cc)}, {vr(AT+4*t)}, {vr(WF+16*t+4*cc)}, {vr(PA+4*cc)}')
    for i in range(2):
        for cc in range(4): a(f'v_add_f32 v{YR+8+cc}, v{PA+4*cc+2*i}, v{PA+4*cc+2*i+1}')
        tagit(YR + 4 * i, [YR + 8 + cc for cc in range(4)])
        if LY: a(f'buffer_store_dwordx4 {vr(YR+4*i)}, v9, s[48:51], s{78+i} offen')
        else: a(f'buffer_store_dwordx4 {vr(YR+4*i)}, v9, s[48:51], ' + ('0' if i == 0 else 's59') + ' offen sc1')
    if LY:
        for i in range(2): a(f'buffer_store_dwordx4 {vr(YR+4*i)}, v9, s[48:51], ' + ('0' if i == 0 else 's59') + ' offen sc1')
    a('s_cmp_eq_u32 s61, 1')
    a('s_cbranch_scc1 ' + ('L_w4_bar' if XBAR & 2 else 'L_w4_done'))
    a('s_mov_b32 s61, 1')
    a(f's_mov_b32 s50, {7*32*1792 + 256 + (0x100000 if LY else 0)}')
    if LY:
        for k in range(4): a(f'v_not_b32 v{YR+k}, v{TG+k}')
        for i in range(2): a(f'buffer_store_dwordx4 {vr(YR)}, v9, s[48:51], s{78+i} offen')
    for t in range(4): a(f's_mov_b64 s[{64+2*t}:{65+2*t}], -1')
    stamp(3)
    a('s_barrier')
    stamp(4)
    a('s_branch L_proj')
    if XBAR & 2:
        a.label('L_w4_bar')
        stamp(6)
        a('s_barrier')
        dump_stamps(104)
        a('s_endpgm')
    a.label('L_w4_done')
    stamp(6)
    dump_stamps(104)
    a('s_endpgm')

    a.label('L_w5')
    a('v_mov_b32 v8, -1'); a('v_mov_b32 v9, -1'); a('v_mov_b32 v10, -1'); a('v_mov_b32 v11, -1'); a('v_mov_b32 v12, 0')
    a(f'ds_write_b128 v12, v[8:11] offset:{ML}'); a(f'ds_write_b128 v12, v[8:11] offset:{ML+16}'); a(f'ds_write_b128 v12, v[8:11] offset:{COEF}')
    a(f'ds_write_b32 v12, v12 offset:{CNT}')
    if QP: a(f'ds_write_b32 v12, v12 offset:{OP}')
    if WH or RV:
        a('v_mov_b32 v13, 0'); a('v_mov_b32 v14, 0'); a('v_mov_b32 v15, 0')
        a(f'ds_write_b128 v12, v[12:15] offset:{PROG}'); a(f'ds_write_b128 v12, v[12:15] offset:{MODE}')
    a('s_lshl_b32 s59, s35, 13'); a('s_lshl_b32 s60, s39, 9'); a('s_add_u32 s59, s59, s60'); a(f's_add_u32 s59, s59, {WS_O}')
    a('s_lshl_b32 s58, s34, 15'); a('s_lshl_b32 s60, s35, 11'); a('s_add_u32 s58, s58, s60'); a(f's_add_u32 s58, s58, {WS_Q}')
    a('v_lshlrev_b32 v1, 4, v0'); a('v_lshlrev_b32 v13, 3, v0')
    a('s_mul_i32 s57, s34, 896')
    a('s_waitcnt lgkmcnt(0)')
    wsb()
    a(f's_load_dword s4, s[32:33], {WS_EP}')
    srd(48, 32, 's59', 512)
    a('buffer_store_dwordx2 v[8:9], v13, s[48:51], 0 offen sc1')
    srd(40, 32, 's58', 2048)
    srd(44, 8, 's57', 896)
    srd(48, 26, None, 896)
    a('buffer_load_dwordx4 v[40:43], v1, s[44:47], 0 offen')
    a('buffer_load_dwordx4 v[44:47], v1, s[48:51], 0 offen')
    if TV:
        a('s_lshl_b32 s57, s2, 20')
        srd(72, 12, 's57', 64)
        a('buffer_load_dword v48, v12, s[72:75], 0 offen')
    for t in range(2): a(f's_mov_b64 s[{64+2*t}:{65+2*t}], -1')
    a('s_mov_b32 s54, 0')
    a('s_waitcnt lgkmcnt(0)')
    tag_setup()
    a('s_waitcnt vmcnt(0)')
    if QP:
        a('s_mov_b32 s72, 0')
        a.label('L_qwait')
        a(f'ds_read_b32 v16, v12 offset:{OP}')
        a('s_add_u32 s72, s72, 1'); a('s_cmp_gt_u32 s72, 400'); a('s_cbranch_scc1 L_qwait_x')
        a('s_waitcnt lgkmcnt(0)')
        a('v_readfirstlane_b32 s56, v16')
        a('s_cmp_lg_u32 s56, 0xff800000'); a('s_cbranch_scc1 L_qwait')
        a.label('L_qwait_x')
        a('s_waitcnt lgkmcnt(0)')
    polln('L_qpoll', 's[40:43]', 1, ['0 offen', '0 offen offset:1024'], 16)
    untag(16, 8)
    for k in range(4): a(f'v_add_f32 v{16+k}, v{16+k}, v{20+k}')
    a('v_cvt_pk_bf16_f32 v16, v16, v17'); a('v_cvt_pk_bf16_f32 v17, v18, v19')
    a(f'ds_write_b64 v13, v[16:17] offset:{QB}')
    a('s_waitcnt lgkmcnt(0)')
    stamp(1)
    a('s_barrier')
    for k in range(4):
        a(f'v_lshlrev_b32 v{16+2*k}, 16, v{40+k}'); a(f'v_and_b32 v{17+2*k}, 0xffff0000, v{40+k}')
        a(f'v_lshlrev_b32 v{24+2*k}, 16, v{44+k}'); a(f'v_and_b32 v{25+2*k}, 0xffff0000, v{44+k}')
    for k in range(8): a(f'v_mul_f32 v{16+k}, v{16+k}, v{24+k}')
    rne(16, 16, 8, 24)
    for k in range(1, 8): a(f'v_add_f32 v16, v16, v{16+k}')
    for o in wave_reduce('v_add_f32', 16, 17): a(o)
    rne(16, 16, 2, 24)
    a(f'v_mul_f32 v16, {LOG2E ^ 0x80000000:#x}, v16'); a('v_exp_f32 v16, v16'); a('v_add_f32 v16, 1.0, v16'); a('v_rcp_f32 v16, v16')
    rne(16, 16, 2, 24)
    a('v_sub_f32 v18, 1.0, v16')
    rne(18, 18, 2, 24)
    GV = 60; GM = 61
    a(f'v_mov_b32 v{GV}, v16'); a(f'v_lshrrev_b32 v{GM}, 16, v18')
    def recoff(d, h, t):
        if RS:
            a(f's_and_b32 s{d}, s{h}, 7'); a(f's_lshl_b32 s{d}, s{d}, 12'); a(f's_lshr_b32 s{t}, s{h}, 3'); a(f's_lshl_b32 s{t}, s{t}, 8')
            a(f's_add_u32 s{d}, s{d}, s{t}'); a(f's_add_u32 s{d}, s{d}, 0x8000')
        else:
            a(f's_lshl_b32 s{d}, s{h}, 8'); a(f's_add_u32 s{d}, s{d}, {WS_REC}')
    recoff(58, 35, 57)
    if LY:
        srd(40, 32, None, 0x10000)
        a('s_lshr_b32 s66, s2, 4'); recoff(67, 66, 57)
        a('s_mov_b32 s66, s58')
        a('s_lshl_b32 s57, s39, 4'); a('s_add_u32 s57, s57, s58')
    else:
        srd(40, 32, 's58', 256)
        a('s_lshl_b32 s57, s39, 4')
    a(f's_mov_b32 s61, {CSC:#x}')
    a('s_mov_b32 s72, 0')
    a.label('L_pollml')
    a(f'ds_read_b128 v[16:19], v12 offset:{ML}'); a(f'ds_read_b128 v[20:23], v12 offset:{ML+16}')
    a('s_add_u32 s72, s72, 1'); a(f's_cmp_gt_u32 s72, {SPIN*8}'); a('s_cbranch_scc1 L_pollml_x')
    a('s_waitcnt lgkmcnt(0)')
    a('v_max3_u32 v24, v16, v17, v18'); a('v_max3_u32 v24, v24, v19, v20'); a('v_max3_u32 v24, v24, v21, v22'); a('v_max_u32 v24, v24, v23')
    a('v_readfirstlane_b32 s56, v24')
    a('s_cmp_eq_u32 s56, -1'); a('s_cbranch_scc1 L_pollml')
    a.label('L_pollml_x')
    a('s_waitcnt lgkmcnt(0)')
    a('v_max_f32 v24, v16, v17'); a('v_max3_f32 v24, v24, v18, v19')
    for k in range(4): a(f'v_sub_f32 v{28+k}, v{16+k}, v24')
    for k in range(4): a(f'v_mul_f32 v{28+k}, s61, v{28+k}')
    for k in range(4): a(f'v_exp_f32 v{28+k}, v{28+k}')
    a('v_mul_f32 v25, v28, v20')
    for k in range(1, 4): a(f'v_fmac_f32 v25, v{28+k}, v{20+k}')
    a(f'v_or_b32 v32, v24, v{GM}'); a('v_mov_b32 v33, v25'); a(f'v_mov_b32 v34, v{TG}'); a(f'v_mov_b32 v35, v{TG}')
    a('s_mov_b64 exec, 1')
    a('buffer_store_dwordx4 v[32:35], v12, s[40:43], s57 offen sc1')
    a('s_mov_b64 exec, -1')
    stamp(2)
    a('v_lshlrev_b32 v14, 4, v2')
    if LY:
        a('v_mov_b32 v8, s66'); a('v_mov_b32 v9, s67'); a('v_cmp_gt_u32 vcc, 16, v0'); a('v_cndmask_b32 v8, v9, v8, vcc'); a('v_add_u32 v14, v14, v8')
    a('v_lshrrev_b32 v15, 1, v2'); a('v_lshlrev_b32 v15, 2, v15')
    if RV:
        a('s_mov_b32 s72, 0')
        a.label('L_rwait')
        a(f'ds_read_b32 v8, v12 offset:{PROG}')
        a('s_add_u32 s72, s72, 1'); a(f's_cmp_gt_u32 s72, {SPIN}'); a('s_cbranch_scc1 L_rwait_x')
        a('s_waitcnt lgkmcnt(0)')
        a('v_readfirstlane_b32 s56, v8')
        a(f's_cmp_lt_u32 s56, {32256*((2*RV + 13) if CKH else (RV + (7 if WH else 0)))}'); a('s_cbranch_scc1 L_rwait')
        a.label('L_rwait_x')
        a('s_waitcnt lgkmcnt(0)')
    a('s_mov_b32 s72, 0')
    if LY: a('s_mov_b32 s64, -1'); a('s_mov_b32 s65, 0')
    else: a('s_mov_b64 s[64:65], 0xffff')
    a.label('L_recpoll')
    a('s_mov_b64 exec, s[64:65]')
    a('buffer_load_dwordx4 v[36:39], v14, s[40:43], 0 offen sc1')
    a('s_add_u32 s72, s72, 1')
    a('s_waitcnt vmcnt(0)')
    a(f'v_xor_b32 v8, v38, v{TG}'); a(f'v_xor_b32 v9, v39, v{TG}'); a('v_or_b32 v8, v8, v9')
    a('v_cmp_ne_u32_e64 s[64:65], 0, v8')
    a('s_mov_b64 exec, -1')
    a(f's_cmp_gt_u32 s72, {SPIN}'); a('s_cselect_b64 s[64:65], 0, s[64:65]')
    a('s_cmp_lg_u64 s[64:65], 0')
    a('s_cbranch_scc1 L_recpoll')
    a('s_xor_b32 s56, s39, 1')
    a('v_readlane_b32 s58, v36, s56'); a('v_readlane_b32 s59, v37, s56')
    a('v_lshlrev_b32 v8, 16, v36')
    a('s_mov_b64 exec, 0xffff')
    a(f'ds_write_b32 v15, v8 offset:{GMV}')
    a('s_mov_b64 exec, -1')
    a('s_and_b32 s58, s58, 0xffff0000')
    a('v_max_f32 v26, s58, v24')
    a('v_sub_f32 v27, s58, v26'); a('v_sub_f32 v24, v24, v26')
    a('v_mul_f32 v27, s61, v27'); a('v_mul_f32 v24, s61, v24')
    a('v_exp_f32 v27, v27'); a('v_exp_f32 v24, v24')
    a('v_mul_f32 v27, s59, v27'); a('v_fmac_f32 v27, v24, v33')
    a('v_rcp_f32 v27, v27')
    a('v_mul_f32 v27, v27, v24')
    a(f'v_mul_f32 v27, v{GV}, v27')
    for k in range(4): a(f'v_mul_f32 v{28+k}, v27, v{28+k}')
    for k in range(4): a(f'v_min_u32 v{28+k}, -2, v{28+k}')
    a(f'ds_write_b128 v12, v[28:31] offset:{COEF}')
    a('s_waitcnt lgkmcnt(0)')
    stamp(3)
    if LY:
        a('s_bfe_u32 s34, s2, 0x30003'); a('s_and_b32 s37, s2, 7'); a('s_lshl_b32 s37, s37, 1'); a('s_lshr_b32 s58, s2, 6')
        a('s_cmp_gt_u32 s58, 1'); a('s_cselect_b32 s58, 16, s58'); a('s_add_u32 s37, s37, s58')
    a('s_cmp_lt_u32 s37, 14')
    a('s_cbranch_scc1 L_fin')
    dump_stamps(40)
    a('s_endpgm')
    a.label('L_fin')
    a(f's_mul_i32 s58, s34, {32*1792}'); a(f's_add_u32 s58, s58, {WS_Y}')
    srd(40, 32, 's58', 32 * 1792)
    if LY: a('s_add_u32 s58, s58, 0x100000'); srd(48, 32, 's58', 32 * 1792)
    a('v_lshrrev_b32 v16, 3, v0'); a('v_mul_u32_u24 v1, 1792, v16'); a('v_and_b32 v16, 7, v0'); a('v_lshlrev_b32 v16, 4, v16'); a('v_add_u32 v1, v1, v16')
    a('s_lshl_b32 s59, s37, 7'); a('v_add_u32 v1, s59, v1')
    for u in range(1, 4): a(f's_mov_b32 s{75+u}, {u*8*1792}')
    a('s_mul_i32 s59, s34, 896')
    srd(44, 28, 's59', 0)
    a('s_lshl_b32 s59, s37, 6'); a('v_add_u32 v13, s59, v13')
    a('v_cmp_gt_u32 vcc, 8, v0'); a(f'v_mov_b32 v16, {OOB:#x}'); a('v_cndmask_b32 v13, v16, v13, vcc')
    a('s_mov_b32 s61, 0')
    for t in range(4): a(f's_mov_b64 s[{64+2*t}:{65+2*t}], 0')
    a.label('L_gather')
    a('s_mov_b32 s54, 0')
    if LY:
        assert not R2
        polln('L_gpolla', 's[48:51]', 1, ['0 offen', 's76 offen', 's77 offen', 's78 offen'], 16, pol=LP_, lim=NA)
        a(f's_cmp_le_u32 s54, {NA}'); a('s_cbranch_scc1 L_gok')
    polln('L_gpoll', 's[40:43]', 1, ['0 offen', 's76 offen', 's77 offen', 's78 offen'], 16, R=R2, T=64)
    if LY: a.label('L_gok')
    YT = 64 if R2 else 16
    if UY: untag(YT, 16)
    for k in range(4): a(f'v_add_f32 v{YT+k}, v{YT+k}, v{YT+4+k}')
    for k in range(4): a(f'v_add_f32 v{YT+8+k}, v{YT+8+k}, v{YT+12+k}')
    for k in range(4): a(f'v_add_f32 v{48+k}, v{YT+k}, v{YT+8+k}')
    for k in range(4): a(f'v_add_f32_dpp v{48+k}, v{48+k}, v{48+k} row_ror:8 row_mask:0xf bank_mask:0xf')
    for sw in ('v_permlane16_swap_b32', 'v_permlane32_swap_b32'):
        for k in range(4): a(f'v_mov_b32 v{52+k}, v{48+k}')
        for k in range(4): a(f'{sw} v{48+k}, v{52+k}')
        for k in range(4): a(f'v_add_f32 v{48+k}, v{48+k}, v{52+k}')
    a('v_cvt_pk_bf16_f32 v52, v48, v49'); a('v_cvt_pk_bf16_f32 v53, v50, v51')
    a('buffer_store_dwordx2 v[52:53], v13, s[44:47], 0 offen')
    a('s_cmp_eq_u32 s61, 1')
    a('s_cbranch_scc1 L_fin_done')
    a('s_mov_b32 s61, 1')
    a('s_mov_b32 s46, 896')
    for t in range(4): a(f's_mov_b64 s[{64+2*t}:{65+2*t}], -1')
    stamp(4)
    a('s_barrier')
    if B3: a('s_barrier')
    stamp(5)
    a('s_branch L_gather')
    a.label('L_fin_done')
    stamp(6)
    if DBG:
        a('s_memrealtime s[86:87]'); a('s_cmp_lg_u32 s37, 0'); a('s_cbranch_scc1 L_nodbg')
        a('s_waitcnt lgkmcnt(0)'); a('s_sub_u32 s86, s86, s84'); a('v_mov_b32 v70, s86'); a('s_lshl_b32 s86, s34, 2'); a('v_mov_b32 v71, s86')
        a('global_store_dword v71, v70, s[30:31]')
        a.label('L_nodbg')
    a('s_cmp_lg_u32 s2, 0')
    a('s_cbranch_scc1 L_noep')
    a('s_mov_b64 exec, 1')
    a(f'global_store_dword v12, v{TG}, s[32:33] offset:{WS_EP}')
    a('s_mov_b64 exec, -1')
    a.label('L_noep')
    dump_stamps(80)
    a('s_endpgm')

    if WH and WC == 8:
        RN = RM + 1
        a.label('L_w7')
        a('v_mov_b32 v1, 0')
        a('s_getreg_b32 s67, hwreg(HW_REG_XCC_ID, 0, 3)')
        a('s_mov_b32 s57, 0'); a('s_mov_b32 s58, 0'); a('s_mov_b32 s72, 0'); a('s_mov_b32 s68, 0')
        T_ = sum((x & 15) << (4 * k) for k, x in enumerate(XQ or (0,) * 8))
        a('s_lshl_b32 s60, s67, 2'); a(f's_lshr_b32 s66, {T_:#x}, s60'); a('s_bfe_i32 s66, s66, 0x40000')
        a('s_lshl_b32 s59, s67, 13'); a(f's_add_u32 s59, s59, {WS_CTR}')
        a('s_lshr_b32 s60, s2, 3')
        a('v_lshlrev_b32 v13, 2, v0'); a('v_add_u32 v8, s59, v13')
        a('s_lshl_b32 s61, s60, 8'); a('v_add_u32 v9, s61, v8')
        a('s_lshl_b32 s62, 1, s60'); a('s_mov_b32 s63, 0')
        a('v_lshlrev_b32 v12, 8, v0'); a('s_add_u32 s59, s59, 384'); a('v_add_u32 v12, s59, v12')
        a('v_and_b32 v10, 1, v0'); a('v_lshlrev_b32 v10, 12, v10'); a('s_lshl_b32 s60, s67, 2'); a('s_add_u32 s60, s60, 0x2000'); a('v_add_u32 v10, s60, v10')
        a('s_and_b32 s60, s67, 1'); a('s_lshl_b32 s60, s60, 12'); a('s_add_u32 s60, s60, 0x2000'); a('v_add_u32 v11, s60, v13')
        a('s_lshl_b32 s64, 1, s67'); a('s_xor_b32 s64, s64, 0xff'); a('s_mov_b32 s65, 0')
        a('s_waitcnt lgkmcnt(0)')
        wsb()
        a(f's_load_dword s4, s[32:33], {WS_EP}')
        a('global_store_dword v9, v1, s[32:33]')
        a('s_waitcnt lgkmcnt(0)')
        a('s_add_u32 s4, s4, 0x01010101'); a('s_or_b32 s4, s4, 0x100'); a('s_andn2_b32 s4, s4, 0xff'); a('v_mov_b32 v3, s4')
        a('s_barrier')
        a.label('L_w7poll')
        a(f'ds_read_b128 v[4:7], v1 offset:{PROG}')
        a('s_add_u32 s72, s72, 1'); a(f's_cmp_gt_u32 s72, {SPIN*8}'); a('s_cbranch_scc1 L_end')
        a('s_waitcnt lgkmcnt(0)')
        a('v_min_u32 v4, v4, v5'); a('v_min3_u32 v4, v4, v6, v7')
        a('v_readfirstlane_b32 s59, v4')
        a('s_cmp_lt_u32 s59, s57'); a('s_cbranch_scc1 L_w7poll')
        a('s_mov_b64 exec, s[62:63]')
        a('global_store_dword v8, v3, s[32:33]')
        a('s_mov_b64 exec, -1')
        a('global_load_dword v2, v8, s[32:33]' + BL_)
        a('s_add_u32 s57, s57, 32256')
        a('s_and_b32 s60, s58, 3'); a('s_add_u32 s60, s60, s66'); a('s_ashr_i32 s60, s60, 2')
        a('s_waitcnt vmcnt(0)')
        a('v_cmp_eq_u32 vcc, v2, v3')
        a('v_readlane_b32 s61, v2, 32')
        a('v_add_u32 v8, 0x100, v8')
        a('s_andn2_b32 s59, vcc_lo, s62')
        a('s_bcnt1_i32_b32 s59, s59')
        a('s_sub_u32 s61, s61, s4'); a('s_cmp_lt_u32 s61, 0x40'); a('s_cselect_b32 s68, s61, s68')
        a('s_cmp_eq_u32 s68, 0'); a('s_cselect_b32 s61, 32, s68')
        a('s_add_u32 s60, s60, s61'); a('s_add_u32 s60, s60, s59')
        if not THS: a(f's_cmp_ge_i32 s60, {TH+32}'); a('s_cselect_b32 s60, 1, 0')
        for k in range(4): a(f'v_mov_b32 v{4+k}, s60')
        a(f'ds_write_b128 v1, v[4:7] offset:{MODE}')
        if XT:
            TT = sum((x & 15) << (4 * k) for k, x in enumerate(XT))
            a(f's_and_b32 s60, s58, {RM}'); a('s_lshl_b32 s60, s60, 8'); a('s_or_b32 s60, s60, s59')
            a(f's_cmp_lg_u32 s60, {RO*256+R0}'); a('s_cbranch_scc1 L_w7n')
            a('s_mov_b64 exec, 3')
            a('global_store_dword v10, v3, s[32:33] sc1')
            a('s_mov_b64 exec, s[64:65]')
            a('global_load_dword v2, v11, s[32:33]' + CP_)
            a('s_waitcnt vmcnt(0)')
            a('v_cmp_eq_u32 vcc, v2, v3')
            a(f's_mov_b64 exec, {(1 << RN) - 1}')
            a('s_bcnt1_i32_b64 s59, vcc')
            a('s_lshl_b32 s59, s59, 2'); a(f's_lshr_b32 s59, {TT:#x}, s59'); a('s_bfe_i32 s59, s59, 0x40000')
            a('s_add_u32 s59, s59, 32'); a('s_add_u32 s59, s59, s4')
            a('v_mov_b32 v2, s59')
            a('global_store_dword v12, v2, s[32:33]')
            a('s_mov_b64 exec, -1')
            a.label('L_w7n')
            a('v_add_u32 v10, 0x80, v10'); a('v_add_u32 v11, 0x80, v11'); a('v_add_u32 v12, 0x100, v12')
        a('s_add_u32 s58, s58, 1')
        a(f's_cmp_lt_u32 s58, {NCK}'); a('s_cbranch_scc1 L_w7poll')
        a('s_waitcnt lgkmcnt(0)')
    elif WH and WC == 7:
        a.label('L_w7')
        a('v_mov_b32 v1, 0')
        a('s_getreg_b32 s59, hwreg(HW_REG_XCC_ID, 0, 3)')
        a('s_mov_b32 s57, 0'); a('s_mov_b32 s58, 0'); a('s_mov_b32 s72, 0')
        if XBI:
            T_ = sum((x & 15) << (4 * k) for k, x in enumerate(XBI))
            a('s_lshl_b32 s60, s59, 2'); a(f's_lshr_b32 s66, {T_:#x}, s60'); a('s_bfe_i32 s66, s66, 0x40000')
        a('s_lshl_b32 s59, s59, 12'); a(f's_add_u32 s59, s59, {WS_CTR}')
        a('s_lshr_b32 s60, s2, 3')
        a('v_lshlrev_b32 v8, 2, v0'); a('v_add_u32 v8, s59, v8')
        a('s_lshl_b32 s61, s60, 7'); a('v_add_u32 v9, s61, v8')
        a('s_lshl_b32 s62, 1, s60'); a('s_mov_b32 s63, 0')
        a('s_not_b32 s64, s62'); a('s_mov_b32 s65, 0')
        a('s_mov_b64 exec, 0xffffffff' if False else 's_mov_b32 exec_hi, 0')
        a('s_waitcnt lgkmcnt(0)')
        wsb()
        a(f's_load_dword s4, s[32:33], {WS_EP}')
        a('global_store_dword v9, v1, s[32:33]')
        a('s_waitcnt lgkmcnt(0)')
        a('s_add_u32 s4, s4, 0x01010101'); a('s_or_b32 s4, s4, 1'); a('v_mov_b32 v3, s4')
        a('s_barrier')
        a.label('L_w7poll')
        a(f'ds_read_b128 v[4:7], v1 offset:{PROG}')
        a('s_add_u32 s72, s72, 1'); a(f's_cmp_gt_u32 s72, {SPIN*8}'); a('s_cbranch_scc1 L_end')
        a('s_waitcnt lgkmcnt(0)')
        a('v_min_u32 v4, v4, v5'); a('v_min3_u32 v4, v4, v6, v7')
        a('v_readfirstlane_b32 s59, v4')
        a('s_cmp_lt_u32 s59, s57'); a('s_cbranch_scc1 L_w7poll')
        a('s_mov_b64 exec, s[62:63]')
        a('global_store_dword v8, v3, s[32:33]')
        a('s_mov_b64 exec, s[64:65]')
        a('global_load_dword v2, v8, s[32:33]' + BL_)
        a('s_add_u32 s57, s57, 32256'); a('s_add_u32 s58, s58, 1')
        a('s_waitcnt vmcnt(0)')
        a('v_cmp_eq_u32 vcc, v2, v3')
        a('s_mov_b32 exec_lo, -1')
        a('v_add_u32 v8, 0x80, v8')
        a('s_bcnt1_i32_b64 s59, vcc')
        if XBI: a('s_add_u32 s59, s59, s66')
        a(f's_cmp_ge_i32 s59, {TH}'); a('s_cselect_b32 s56, 1, 0')
        for k in range(4): a(f'v_mov_b32 v{4+k}, s56')
        a(f'ds_write_b128 v1, v[4:7] offset:{MODE}')
        a(f's_cmp_lt_u32 s58, {NCK}'); a('s_cbranch_scc1 L_w7poll')
        a('s_waitcnt lgkmcnt(0)')
    elif WH and WC == 6:
        a.label('L_w7')
        a('v_mov_b32 v1, 0'); a('v_mov_b32 v2, 1')
        a('s_getreg_b32 s59, hwreg(HW_REG_XCC_ID, 0, 3)')
        a('s_mov_b32 s57, 0'); a('s_mov_b32 s58, 0'); a('s_mov_b32 s72, 0')
        a('s_lshl_b32 s59, s59, 8'); a(f's_add_u32 s59, s59, {WS_CTR+256}')
        a('v_lshlrev_b32 v9, 2, v0'); a(f'v_add_u32 v9, {WS_CTR}, v9')
        a('v_lshlrev_b32 v8, 2, v0'); a('v_add_u32 v8, s59, v8')
        a('s_mov_b64 exec, 0xffff')
        a('s_waitcnt lgkmcnt(0)')
        wsb()
        a('global_load_dword v10, v8, s[32:33]')
        if XB: a('global_load_dword v11, v9, s[32:33]')
        a('s_waitcnt vmcnt(0)')
        a('s_mov_b64 exec, 1')
        a('s_barrier')
        a.label('L_w7poll')
        a(f'ds_read_b128 v[4:7], v1 offset:{PROG}')
        a('s_add_u32 s72, s72, 1'); a(f's_cmp_gt_u32 s72, {SPIN*8}'); a('s_cbranch_scc1 L_end')
        a('s_waitcnt lgkmcnt(0)')
        a('v_min_u32 v4, v4, v5'); a('v_min3_u32 v4, v4, v6, v7')
        a('v_readfirstlane_b32 s59, v4')
        a('s_cmp_lt_u32 s59, s57'); a('s_cbranch_scc1 L_w7poll')
        a('global_atomic_add v3, v8, v2, s[32:33] sc0')
        a('v_readlane_b32 s60, v10, s58')
        if XB: a('v_readlane_b32 s61, v11, s58')
        a('s_add_u32 s57, s57, 32256'); a('s_add_u32 s58, s58, 1')
        a('s_waitcnt vmcnt(0)')
        a('v_readfirstlane_b32 s59, v3')
        a('v_add_u32 v8, 4, v8')
        a('s_sub_u32 s59, s59, s60')
        a('s_ashr_i32 s60, s59, 16'); a('s_and_b32 s59, s59, 0xffff')
        a('s_add_u32 s60, s60, s59')
        a(f's_cmp_ge_i32 s60, {TH}'); a('s_cselect_b32 s56, 1, 0')
        for k in range(4): a(f'v_mov_b32 v{4+k}, s56')
        a(f'ds_write_b128 v1, v[4:7] offset:{MODE}')
        if XB:
            a(f's_cmp_lg_u32 s59, {XR_}'); a('s_cbranch_scc1 L_w7n')
            a('global_atomic_add v3, v9, v2, s[32:33] sc0 sc1')
            a('s_waitcnt vmcnt(0)')
            a('v_subrev_u32 v3, s61, v3'); a('v_min_u32 v3, 7, v3')
            a(f'v_mul_u32_u24 v3, {2*XB<<16}, v3'); a(f'v_subrev_u32 v3, {7*XB<<16}, v3')
            a('global_atomic_add v8, v3, s[32:33]')
            a.label('L_w7n')
            a('v_add_u32 v9, 4, v9')
        a(f's_cmp_lt_u32 s58, {NCK}'); a('s_cbranch_scc1 L_w7poll')
        a('s_waitcnt lgkmcnt(0)')
    elif WH and WC:
        a.label('L_w7')
        a('v_mov_b32 v1, 0'); a('v_mov_b32 v2, 1')
        a('s_mov_b64 exec, 1')
        a('s_mov_b32 s57, 0'); a('s_mov_b32 s58, 0'); a('s_mov_b32 s72, 0')
        a('s_waitcnt lgkmcnt(0)')
        wsb()
        a(f's_load_dword s4, s[32:33], {WS_EP}')
        a('s_lshr_b32 s59, s2, 3'); a('s_lshl_b32 s59, s59, 11'); a(f's_add_u32 s60, s59, {WS_CTR}')
        a('s_and_b32 s59, s2, 7'); a('s_lshl_b32 s61, s59, 2'); a('s_add_u32 s61, s61, s60'); a('v_mov_b32 v8, s61')
        a('s_lshr_b32 s61, 0x80, s59')
        if WC == 5:
            a('s_mov_b64 exec, -1')
            a('s_lshl_b32 s60, s2, 11'); a(f's_add_u32 s60, s60, {WS_MB}')
            a('s_andn2_b32 s62, s2, 7'); a('s_lshl_b32 s62, s62, 11'); a('s_lshl_b32 s56, s59, 2'); a('s_add_u32 s62, s62, s56'); a(f's_add_u32 s62, s62, {WS_MB}')
            a('v_lshlrev_b32 v8, 11, v0'); a('v_add_u32 v8, s62, v8')
            a('s_lshl_b32 s62, 1, s59'); a('s_xor_b32 s62, s62, 0xff'); a('s_mov_b32 s63, 0')
        a('s_waitcnt lgkmcnt(0)')
        a('s_add_u32 s4, s4, 0x01010101'); a('v_mov_b32 v3, s4')
        a('s_mov_b64 exec, 1')
        a('s_barrier')
        a.label('L_w7poll')
        a(f'ds_read_b128 v[4:7], v1 offset:{PROG}')
        a('s_add_u32 s72, s72, 1'); a(f's_cmp_gt_u32 s72, {SPIN*8}'); a('s_cbranch_scc1 L_end')
        a('s_waitcnt lgkmcnt(0)')
        a('v_min_u32 v4, v4, v5'); a('v_min3_u32 v4, v4, v6, v7')
        a('v_readfirstlane_b32 s59, v4')
        a('s_cmp_lt_u32 s59, s57'); a('s_cbranch_scc1 L_w7poll')
        if WC in (1, 3): a('global_store_dword v8, v3, s[32:33]' + WS_)
        if WC == 5:
            a('s_mov_b64 exec, s[62:63]'); a('global_store_dword v8, v3, s[32:33]' + WS_); a('v_add_u32 v8, 0x80, v8'); a('s_mov_b64 exec, 1')
        if WC != 3: a('s_load_dwordx8 s[64:71], s[32:33], s60')
        a(f's_add_u32 s57, s57, {32256*CKS}'); a('s_add_u32 s58, s58, 1'); a('s_add_u32 s60, s60, 128')
        a('s_mov_b32 s56, 0')
        a('s_waitcnt lgkmcnt(0)')
        if WC == 2: a('global_store_dword v8, v3, s[32:33]' + WS_)
        for k in range(8): a(f's_cmp_eq_u32 s{64+k}, s4'); a('s_addc_u32 s56, s56, s56')
        a('s_andn2_b32 s56, s56, s61'); a('s_bcnt1_i32_b32 s56, s56')
        a(f's_cmp_ge_u32 s56, {TH}'); a('s_cselect_b32 s56, 1, 0')
        if WC != 5: a('v_add_u32 v8, 0x80, v8')
        for k in range(4): a(f'v_mov_b32 v{4+k}, s56')
        a(f'ds_write_b128 v1, v[4:7] offset:{MODE}')
        a(f's_cmp_lt_u32 s58, {NCK}'); a('s_cbranch_scc1 L_w7poll')
        a('s_waitcnt lgkmcnt(0)')
    elif WH:
        a.label('L_w7')
        a('v_mov_b32 v1, 0'); a('v_mov_b32 v2, 1')
        a('s_mov_b64 exec, 1')
        a(f's_mov_b32 s56, {TH}'); a('s_mov_b32 s57, 0'); a('s_mov_b32 s58, 0'); a('s_mov_b32 s72, 0')
        a('s_waitcnt lgkmcnt(0)')
        wsb()
        a(f's_lshr_b32 s59, s2, {GS}'); a('s_lshl_b32 s59, s59, 8'); a(f's_add_u32 s59, s59, {WS_CTR}'); a('v_mov_b32 v8, s59')
        a(f's_and_b32 s59, s2, {(1<<GS)-1}')
        a('s_cmp_lg_u32 s59, 0'); a('s_cbranch_scc1 L_w7b')
        a(f'global_store_dword v8, v1, s[32:33] sc1')
        a.label('L_w7b')
        a('s_barrier')
        a.label('L_w7poll')
        a(f'ds_read_b128 v[4:7], v1 offset:{PROG}')
        a('s_add_u32 s72, s72, 1'); a(f's_cmp_gt_u32 s72, {SPIN*8}'); a('s_cbranch_scc1 L_end')
        a('s_waitcnt lgkmcnt(0)')
        a('v_min_u32 v4, v4, v5'); a('v_min3_u32 v4, v4, v6, v7')
        a('v_readfirstlane_b32 s59, v4')
        a('s_cmp_lt_u32 s59, s57'); a('s_cbranch_scc1 L_w7poll')
        a(f'global_atomic_add v3, v8, v2, s[32:33] sc0 sc1')
        a('s_add_u32 s57, s57, 32256'); a('s_add_u32 s58, s58, 1')
        a('s_waitcnt vmcnt(0)')
        a('v_cmp_le_i32 vcc, s56, v3')
        a(f's_add_u32 s56, s56, {1<<GS}')
        for k in range(4): a(f'v_cndmask_b32 v{4+k}, v1, v2, vcc')
        a(f'ds_write_b128 v1, v[4:7] offset:{MODE}')
        a(f's_cmp_lt_u32 s58, {NCK}'); a('s_cbranch_scc1 L_w7poll')
        a('s_waitcnt lgkmcnt(0)')
    a.label('L_end')
    a('s_endpgm')
    a.raw('.section .rodata,"a"'); a.raw('.p2align 6'); a.raw(f'.amdhsa_kernel {NAME}')
    a.raw('  .amdhsa_next_free_vgpr 256'); a.raw('  .amdhsa_next_free_sgpr 102'); a.raw('  .amdhsa_accum_offset 256')
    a.raw('  .amdhsa_group_segment_fixed_size 0'); a.raw('  .amdhsa_kernarg_size 104'); a.raw('  .amdhsa_user_sgpr_count 2')
    a.raw('  .amdhsa_user_sgpr_kernarg_segment_ptr 1'); a.raw('  .amdhsa_system_sgpr_workgroup_id_x 1'); a.raw('.end_amdhsa_kernel')
    return a.text()

if __name__ == '__main__':
    kw = eval('dict(' + (sys.argv[2] if len(sys.argv) > 2 else '') + ')')
    open(sys.argv[1], 'w').write(gen(**kw))
```

```python
import sys
sys.path.insert(0, 'gen')
from asmlib import Asm

NAME = 'gated_mix__mha_block_cached__swiglu_ffn__decode_kernel'
HEADER = open('gated_mix__mha_block_cached__swiglu_ffn__decode.s.ref').read().split('; Override launch')[0]

QB = 0
OP = 512
ML = 4608
COEF = 4640
CNT = 4656
PROG = 4672
MODE = 4688
GMV = 4704
HB = 4736
HBS = 144
LDS = 8192
WS_EP = 0
WS_CTR = 0x10000
WS_REC = 0x1000
WS_O = 0x20000
WS_Q = 0x80000
WS_Y = 0x100000
WS_G = 0x180000
WS_MB = 0x200000
WS_ST = 0x200000
CSC = 0x3db8aa3b
LOG2E = 0x3fb8aa3b
SPIN = 20000
OOB = 0x40000000

def rev5(i): return int(f'{i:05b}'[::-1], 2)
def vr(b, n=4): return f'v[{b}:{b+n-1}]'

def gen(W=5, LK=7, LV=9, P=54, G=1, stamps=False, PRIO=3, W0=5, noWO=False, noWQ=False, DBG=0, KP_=' nt', VP_=' nt', WP_=' nt', GP_='', WH=0, WP=5, TH=4, GS=3, NCK=15, SMP=(6, 22), WSB=0x3fc00000, B3=1, CS=0, CU=9, noFFN=False, UY=1, TV=0, VX=0, RV=0, QP=0, WC=0, CKS=1, WS_=' sc1', XB=0, XR_=16, EW=0, ET=5, XM=None, XL=None, RS=0, WOW=0, WOS=None, CKH=0, XBI=None, BL_='', XT=None, RM=3, RO=2, R0=16, XQ=None, CP_=' sc1', THS=None, R1=0, R2=0, XBAR=0, LY=0, LP_=' nt', NA=40, EG=0, WE=0, LX=0):
    NW = 7 if WH else 6
    a = Asm()
    a.raw(HEADER.rstrip('\n'))
    a.raw(f'; @launch grid=(256,1,1) block=({NW*64},1,1) lds={LDS}')
    a.raw('.amdgcn_target "amdgcn-amd-amdhsa--gfx950"')
    a.raw('.text'); a.raw(f'.globl {NAME}'); a.raw('.p2align 8'); a.raw(f'.type {NAME},@function'); a.raw(f'{NAME}:')

    def stamp(k):
        if stamps: a(f's_memrealtime s[{84+2*k}:{85+2*k}]')
    def dump_stamps(tmp):
        if not stamps: return
        a('s_waitcnt lgkmcnt(0)')
        a(f's_mul_i32 s60, s2, {NW}'); a('s_add_u32 s60, s60, s3'); a('s_lshl_b32 s60, s60, 6'); a(f's_add_u32 s60, s60, {WS_ST}')
        a(f'v_mov_b32 v{tmp}, s60')
        for k in range(16): a(f'v_mov_b32 v{tmp+2+k}, s{84+k}')
        for k in range(4): a(f'global_store_dwordx4 v{tmp}, {vr(tmp+2+4*k)}, s[52:53] offset:{16*k}')

    def wsb():
        if stamps: a('s_mov_b64 s[52:53], s[32:33]')
        if WSB: a(f's_add_u32 s32, s32, {WSB:#x}'); a('s_addc_u32 s33, s33, 0')
    def srd(d, plo, off, size):
        if off is None:
            a(f's_mov_b32 s{d}, s{plo}'); a(f's_mov_b32 s{d+1}, s{plo+1}')
        else:
            a(f's_add_u32 s{d}, s{plo}, {off}'); a(f's_addc_u32 s{d+1}, s{plo+1}, 0')
        a(f's_mov_b32 s{d+2}, {size}'); a(f's_mov_b32 s{d+3}, 0x20000')

    def sel2_ops(sel, t):
        L = [f'v_lshrrev_b32 v{t}, 5, v0', f'v_mul_u32_u24 v{t}, 0x202, v{t}', f'v_add_u32 v{t}, 0x100, v{t}',
             f'v_or_b32 v{t+1}, 0xc0c0000, v{t}', f'v_lshlrev_b32 v{t+2}, 16, v{t}', f'v_or_b32 v{t+2}, 0xc0c, v{t+2}',
             f'v_and_b32 v{t+3}, 1, v0', f'v_cmp_eq_u32 vcc, 1, v{t+3}', f'v_cndmask_b32 v{t+1}, v{t+1}, v{t+2}, vcc',
             f'v_lshrrev_b32 v{t+2}, 1, v0', f'v_xor_b32 v{t+3}, v0, v{t+2}', f'v_and_b32 v{t+3}, 8, v{t+3}',
             f'v_and_b32 v{t+2}, 3, v{t+2}', f'v_or_b32 v{t+2}, v{t+2}, v{t+3}', f'v_mov_b32 v{t+3}, 0xc0c0c0c']
        for rr in range(4):
            L += [f'v_cmp_eq_u32 vcc, {rr}, v{t+2}', f'v_cndmask_b32 v{sel+rr}, v{t+3}, v{t+1}, vcc']
        return L

    def wave_reduce(op, v, t):
        L = []
        for r in (8, 4, 2, 1):
            L.append(f'{op}_dpp v{v}, v{v}, v{v} row_ror:{r} row_mask:0xf bank_mask:0xf')
        for sw in ('v_permlane16_swap_b32', 'v_permlane32_swap_b32'):
            L += [f'v_mov_b32 v{t}, v{v}', f'{sw} v{v}, v{t}', f'{op} v{v}, v{v}, v{t}']
        return L

    def rne(dst, src, n, t):
        for k in range(0, n, 2): a(f'v_cvt_pk_bf16_f32 v{t+k//2}, v{src+k}, v{src+k+1}')
        for k in range(0, n, 2):
            a(f'v_lshlrev_b32 v{dst+k}, 16, v{t+k//2}'); a(f'v_and_b32 v{dst+k+1}, 0xffff0000, v{t+k//2}')

    def transpose(tmp, dst):
        for cc in range(4):
            for jj in range(4):
                a(f'v_perm_b32 v{dst+4*cc+jj}, v{tmp+2*(2*jj+1)+(cc>>1)}, v{tmp+2*(2*jj)+(cc>>1)}, s{62+(cc&1)}')

    TG = 4
    def tag_setup():
        a('s_add_u32 s4, s4, 0x01010101')
        a('s_mov_b32 s5, 0xff'); a('s_mov_b32 s6, 0x0c0c0400'); a('s_mov_b32 s7, 0x04000c0c')
        a(f'v_mov_b32 v{TG}, s4'); a('v_mov_b32 v11, 0x80')
        for k in range(1, 4): a(f'v_lshrrev_b32 v{TG+k}, {8*k}, v{TG}')
    def tagit(dst, srcs):
        for k in range(4): a(f'v_bfi_b32 v{dst+k}, s5, v{TG+k}, v{srcs[k]}')
    def untag(d, n):
        for k in range(n): a(f'v_bfi_b32 v{d+k}, s5, v11, v{d+k}')
    def tagcheck(d, t, mask):
        a(f'v_perm_b32 v{t}, v{d+1}, v{d}, s6'); a(f'v_perm_b32 v{t+1}, v{d+3}, v{d+2}, s7')
        a(f'v_or_b32 v{t}, v{t}, v{t+1}')
        a(f'v_cmp_ne_u32_e64 s[{mask}:{mask+1}], v{t}, v{TG}')
        a(f's_wqm_b64 s[{mask}:{mask+1}], s[{mask}:{mask+1}]')

    a('s_cmp_ge_u32 s2, 256')
    a('s_cbranch_scc1 L_end')
    a('s_load_dwordx16 s[8:23], s[0:1], 0')
    a('s_load_dwordx8 s[24:31], s[0:1], 64')
    a('s_load_dwordx2 s[32:33], s[0:1], 96')
    if stamps:
        for k in range(2, 16, 2): a(f's_mov_b64 s[{84+k}:{85+k}], 0')
    stamp(0)
    if DBG: a('s_memrealtime s[84:85]')
    a('v_lshrrev_b32 v1, 6, v0')
    a('v_and_b32 v0, 63, v0')
    a('v_readfirstlane_b32 s3, v1')
    a('s_bfe_u32 s35, s2, 0x40001'); a('s_and_b32 s36, s2, 1')
    a('s_lshr_b32 s34, s2, 5')
    a('s_and_b32 s37, s2, 31')
    a('s_lshl_b32 s39, s34, 1'); a('s_or_b32 s39, s39, s36')
    a('s_cmp_ge_u32 s3, 4')
    a('s_cbranch_scc1 L_helper')

    RING = 40; XR = RING + 128
    NX = max(P - 32, 0)
    assert XR + 4 * NX <= 256
    Q = 2; SEL = 6; SC = 10; TMP = 18; RMAX = 34; LA = 35; LB = 36; CF = 37; OA = 38; OG = 39
    S0 = 18; ACC = 26
    if PRIO: a(f's_setprio {PRIO}')
    a('v_lshlrev_b32 v1, 4, v0')
    a(f's_mul_i32 s56, s3, {G*1024}')
    if XM:
        assert G == 1
        lo, hi = XM
        T_ = 0
        for idx in range(16):
            c, d, a_, b_ = idx & 1, idx >> 1 & 1, idx >> 2 & 1, idx >> 3 & 1
            T_ |= ((a_ & c ^ b_ & d) | (a_ & d ^ b_ & (c ^ d)) << 1) << (2 * idx)
        a(f's_bfe_u32 s66, s2, {0x20000 | lo:#x}'); a(f's_bfe_u32 s67, s2, {0x20000 | hi:#x}')
        a('s_lshl2_add_u32 s66, s67, s66'); a('s_lshl_b32 s66, s66, 1'); a(f's_lshr_b32 s66, {T_:#x}, s66')
        a('s_and_b32 s66, s66, 3'); a('s_lshl_b32 s66, s66, 17')
        a('s_mov_b32 s67, s56'); a('s_mov_b32 s68, s56'); a('s_xor_b32 s56, s56, s66')
    if XL:
        assert G == 1 and not XM
        first = True
        for k, c in enumerate(XL):
            if not c: continue
            a(f's_bitcmp1_b32 s2, {k}'); a(f's_cselect_b32 s{66 if first else 67}, {c << 12:#x}, 0')
            if not first: a('s_xor_b32 s66, s66, s67')
            first = False
        a('s_mov_b32 s67, s56'); a('s_mov_b32 s68, s56'); a('s_xor_b32 s56, s56, s66')
    a('s_mov_b32 s58, s56')
    a('s_lshl_b32 s57, s2, 20')
    a('s_waitcnt lgkmcnt(0)')
    srd(40, 10, 's57', 1 << 20)

    def slot_reg(n):
        if n < NX: return XR + 4 * n
        if P <= n < min(64, P + NX): return XR + 4 * (n - P)
        return RING + 4 * (n % 32)
    def prev_user(n):
        r = slot_reg(n)
        for m in range(n - 1, -1, -1):
            if slot_reg(m) == r: return m
        return -1
    st = {'issued': 0, 'landed': -1}
    def issue(endmode=None):
        n = st['issued']
        if endmode is not None:
            if endmode: a(f's_waitcnt vmcnt({endmode-1})'); st['landed'] = max(st['landed'], n - endmode)
        elif WH and n >= P:
            st['lab'] = st.get('lab', 0) + 1
            a.raw(f'  s_cbranch_vccnz L_em{st["lab"]}'); a.pos += 1
            a.raw(f'  s_waitcnt vmcnt({W-1})')
            a.raw(f'L_em{st["lab"]}:')
            a(f's_waitcnt vmcnt({WH-1})'); st['landed'] = max(st['landed'], n - WH)
        elif EW and st.get('inv'):
            st['lab'] = st.get('lab', 0) + 1
            a.raw(f'  s_cbranch_vccnz L_em{st["lab"]}'); a.pos += 1
            a.raw(f'  s_waitcnt vmcnt({W-1})')
            a.raw(f'L_em{st["lab"]}:')
            a(f's_waitcnt vmcnt({EW-1})'); st['landed'] = max(st['landed'], n - EW)
        elif n >= W0:
            w = WP if n < P else W
            a(f's_waitcnt vmcnt({w-1})'); st['landed'] = max(st['landed'], n - w)
        st['issued'] += 1
        srdr, so = ('s[40:43]', 's56') if n < 256 else ('s[44:47]', 's58')
        j = n % G
        imm = (j % 4) * 1024
        a(f'buffer_load_dwordx4 {vr(slot_reg(n))}, v1, {srdr}, {so} offen' + (f' offset:{imm}' if imm else '') + (KP_ if n < 256 else VP_))
        if XL:
            cn = 's67' if n < 256 else 's68'
            a(f's_add_u32 {cn}, {cn}, 0x1000'); a(f's_xor_b32 {so}, {cn}, s66')
        elif XM and n % 32 == 31:
            cn = 's67' if n < 256 else 's68'
            a(f's_add_u32 {cn}, {cn}, 0x20000'); a(f's_xor_b32 {so}, {cn}, s66')
        elif j == G - 1: a(f's_add_u32 {so}, {so}, {4*G*1024 - (G-1)//4*4096}')
        elif j % 4 == 3: a(f's_add_u32 {so}, {so}, 4096')
    WM = max(W, WH)
    def sample(i):
        if not WH: return
        if (i & 31) in SMP: a(f'ds_read_b32 v0, v{LA} offset:{MODE}')
        if ((i - 2) & 31) in SMP:
            a('s_waitcnt lgkmcnt(0)')
            if THS: a(f'v_cmp_le_i32 vcc, {32 + THS[SMP.index((i - 2) & 31) % len(THS)]}, v0')
            else: a('v_cmp_ne_u32 vcc, 0, v0')
    def checkpoint(v=0):
        if WH or (RV and v): a(f'ds_add_u32 v{LA}, v1 offset:{PROG}')
        if WOS: a(f'ds_add_u32 v{LA}, v1 offset:{MODE}')
    def ensure(n):
        if st['landed'] < n:
            a(f's_waitcnt vmcnt({st["issued"]-1-n})'); st['landed'] = n
    for i in range(W0): issue()
    srd(44, 12, 's57', 1 << 20)
    wsb()
    a('s_lshl_b32 s59, s35, 13'); a('s_lshl_b32 s60, s39, 9'); a('s_add_u32 s59, s59, s60'); a(f's_add_u32 s59, s59, {WS_O}')
    srd(48, 32, 's59', 512)
    pre = sel2_ops(SEL, TMP)
    pre += [f'v_and_b32 v{LA}, 31, v0', f'v_lshlrev_b32 v{LA}, 4, v{LA}',
            f'v_mov_b32 v{RMAX}, 0xff800000',
            's_mov_b32 s60, 0xcccccccc', 's_mov_b32 s61, 0xcccccccc', 's_mov_b32 s62, 0xaaaaaaaa', 's_mov_b32 s63, 0xaaaaaaaa',
            f'v_lshrrev_b32 v{OG}, 5, v0', f'v_lshlrev_b32 v{OG}, 8, v{OG}', f'v_and_b32 v{OA}, 15, v0', f'v_lshlrev_b32 v{OA}, 4, v{OA}',
            f'v_add_u32 v{OG}, v{OG}, v{OA}', f'v_bfe_u32 v{OA}, v0, 4, 1', f'v_lshlrev_b32 v{OA}, 3, v{OA}', f'v_add_u32 v{OG}, v{OG}, v{OA}',
            's_lshl_b32 s59, s3, 10', f'v_add_u32 v{OA}, s59, v1']
    for o in pre: a(o)
    while st['issued'] < P:
        issue()
        if QP and st['issued'] == QP: a(f'ds_write_b32 v{OA}, v{RMAX} offset:{OP}')
        if CS == 2 and st['issued'] in (6, 12, 24, 40): stamp(4 + (6, 12, 24, 40).index(st['issued']))
    stamp(1)
    a('s_barrier')
    a(f'ds_read_b128 {vr(Q)}, v{LA} offset:{QB}')
    a('s_lshl_b32 s59, s3, 2')
    a(f'v_mov_b32 v{LA}, s59')
    stamp(2)
    a('s_mov_b64 vcc, 0')
    a('s_waitcnt lgkmcnt(0)')

    T = [TMP, TMP + 1, TMP + 2, TMP + 3]; RB = TMP + 4; RC = TMP + 5; RD0 = TMP + 6; RD1 = TMP + 7; RE0 = TMP + 8; RE1 = TMP + 9
    class KP:
        def __init__(s): s.q = []; s.since = 0
        def emit(s, o):
            a(o); s.since += 1
            if s.q and s.since >= 2:
                a(s.q.pop(0)); s.since = 0
        def flush(s):
            while s.q: a(s.q.pop(0))
        def step(s, n):
            i = n & 31
            if (i & 1) == 0:
                while s.q and any(f'v{T[i&3]}' in o.replace(',', ' ').split() or f'v{T[(i+1)&3]}' in o.replace(',', ' ').split() for o in s.q):
                    a(s.q.pop(0))
            t = T[i & 3]; k = slot_reg(n)
            for r in range(4):
                s.emit(f'v_dot2_f32_bf16 v{t}, v{k+r}, v{Q+r}, ' + ('0' if r == 0 else f'v{t}'))
            if i & 1:
                ta, tb = T[(i - 1) & 3], t
                m = [f'v_permlane16_swap_b32 v{ta}, v{tb}', f'v_add_f32 v{ta}, v{ta}, v{tb}']
                b1 = (i >> 1) & 1
                m.append(f'v_add_f32_dpp v{RB}, v{ta}, v{ta} row_ror:8 row_mask:0xf bank_mask:' + ('0xc' if b1 else '0xf'))
                if b1:
                    b2 = (i >> 2) & 1
                    m.append(f'v_add_f32_dpp v{RC}, v{RB}, v{RB} row_half_mirror row_mask:0xf bank_mask:' + ('0xa' if b2 else '0xf'))
                    if b2:
                        b3 = (i >> 3) & 1
                        m.append(f'v_add_f32_dpp v{RD1 if b3 else RD0}, v{RC}, v{RC} quad_perm:[2,3,0,1] row_mask:0xf bank_mask:0xf')
                        if b3:
                            m.append(f'v_cndmask_b32 v{RD0}, v{RD0}, v{RD1}, s[60:61]')
                            b4 = (i >> 4) & 1
                            m.append(f'v_add_f32_dpp v{RE1 if b4 else RE0}, v{RD0}, v{RD0} quad_perm:[1,0,3,2] row_mask:0xf bank_mask:0xf')
                            if b4:
                                m.append(f'v_cndmask_b32 v{RE0}, v{RE0}, v{RE1}, s[62:63]')
                                m.append(f'v_cvt_pk_bf16_f32 v{RE0}, v{RE0}, v{RE0}')
                                m.append(f'v_lshlrev_b32 v{SC+7}, 16, v{RE0}')
                                m.append(f'v_max_f32 v{RMAX}, v{RMAX}, v{SC+7}')
                s.q += m
    def shift_sc():
        for k in range(7): a(f'v_mov_b32 v{SC+k}, v{SC+k+1}')

    kp = KP()
    tot = 64 + LK - P
    for n in range(64):
        if n == 32: kp.flush(); a(f'v_mov_b32 v{SC+6}, v{SC+7}')
        if CS == 1 and n in (8, 24, 40, 56): stamp(4 + (n - 8) // 16); print('CS', n, 'issued', st['issued'])
        ensure(n)
        kp.step(n)
        if n >= 32: sample(n)
        want = max(P + min(n // CU + 1, tot), n + 1 + LK)
        while st['issued'] < want and prev_user(st['issued']) <= n:
            if n == 63: kp.flush()
            issue()
    kp.flush()
    assert st['issued'] == 64 + LK, st
    checkpoint()
    stamp(3)
    a('s_mov_b32 s59, 0')
    a.label('L_kloop')
    st['landed'] = st['issued'] - 1 - WM
    kp = KP()
    shift_sc()
    for n in range(64, 96):
        assert st['landed'] >= n
        kp.step(n)
        sample(n)
        if n == 95: kp.flush()
        if CKH and n == 79: checkpoint()
        issue()
    checkpoint()
    a('s_add_u32 s59, s59, 1')
    a('s_cmp_lt_u32 s59, 5')
    a('s_cbranch_scc1 L_kloop')
    st['issued'] += 128; st['landed'] += 128
    kp = KP()
    shift_sc()
    for n in range(224, 256):
        assert st['landed'] >= n
        kp.step(n)
        sample(n)
        if CKH and n == 239: checkpoint()
        if n < 255: issue()
    kp.flush()
    checkpoint()
    if CS in (0, 3): stamp(4)
    sm = ['@issue'] + wave_reduce('v_max_f32', RMAX, TMP)
    sm.append(f'v_mov_b32 v{TMP+1}, {CSC:#x}')
    sm.append(f'v_mul_f32 v{TMP+2}, v{RMAX}, v{TMP+1}')
    for k in range(8): sm.append(f'v_fma_f32 v{SC+k}, v{SC+k}, v{TMP+1}, -v{TMP+2}')
    for k in range(8): sm.append(f'v_exp_f32 v{SC+k}, v{SC+k}')
    sm.append('@issue')
    sm.append(f'v_add_f32 v{LB}, v{SC}, v{SC+1}')
    for k in range(2, 8): sm.append(f'v_add_f32 v{LB}, v{LB}, v{SC+k}')
    for k in range(8): sm.append(f'v_mov_b32 v{TMP+k}, v{SC+k}')
    for k in range(8): sm.append(f'v_permlane32_swap_b32 v{SC+k}, v{TMP+k}')
    for k in range(8): sm.append(f'v_cvt_pk_bf16_f32 v{SC+k}, v{SC+k}, v{TMP+k}')
    sm.append('@issue')
    sm += wave_reduce('v_add_f32', LB, TMP)
    sm.append(f'ds_write2_b32 v{LA}, v{RMAX}, v{LB} offset0:{ML//4 - 1024} offset1:{ML//4 - 1024 + 4}' if False else f'v_add_u32 v{TMP}, {ML}, v{LA}')
    sm.append(f'ds_write2_b32 v{TMP}, v{RMAX}, v{LB} offset0:0 offset1:4')
    sm.append(f'v_readlane_b32 s64, v{SC}, {rev5(0)}')
    sm.append(f'v_readlane_b32 s65, v{SC}, {rev5(1)}')
    for k in range(8): sm.append(f'v_mov_b32 v{ACC+k}, 0')
    for r in range(4): sm.append(f'v_perm_b32 v{S0+r}, s64, s64, v{SEL+r}')
    sm.append(f'v_mov_b32 v{LB}, 1'); sm.append(f'v_mov_b32 v{RMAX}, 0')
    for o in sm:
        if o == '@issue':
            if st['issued'] < 256 + LV: issue()
        else: a(o)
    while st['issued'] < 256 + LV: issue()
    if CS in (0, 3): stamp(5)
    a('s_mov_b32 s59, 0')
    if EW: a('s_mov_b64 vcc, 0'); st['inv'] = 1
    a.label('L_vloop')
    st['landed'] = st['issued'] - 1 - max(WM, EW)
    def vstep(i, n):
        j = i + 2
        if not VX & 1:
            a(f'v_readlane_b32 s{64 + (i & 1)}, v{SC + (1 if j >= 32 else 0)}, {rev5(j & 31)}')
            sp = 64 + ((i + 1) & 1)
            for r in range(4): a(f'v_perm_b32 v{S0 + 4*((i+1)&1) + r}, s{sp}, s{sp}, v{SEL+r}')
        ac = ACC + 4 * (i & 1)
        if n is not None: ensure(n)
        if not VX & 2: a(f'v_mfma_f32_16x16x32_bf16 {vr(ac)}, {vr(S0 + 4*(i&1))}, {vr(slot_reg(256 + i))}, {vr(ac)}')
    for i in range(32):
        assert st['landed'] >= 256 + i
        vstep(i, None)
        sample(i)
        if CKH and i == 15: checkpoint(1)
        if i == 26 and not EG: a(f'ds_read_b32 v{CF}, v{LA} offset:{COEF}')
        if i == 31:
            a('s_add_u32 s59, s59, 1')
            if CS == 3:
                for q_ in (2, 4, 6):
                    a(f's_cmp_lg_u32 s59, {q_}'); a(f's_cbranch_scc1 L_vq{q_}'); stamp(q_ // 2); a.label(f'L_vq{q_}')
            if not EG:
                a('s_cmp_lt_u32 s59, 8')
                a('s_cbranch_scc0 L_vdone')
            shift_sc()
            checkpoint(1)
            if EW: a(f's_cmp_ge_u32 s59, {ET}'); a('s_cselect_b64 vcc, -1, 0')
        issue()
    if EG:
        a('s_cmp_lt_u32 s59, 7')
        a('s_cbranch_scc1 L_vloop')
        st['issued'] += 192; st['landed'] += 192
        for i in range(32):
            while 512 - EG <= st['issued'] < 512: issue(WE)
            vstep(i, 480 + i)
            if st['issued'] < 512 - EG: sample(i)
            if i == 26: a(f'ds_read_b32 v{CF}, v{LA} offset:{COEF}')
            if st['issued'] < 512 - EG: issue()
    else:
        a('s_branch L_vloop')
    a.label('L_vdone')
    if CS in (0, 3): stamp(7)
    a('s_waitcnt lgkmcnt(0)')
    a(f'v_readfirstlane_b32 s59, v{CF}')
    for k in range(4): a(f'v_add_f32 v{ACC+k}, v{ACC+k}, v{ACC+4+k}')
    a('s_cmp_eq_u32 s59, -1')
    a('s_cbranch_scc1 L_coefwait')
    a.label('L_coefok')
    for k in range(4): a(f'v_mul_f32 v{ACC+k}, v{CF}, v{ACC+k}')
    a(f'ds_write_b128 v{OA}, {vr(ACC)} offset:{OP}')
    a('s_mov_b64 exec, 1')
    a(f'ds_add_rtn_u32 v{LB}, v{RMAX}, v{LB} offset:{CNT}')
    a('s_mov_b64 exec, -1')
    for w in range(4): a(f'ds_read_b128 {vr(XR+4*w)}, v1 offset:{OP+1024*w}')
    a('s_waitcnt lgkmcnt(4)')
    a(f'v_readfirstlane_b32 s59, v{LB}')
    a('s_cmp_lg_u32 s59, 3')
    a('s_cbranch_scc1 L_sdone')
    a('s_waitcnt lgkmcnt(2)')
    for k in range(4): a(f'v_add_f32 v{XR+k}, v{XR+k}, v{XR+4+k}')
    a('s_waitcnt lgkmcnt(0)')
    for k in range(4): a(f'v_add_f32 v{XR+8+k}, v{XR+8+k}, v{XR+12+k}')
    for k in range(4): a(f'v_add_f32 v{XR+k}, v{XR+k}, v{XR+8+k}')
    a(f'v_cvt_pk_bf16_f32 v{XR}, v{XR}, v{XR+1}')
    a(f'v_cvt_pk_bf16_f32 v{XR+1}, v{XR+2}, v{XR+3}')
    a(f'v_min_u32 v{XR}, -2, v{XR}'); a(f'v_min_u32 v{XR+1}, -2, v{XR+1}')
    a(f'buffer_store_dwordx2 {vr(XR, 2)}, v{OG}, s[48:51], 0 offen sc1')
    if DBG:
        a('s_memrealtime s[86:87]'); a('s_cmp_lg_u32 s37, 5'); a('s_cbranch_scc1 L_sdone')
        a('s_waitcnt lgkmcnt(0)'); a('s_sub_u32 s86, s86, s84'); a('v_mov_b32 v200, s86'); a('s_lshl_b32 s86, s34, 2'); a('v_mov_b32 v201, s86')
        a('global_store_dword v201, v200, s[30:31] offset:32')
    a.label('L_sdone')
    if CS in (0, 3): stamp(6)
    if XBAR & 1: a('s_barrier')
    dump_stamps(200)
    a('s_endpgm')
    a.label('L_coefwait')
    a('s_mov_b32 s70, 0')
    a.label('L_coefloop')
    a(f'ds_read_b32 v{CF}, v{LA} offset:{COEF}')
    a('s_add_u32 s70, s70, 1'); a(f's_cmp_gt_u32 s70, {SPIN*8}'); a('s_cbranch_scc1 L_coefok')
    a('s_waitcnt lgkmcnt(0)')
    a(f'v_readfirstlane_b32 s59, v{CF}')
    a('s_cmp_eq_u32 s59, -1')
    a('s_cbranch_scc1 L_coefloop')
    a('s_branch L_coefok')

    a.label('L_helper')
    a('s_mov_b32 s62, 0x05040100'); a('s_mov_b32 s63, 0x07060302')
    a('v_and_b32 v2, 15, v0'); a('v_lshrrev_b32 v3, 4, v0')
    a('s_cmp_eq_u32 s3, 5'); a('s_cbranch_scc1 L_w5')
    if WH: a('s_cmp_gt_u32 s3, 5'); a('s_cbranch_scc1 L_w7')

    def xrow(dst, t):
        a(f'v_lshrrev_b32 v{t}, 2, v2'); a(f'v_lshlrev_b32 v{t}, 1, v{t}'); a(f'v_and_b32 v{dst}, 1, v2'); a(f'v_add_u32 v{dst}, v{dst}, v{t}')
        a(f'v_mul_u32_u24 v{dst}, 896, v{dst}'); a(f'v_lshlrev_b32 v{t}, 4, v3'); a(f'v_add_u32 v{dst}, v{dst}, v{t}')

    def polln(label, srdr, va, offs, D, M0=64, first=None, R=0, T=0, pol=' sc1', lim=None):
        n = len(offs)
        if R:
            for t in range(4*n): a(f'v_not_b32 v{D+t}, v{TG+(t&3)}')
        if first is not None:
            for t in range(n):
                a(f'buffer_load_dwordx4 {vr(D+4*t)}, v{va}, {srdr}, {offs[t]}{first}')
            a(f's_branch {label}_w')
        a.label(label)
        for t in range(n):
            a(f's_mov_b64 exec, s[{M0+2*t}:{M0+1+2*t}]')
            a(f'buffer_load_dwordx4 {vr(D+4*t)}, v{va}, {srdr}, {offs[t]}{pol}')
        if first is not None: a.label(label + '_w')
        a('s_add_u32 s54, s54, 1')
        a(f's_waitcnt vmcnt({n*(R-1) if R else 0})')
        for t in range(n):
            a(f's_mov_b64 exec, s[{M0+2*t}:{M0+1+2*t}]')
            if R:
                for k in range(4): a(f'v_mov_b32 v{T+4*t+k}, v{D+4*t+k}')
            tagcheck((T if R else D) + 4 * t, 8, M0 + 2 * t)
        a('s_mov_b64 exec, -1')
        a(f's_or_b64 s[80:81], s[{M0}:{M0+1}], s[{M0+2}:{M0+3}]')
        for t in range(2, n): a(f's_or_b64 s[80:81], s[80:81], s[{M0+2*t}:{M0+1+2*t}]')
        a(f's_cmp_gt_u32 s54, {lim or SPIN*(8 if R else 1)}'); a('s_cselect_b64 s[80:81], 0, s[80:81]')
        a('s_cmp_lg_u64 s[80:81], 0')
        a(f's_cbranch_scc1 {label}')

    RAW = 40; XA = 152; BT = 180; AC = 24
    if LY:
        a('s_and_b32 s34, s2, 7'); a('s_lshr_b32 s37, s2, 3'); a('s_lshr_b32 s35, s2, 4'); a('s_and_b32 s36, s37, 1')
    a('s_sub_u32 s56, s2, 16')
    a('s_and_b32 s57, s56, 1'); a('s_lshr_b32 s56, s56, 1')
    a('s_sub_u32 s58, s56, 64')
    a('s_lshr_b32 s59, s58, 1')
    a('s_movk_i32 s64, 3584'); a('s_movk_i32 s66, 256')
    a('s_cmp_lt_u32 s56, 64')
    a('s_cselect_b32 s64, 8192, s64')
    a('s_cselect_b32 s66, 32768, s66')
    a('s_cselect_b32 s59, s56, s59'); a('s_lshl_b32 s59, s59, 7')
    a('s_mul_i32 s65, s64, 25')
    a('s_mul_i32 s60, s64, 224'); a('s_mul_i32 s60, s60, s57'); a('s_add_u32 s59, s59, s60')
    a('s_mul_i32 s67, s64, 223'); a('s_add_u32 s67, s67, 128')
    a('s_lshl_b32 s60, s64, 3'); a('v_mul_u32_u24 v1, s60, v3'); a('v_lshlrev_b32 v9, 3, v2'); a('v_add_u32 v1, v1, v9')
    xrow(10, 9)
    a('s_mul_i32 s60, s57, 448')
    a('s_lshr_b32 s68, s56, 2'); a('s_lshl_b32 s68, s68, 11'); a('s_and_b32 s69, s56, 3'); a('s_lshl_b32 s69, s69, 8'); a('s_add_u32 s68, s68, s69')
    a('s_lshl_b32 s69, s57, 10'); a('s_add_u32 s68, s68, s69'); a(f's_add_u32 s68, s68, {WS_Q}')
    a('s_lshl_b32 s70, s58, 12'); a('s_lshl_b32 s69, s57, 11'); a('s_add_u32 s70, s70, s69'); a(f's_add_u32 s70, s70, {WS_G}')
    a('s_cmp_lt_u32 s56, 64'); a('s_cselect_b32 s68, s68, s70')
    a('s_mov_b32 s61, 0')
    a('s_waitcnt lgkmcnt(0)')
    wsb()
    a(f's_load_dword s4, s[32:33], {WS_EP}')
    a('s_cmp_lt_u32 s2, 16'); a('s_cbranch_scc1 L_nopiece')
    a('s_bitcmp1_b32 s58, 0')
    a('s_cselect_b32 s40, s22, s20'); a('s_cselect_b32 s41, s23, s21')
    a('s_cmp_lt_u32 s56, 64')
    a('s_cselect_b32 s40, s14, s40'); a('s_cselect_b32 s41, s15, s41')
    srd(40, 40, 's59', '0' if noWQ else 's67')
    srd(44, 8, None, 7168)
    for t in range(7):
        a(f'buffer_load_dwordx4 {vr(XA+4*t)}, v10, s[44:47], s60 offen' + (f' offset:{64*t}' if t else ''))
        for j in range(8):
            a(f'buffer_load_dwordx2 {vr(RAW+16*t+2*j, 2)}, v1, s[40:43], s61 offen' + WP_)
            if not (t == 6 and j == 7): a(f's_add_u32 s61, s61, s{64 if j < 7 else 65}')
    a('s_mul_i32 s67, s66, 7'); a('s_add_u32 s67, s67, 256')
    srd(48, 32, 's68', 's67')
    a('s_lshl_b32 s60, s66, 1'); a('v_mul_u32_u24 v1, s60, v3'); a('v_lshlrev_b32 v9, 4, v2'); a('v_add_u32 v1, v1, v9')
    a('s_waitcnt lgkmcnt(0)')
    tag_setup()
    for t in range(7):
        a(f's_waitcnt vmcnt({9*(6-t)})')
        transpose(RAW + 16 * t, BT + 16 * (t & 1))
        for cc in range(4):
            a(f'v_mfma_f32_16x16x32_bf16 {vr(AC+4*cc)}, {vr(XA+4*t)}, {vr(BT+16*(t&1)+4*cc)}, ' + ('0' if t == 0 else vr(AC+4*cc)))
    for i in range(2):
        tagit(RAW + 4 * i, [AC + 4 * cc + i for cc in range(4)])
        a(f'buffer_store_dwordx4 {vr(RAW+4*i)}, v1, s[48:51], ' + ('0' if i == 0 else 's66') + ' offen sc1')
    stamp(1)
    a('s_cmp_eq_u32 s34, 7')
    a('s_cbranch_scc1 L_w4_done')
    a('s_branch L_w4b')
    a.label('L_nopiece')
    a('s_waitcnt lgkmcnt(0)')
    tag_setup()
    if LY: a('s_cmp_eq_u32 s34, 7'); a('s_cbranch_scc1 L_w4_done')
    a.label('L_w4b')
    a('s_barrier')
    stamp(2)
    WF = 104; RD = 168; DF = 200; GU = 40; FR = 232
    a(f's_mul_i32 s58, s37, {128*896}'); a('s_lshl_b32 s59, s34, 7'); a('s_add_u32 s58, s58, s59')
    srd(40, 16, 's58', 0 if noWO else 127 * 896 + 128)
    a(f's_mul_i32 s58, s37, {64*896}'); a('s_add_u32 s58, s58, s59')
    a('s_cmp_lt_u32 s37, 28'); a(f's_cselect_b32 s60, {0 if noWO else 63*896+128}, 0'); a('s_cselect_b32 s58, s58, 0')
    srd(44, 24, 's58', 's60')
    a(f'v_mul_u32_u24 v1, {8*896}, v3'); a('v_lshlrev_b32 v9, 3, v2'); a('v_add_u32 v1, v1, v9')
    a('s_mov_b32 s59, 0')
    if WOS:
        a('v_mov_b32 v12, 0')
        grp = [('d', 0), ('d', 1), ('o', 0), ('o', 1), ('o', 2), ('o', 3)]
        nl = 0
        for gi, (w_, t) in enumerate(grp):
            if WOS[gi]:
                a('s_mov_b32 s72, 0')
                a.label(f'L_wos{gi}')
                a(f'ds_read_b32 v8, v12 offset:{MODE}')
                a('s_add_u32 s72, s72, 1'); a(f's_cmp_gt_u32 s72, {SPIN}'); a(f's_cbranch_scc1 L_wos{gi}_x')
                a('s_waitcnt lgkmcnt(0)')
                a('v_readfirstlane_b32 s56, v8')
                a(f's_cmp_lt_u32 s56, {32256*WOS[gi]}'); a(f's_cbranch_scc1 L_wos{gi}')
                a.label(f'L_wos{gi}_x')
                a('s_waitcnt lgkmcnt(0)')
            for j in range(8):
                imm = (j & 3) * 896
                if j in (0, 4): a(f's_mov_b32 s59, {(32*t + j)*896}')
                if WOW and nl >= WOW: a(f's_waitcnt vmcnt({WOW-1})')
                nl += 1
                a(f'buffer_load_dwordx2 {vr((RAW if w_ == "o" else RD)+16*t+2*j, 2)}, v1, {"s[40:43]" if w_ == "o" else "s[44:47]"}, s59 offen' + (f' offset:{imm}' if imm else '') + WP_)
        a('s_waitcnt vmcnt(0)')
    else:
      nl = 0
      for t in range(4):
        for j in range(8):
            imm = (j & 3) * 896
            if WOW and nl >= WOW: a(f's_waitcnt vmcnt({WOW-1})')
            nl += 1
            a(f'buffer_load_dwordx2 {vr(RAW+16*t+2*j, 2)}, v1, s[40:43], s59 offen' + (f' offset:{imm}' if imm else '') + WP_)
            if t < 2:
                if WOW and nl >= WOW: a(f's_waitcnt vmcnt({WOW-1})')
                nl += 1
                a(f'buffer_load_dwordx2 {vr(RD+16*t+2*j, 2)}, v1, s[44:47], s59 offen' + (f' offset:{imm}' if imm else '') + WP_)
            if j == 3: a(f's_add_u32 s59, s59, {4*896}')
            if j == 7 and t < 3: a(f's_add_u32 s59, s59, {28*896}')
    a('s_lshl_b32 s58, s37, 13'); a(f's_add_u32 s58, s58, {WS_G}')
    srd(48, 32, 's58', 8192)
    a('v_lshlrev_b32 v10, 4, v0')
    for k in range(16): a(f'v_mov_b32 v{FR+k}, 0')
    for t in range(4):
        a(f's_waitcnt vmcnt({[32, 16, 8, 0][t]})')
        transpose(RAW + 16 * t, WF + 16 * t)
        if t < 2: transpose(RD + 16 * t, DF + 16 * t)
    a('s_cmp_ge_u32 s37, 28'); a('s_cbranch_scc1 L_noffn')
    if noFFN: a('s_branch L_noffn')
    for t in range(8): a(f's_mov_b64 s[{64+2*t}:{65+2*t}], -1')
    a('s_mov_b32 s54, 0'); a('s_mov_b32 s59, 4096')
    polln('L_gupoll', 's[48:51]', 10, [('s59' if t >= 4 else '0') + ' offen' + (f' offset:{1024*(t&3)}' if t & 3 else '') for t in range(8)], GU, first=GP_)
    untag(GU, 32)
    for k in range(8): a(f'v_add_f32 v{16+k}, v{GU+k}, v{GU+8+k}')
    for k in range(8): a(f'v_add_f32 v{24+k}, v{GU+16+k}, v{GU+24+k}')
    rne(16, 16, 16, 32)
    for k in range(8): a(f'v_mul_f32 v{32+k}, {LOG2E ^ 0x80000000:#x}, v{16+k}')
    for k in range(8): a(f'v_exp_f32 v{32+k}, v{32+k}')
    for k in range(8): a(f'v_add_f32 v{32+k}, 1.0, v{32+k}')
    for k in range(8): a(f'v_rcp_f32 v{32+k}, v{32+k}')
    for k in range(8): a(f'v_mul_f32 v{16+k}, v{16+k}, v{32+k}')
    rne(16, 16, 8, 32)
    for k in range(8): a(f'v_mul_f32 v{16+k}, v{16+k}, v{24+k}')
    for k in range(4): a(f'v_cvt_pk_bf16_f32 v{16+k}, v{16+2*k}, v{17+2*k}')
    a(f'v_mul_u32_u24 v9, {HBS}, v3'); a('v_lshlrev_b32 v8, 3, v2'); a('v_add_u32 v9, v9, v8')
    a(f'ds_write_b64 v9, v[16:17] offset:{HB}'); a(f'ds_write_b64 v9, v[18:19] offset:{HB+4*HBS}')
    a('v_lshrrev_b32 v8, 1, v2'); a(f'v_mul_u32_u24 v9, {HBS}, v8'); a('v_and_b32 v8, 1, v2'); a('v_lshlrev_b32 v8, 6, v8'); a('v_add_u32 v9, v9, v8')
    a('v_lshlrev_b32 v8, 4, v3'); a('v_add_u32 v9, v9, v8')
    a(f'ds_read_b128 v[16:19], v9 offset:{HB}')
    a('s_waitcnt lgkmcnt(0)')
    for t in range(2):
        for cc in range(4):
            a(f'v_mfma_f32_16x16x32_bf16 {vr((FR if t == 0 else 40)+4*cc)}, v[16:19], {vr(DF+16*t+4*cc)}, 0')
    for cc in range(4):
        for r in (1, 3): a(f'v_mov_b32 v{FR+4*cc+r}, v{40+4*cc+r}')
    a.label('L_noffn')
    a('s_lshl_b32 s58, s35, 13'); a('s_lshl_b32 s59, s36, 8'); a('s_add_u32 s58, s58, s59'); a(f's_add_u32 s58, s58, {WS_O}')
    srd(44, 32, 's58', 15 * 512 + 256)
    a('s_mul_i32 s58, s37, 1792'); a('s_lshl_b32 s59, s34, 8'); a('s_add_u32 s58, s58, s59'); a(f's_add_u32 s58, s58, {WS_Y}')
    srd(48, 32, 's58', 0)
    a(f'v_mul_u32_u24 v9, {64*1792}, v3'); a('v_lshlrev_b32 v8, 4, v2'); a('v_add_u32 v9, v9, v8')
    a('v_lshlrev_b32 v1, 9, v2'); a('v_lshlrev_b32 v8, 4, v3'); a('v_add_u32 v1, v1, v8')
    a('v_lshlrev_b32 v10, 3, v3')
    a(f's_mov_b32 s59, {32*1792}')
    if LY: a('s_mov_b32 s78, 0x100000'); a(f's_mov_b32 s79, {0x100000 + 32*1792}')
    AF = 40; PA = 56; YR = 72
    a('s_mov_b32 s61, 0')
    for t in range(4): a(f's_mov_b64 s[{64+2*t}:{65+2*t}], 0')
    a.label('L_proj')
    a('s_mov_b32 s72, 0')
    a(f'ds_read_b64 v[12:13], v10 offset:{GMV}')
    AT = 88 if R1 else AF
    if R1:
        for t in range(16): a(f'v_mov_b32 v{AF+t}, -1')
        a('s_waitcnt lgkmcnt(0)')
        for k in range(16): a(f'v_mul_f32 v{PA+k}, v{12+((k>>1)&1)}, v{FR+k}')
    a.label('L_ppoll')
    for t in range(4):
        a(f's_mov_b64 exec, s[{64+2*t}:{65+2*t}]')
        a(f'buffer_load_dwordx4 {vr(AF+4*t)}, v1, s[44:47], 0 offen' + (f' offset:{64*t}' if t else '') + ' sc1')
    a('s_mov_b64 exec, -1')
    a('s_add_u32 s72, s72, 1')
    if not R1:
        a('s_waitcnt lgkmcnt(0)')
        for k in range(16): a(f'v_mul_f32 v{PA+k}, v{12+((k>>1)&1)}, v{FR+k}')
    a(f's_waitcnt vmcnt({4*(R1-1) if R1 else 0})')
    for t in range(4):
        b = AT + 4 * t
        a(f's_mov_b64 exec, s[{64+2*t}:{65+2*t}]')
        if R1:
            for k in range(4): a(f'v_mov_b32 v{b+k}, v{AF+4*t+k}')
        a(f'v_max3_u32 v8, v{b}, v{b+1}, v{b+2}'); a(f'v_max_u32 v8, v8, v{b+3}')
        a(f'v_cmp_eq_u32_e64 s[{64+2*t}:{65+2*t}], -1, v8')
    a('s_mov_b64 exec, -1')
    a('s_or_b64 s[74:75], s[64:65], s[66:67]'); a('s_or_b64 s[76:77], s[68:69], s[70:71]'); a('s_or_b64 s[74:75], s[74:75], s[76:77]')
    a(f's_cmp_gt_u32 s72, {SPIN*(8 if R1 else 1)}'); a('s_cselect_b64 s[74:75], 0, s[74:75]')
    a('s_cmp_lg_u64 s[74:75], 0')
    a('s_cbranch_scc1 L_ppoll')
    for t in range(4):
        for cc in range(4):
            a(f'v_mfma_f32_16x16x32_bf16 {vr(PA+4*cc)}, {vr(AT+4*t)}, {vr(WF+16*t+4*cc)}, {vr(PA+4*cc)}')
    for i in range(2):
        for cc in range(4): a(f'v_add_f32 v{YR+8+cc}, v{PA+4*cc+2*i}, v{PA+4*cc+2*i+1}')
        tagit(YR + 4 * i, [YR + 8 + cc for cc in range(4)])
        if LY: a(f'buffer_store_dwordx4 {vr(YR+4*i)}, v9, s[48:51], s{78+i} offen')
        else: a(f'buffer_store_dwordx4 {vr(YR+4*i)}, v9, s[48:51], ' + ('0' if i == 0 else 's59') + ' offen sc1')
    if LY:
        for i in range(2): a(f'buffer_store_dwordx4 {vr(YR+4*i)}, v9, s[48:51], ' + ('0' if i == 0 else 's59') + ' offen sc1')
    a('s_cmp_eq_u32 s61, 1')
    a('s_cbranch_scc1 ' + ('L_w4_bar' if XBAR & 2 else 'L_w4_done'))
    a('s_mov_b32 s61, 1')
    a(f's_mov_b32 s50, {7*32*1792 + 256 + (0x100000 if LY else 0)}')
    if LY:
        for k in range(4): a(f'v_not_b32 v{YR+k}, v{TG+k}')
        if LX:
            a('s_getreg_b32 s60, hwreg(HW_REG_XCC_ID, 0, 3)'); a('s_lshl_b32 s60, s60, 8'); a(f'v_xor_b32 v{YR}, s60, v{YR}')
        for i in range(2): a(f'buffer_store_dwordx4 {vr(YR)}, v9, s[48:51], s{78+i} offen')
    for t in range(4): a(f's_mov_b64 s[{64+2*t}:{65+2*t}], -1')
    stamp(3)
    a('s_barrier')
    stamp(4)
    a('s_branch L_proj')
    if XBAR & 2:
        a.label('L_w4_bar')
        stamp(6)
        a('s_barrier')
        dump_stamps(104)
        a('s_endpgm')
    a.label('L_w4_done')
    stamp(6)
    dump_stamps(104)
    a('s_endpgm')

    a.label('L_w5')
    a('v_mov_b32 v8, -1'); a('v_mov_b32 v9, -1'); a('v_mov_b32 v10, -1'); a('v_mov_b32 v11, -1'); a('v_mov_b32 v12, 0')
    a(f'ds_write_b128 v12, v[8:11] offset:{ML}'); a(f'ds_write_b128 v12, v[8:11] offset:{ML+16}'); a(f'ds_write_b128 v12, v[8:11] offset:{COEF}')
    a(f'ds_write_b32 v12, v12 offset:{CNT}')
    if QP: a(f'ds_write_b32 v12, v12 offset:{OP}')
    if WH or RV:
        a('v_mov_b32 v13, 0'); a('v_mov_b32 v14, 0'); a('v_mov_b32 v15, 0')
        a(f'ds_write_b128 v12, v[12:15] offset:{PROG}'); a(f'ds_write_b128 v12, v[12:15] offset:{MODE}')
    a('s_lshl_b32 s59, s35, 13'); a('s_lshl_b32 s60, s39, 9'); a('s_add_u32 s59, s59, s60'); a(f's_add_u32 s59, s59, {WS_O}')
    a('s_lshl_b32 s58, s34, 15'); a('s_lshl_b32 s60, s35, 11'); a('s_add_u32 s58, s58, s60'); a(f's_add_u32 s58, s58, {WS_Q}')
    a('v_lshlrev_b32 v1, 4, v0'); a('v_lshlrev_b32 v13, 3, v0')
    a('s_mul_i32 s57, s34, 896')
    a('s_waitcnt lgkmcnt(0)')
    wsb()
    a(f's_load_dword s4, s[32:33], {WS_EP}')
    srd(48, 32, 's59', 512)
    a('buffer_store_dwordx2 v[8:9], v13, s[48:51], 0 offen sc1')
    srd(40, 32, 's58', 2048)
    srd(44, 8, 's57', 896)
    srd(48, 26, None, 896)
    a('buffer_load_dwordx4 v[40:43], v1, s[44:47], 0 offen')
    a('buffer_load_dwordx4 v[44:47], v1, s[48:51], 0 offen')
    if TV:
        a('s_lshl_b32 s57, s2, 20')
        srd(72, 12, 's57', 64)
        a('buffer_load_dword v48, v12, s[72:75], 0 offen')
    for t in range(2): a(f's_mov_b64 s[{64+2*t}:{65+2*t}], -1')
    a('s_mov_b32 s54, 0')
    a('s_waitcnt lgkmcnt(0)')
    tag_setup()
    a('s_waitcnt vmcnt(0)')
    if QP:
        a('s_mov_b32 s72, 0')
        a.label('L_qwait')
        a(f'ds_read_b32 v16, v12 offset:{OP}')
        a('s_add_u32 s72, s72, 1'); a('s_cmp_gt_u32 s72, 400'); a('s_cbranch_scc1 L_qwait_x')
        a('s_waitcnt lgkmcnt(0)')
        a('v_readfirstlane_b32 s56, v16')
        a('s_cmp_lg_u32 s56, 0xff800000'); a('s_cbranch_scc1 L_qwait')
        a.label('L_qwait_x')
        a('s_waitcnt lgkmcnt(0)')
    polln('L_qpoll', 's[40:43]', 1, ['0 offen', '0 offen offset:1024'], 16)
    untag(16, 8)
    for k in range(4): a(f'v_add_f32 v{16+k}, v{16+k}, v{20+k}')
    a('v_cvt_pk_bf16_f32 v16, v16, v17'); a('v_cvt_pk_bf16_f32 v17, v18, v19')
    a(f'ds_write_b64 v13, v[16:17] offset:{QB}')
    a('s_waitcnt lgkmcnt(0)')
    stamp(1)
    a('s_barrier')
    for k in range(4):
        a(f'v_lshlrev_b32 v{16+2*k}, 16, v{40+k}'); a(f'v_and_b32 v{17+2*k}, 0xffff0000, v{40+k}')
        a(f'v_lshlrev_b32 v{24+2*k}, 16, v{44+k}'); a(f'v_and_b32 v{25+2*k}, 0xffff0000, v{44+k}')
    for k in range(8): a(f'v_mul_f32 v{16+k}, v{16+k}, v{24+k}')
    rne(16, 16, 8, 24)
    for k in range(1, 8): a(f'v_add_f32 v16, v16, v{16+k}')
    for o in wave_reduce('v_add_f32', 16, 17): a(o)
    rne(16, 16, 2, 24)
    a(f'v_mul_f32 v16, {LOG2E ^ 0x80000000:#x}, v16'); a('v_exp_f32 v16, v16'); a('v_add_f32 v16, 1.0, v16'); a('v_rcp_f32 v16, v16')
    rne(16, 16, 2, 24)
    a('v_sub_f32 v18, 1.0, v16')
    rne(18, 18, 2, 24)
    GV = 60; GM = 61
    a(f'v_mov_b32 v{GV}, v16'); a(f'v_lshrrev_b32 v{GM}, 16, v18')
    def recoff(d, h, t):
        if RS:
            a(f's_and_b32 s{d}, s{h}, 7'); a(f's_lshl_b32 s{d}, s{d}, 12'); a(f's_lshr_b32 s{t}, s{h}, 3'); a(f's_lshl_b32 s{t}, s{t}, 8')
            a(f's_add_u32 s{d}, s{d}, s{t}'); a(f's_add_u32 s{d}, s{d}, 0x8000')
        else:
            a(f's_lshl_b32 s{d}, s{h}, 8'); a(f's_add_u32 s{d}, s{d}, {WS_REC}')
    recoff(58, 35, 57)
    if LY:
        srd(40, 32, None, 0x10000)
        a('s_lshr_b32 s66, s2, 4'); recoff(67, 66, 57)
        a('s_mov_b32 s66, s58')
        a('s_lshl_b32 s57, s39, 4'); a('s_add_u32 s57, s57, s58')
    else:
        srd(40, 32, 's58', 256)
        a('s_lshl_b32 s57, s39, 4')
    a(f's_mov_b32 s61, {CSC:#x}')
    a('s_mov_b32 s72, 0')
    a.label('L_pollml')
    a(f'ds_read_b128 v[16:19], v12 offset:{ML}'); a(f'ds_read_b128 v[20:23], v12 offset:{ML+16}')
    a('s_add_u32 s72, s72, 1'); a(f's_cmp_gt_u32 s72, {SPIN*8}'); a('s_cbranch_scc1 L_pollml_x')
    a('s_waitcnt lgkmcnt(0)')
    a('v_max3_u32 v24, v16, v17, v18'); a('v_max3_u32 v24, v24, v19, v20'); a('v_max3_u32 v24, v24, v21, v22'); a('v_max_u32 v24, v24, v23')
    a('v_readfirstlane_b32 s56, v24')
    a('s_cmp_eq_u32 s56, -1'); a('s_cbranch_scc1 L_pollml')
    a.label('L_pollml_x')
    a('s_waitcnt lgkmcnt(0)')
    a('v_max_f32 v24, v16, v17'); a('v_max3_f32 v24, v24, v18, v19')
    for k in range(4): a(f'v_sub_f32 v{28+k}, v{16+k}, v24')
    for k in range(4): a(f'v_mul_f32 v{28+k}, s61, v{28+k}')
    for k in range(4): a(f'v_exp_f32 v{28+k}, v{28+k}')
    a('v_mul_f32 v25, v28, v20')
    for k in range(1, 4): a(f'v_fmac_f32 v25, v{28+k}, v{20+k}')
    a(f'v_or_b32 v32, v24, v{GM}'); a('v_mov_b32 v33, v25'); a(f'v_mov_b32 v34, v{TG}'); a(f'v_mov_b32 v35, v{TG}')
    a('s_mov_b64 exec, 1')
    a('buffer_store_dwordx4 v[32:35], v12, s[40:43], s57 offen sc1')
    a('s_mov_b64 exec, -1')
    stamp(2)
    a('v_lshlrev_b32 v14, 4, v2')
    if LY:
        a('v_mov_b32 v8, s66'); a('v_mov_b32 v9, s67'); a('v_cmp_gt_u32 vcc, 16, v0'); a('v_cndmask_b32 v8, v9, v8, vcc'); a('v_add_u32 v14, v14, v8')
    a('v_lshrrev_b32 v15, 1, v2'); a('v_lshlrev_b32 v15, 2, v15')
    if RV:
        a('s_mov_b32 s72, 0')
        a.label('L_rwait')
        a(f'ds_read_b32 v8, v12 offset:{PROG}')
        a('s_add_u32 s72, s72, 1'); a(f's_cmp_gt_u32 s72, {SPIN}'); a('s_cbranch_scc1 L_rwait_x')
        a('s_waitcnt lgkmcnt(0)')
        a('v_readfirstlane_b32 s56, v8')
        a(f's_cmp_lt_u32 s56, {32256*((2*RV + 13) if CKH else (RV + (7 if WH else 0)))}'); a('s_cbranch_scc1 L_rwait')
        a.label('L_rwait_x')
        a('s_waitcnt lgkmcnt(0)')
    a('s_mov_b32 s72, 0')
    if LY: a('s_mov_b32 s64, -1'); a('s_mov_b32 s65, 0')
    else: a('s_mov_b64 s[64:65], 0xffff')
    a.label('L_recpoll')
    a('s_mov_b64 exec, s[64:65]')
    a('buffer_load_dwordx4 v[36:39], v14, s[40:43], 0 offen sc1')
    a('s_add_u32 s72, s72, 1')
    a('s_waitcnt vmcnt(0)')
    a(f'v_xor_b32 v8, v38, v{TG}'); a(f'v_xor_b32 v9, v39, v{TG}'); a('v_or_b32 v8, v8, v9')
    a('v_cmp_ne_u32_e64 s[64:65], 0, v8')
    a('s_mov_b64 exec, -1')
    a(f's_cmp_gt_u32 s72, {SPIN}'); a('s_cselect_b64 s[64:65], 0, s[64:65]')
    a('s_cmp_lg_u64 s[64:65], 0')
    a('s_cbranch_scc1 L_recpoll')
    a('s_xor_b32 s56, s39, 1')
    a('v_readlane_b32 s58, v36, s56'); a('v_readlane_b32 s59, v37, s56')
    a('v_lshlrev_b32 v8, 16, v36')
    a('s_mov_b64 exec, 0xffff')
    a(f'ds_write_b32 v15, v8 offset:{GMV}')
    a('s_mov_b64 exec, -1')
    a('s_and_b32 s58, s58, 0xffff0000')
    a('v_max_f32 v26, s58, v24')
    a('v_sub_f32 v27, s58, v26'); a('v_sub_f32 v24, v24, v26')
    a('v_mul_f32 v27, s61, v27'); a('v_mul_f32 v24, s61, v24')
    a('v_exp_f32 v27, v27'); a('v_exp_f32 v24, v24')
    a('v_mul_f32 v27, s59, v27'); a('v_fmac_f32 v27, v24, v33')
    a('v_rcp_f32 v27, v27')
    a('v_mul_f32 v27, v27, v24')
    a(f'v_mul_f32 v27, v{GV}, v27')
    for k in range(4): a(f'v_mul_f32 v{28+k}, v27, v{28+k}')
    for k in range(4): a(f'v_min_u32 v{28+k}, -2, v{28+k}')
    a(f'ds_write_b128 v12, v[28:31] offset:{COEF}')
    a('s_waitcnt lgkmcnt(0)')
    stamp(3)
    if LY:
        a('s_bfe_u32 s34, s2, 0x30003'); a('s_and_b32 s37, s2, 7'); a('s_lshl_b32 s37, s37, 1'); a('s_lshr_b32 s58, s2, 6')
        a('s_cmp_gt_u32 s58, 1'); a('s_cselect_b32 s58, 16, s58'); a('s_add_u32 s37, s37, s58')
    a('s_cmp_lt_u32 s37, 14')
    a('s_cbranch_scc1 L_fin')
    dump_stamps(40)
    a('s_endpgm')
    a.label('L_fin')
    a(f's_mul_i32 s58, s34, {32*1792}'); a(f's_add_u32 s58, s58, {WS_Y}')
    srd(40, 32, 's58', 32 * 1792)
    if LY: a('s_add_u32 s58, s58, 0x100000'); srd(48, 32, 's58', 32 * 1792)
    a('v_lshrrev_b32 v16, 3, v0'); a('v_mul_u32_u24 v1, 1792, v16'); a('v_and_b32 v16, 7, v0'); a('v_lshlrev_b32 v16, 4, v16'); a('v_add_u32 v1, v1, v16')
    a('s_lshl_b32 s59, s37, 7'); a('v_add_u32 v1, s59, v1')
    for u in range(1, 4): a(f's_mov_b32 s{75+u}, {u*8*1792}')
    a('s_mul_i32 s59, s34, 896')
    srd(44, 28, 's59', 0)
    a('s_lshl_b32 s59, s37, 6'); a('v_add_u32 v13, s59, v13')
    a('v_cmp_gt_u32 vcc, 8, v0'); a(f'v_mov_b32 v16, {OOB:#x}'); a('v_cndmask_b32 v13, v16, v13, vcc')
    if LX:
        a('v_mul_u32_u24 v17, 1792, v0'); a('s_lshl_b32 s59, s37, 7'); a('v_add_u32 v17, s59, v17')
        a('buffer_load_dword v18, v17, s[48:51], 0 offen' + LP_)
        a('s_getreg_b32 s60, hwreg(HW_REG_XCC_ID, 0, 3)'); a('s_lshl_b32 s60, s60, 8'); a('s_xnor_b32 s60, s60, s4')
        a('s_waitcnt vmcnt(0)')
        a('v_cmp_ne_u32 vcc, s60, v18')
        a('s_mov_b32 s55, vcc_lo')
    a('s_mov_b32 s61, 0')
    for t in range(4): a(f's_mov_b64 s[{64+2*t}:{65+2*t}], 0')
    a.label('L_gather')
    a('s_mov_b32 s54, 0')
    if LY:
        assert not R2
        if LX: a('s_cmp_lg_u32 s55, 0'); a('s_cbranch_scc1 L_gpoll')
        polln('L_gpolla', 's[48:51]', 1, ['0 offen', 's76 offen', 's77 offen', 's78 offen'], 16, pol=LP_, lim=NA)
        a(f's_cmp_le_u32 s54, {NA}'); a('s_cbranch_scc1 L_gok')
    polln('L_gpoll', 's[40:43]', 1, ['0 offen', 's76 offen', 's77 offen', 's78 offen'], 16, R=R2, T=64)
    if LY: a.label('L_gok')
    YT = 64 if R2 else 16
    if UY: untag(YT, 16)
    for k in range(4): a(f'v_add_f32 v{YT+k}, v{YT+k}, v{YT+4+k}')
    for k in range(4): a(f'v_add_f32 v{YT+8+k}, v{YT+8+k}, v{YT+12+k}')
    for k in range(4): a(f'v_add_f32 v{48+k}, v{YT+k}, v{YT+8+k}')
    for k in range(4): a(f'v_add_f32_dpp v{48+k}, v{48+k}, v{48+k} row_ror:8 row_mask:0xf bank_mask:0xf')
    for sw in ('v_permlane16_swap_b32', 'v_permlane32_swap_b32'):
        for k in range(4): a(f'v_mov_b32 v{52+k}, v{48+k}')
        for k in range(4): a(f'{sw} v{48+k}, v{52+k}')
        for k in range(4): a(f'v_add_f32 v{48+k}, v{48+k}, v{52+k}')
    a('v_cvt_pk_bf16_f32 v52, v48, v49'); a('v_cvt_pk_bf16_f32 v53, v50, v51')
    a('buffer_store_dwordx2 v[52:53], v13, s[44:47], 0 offen')
    a('s_cmp_eq_u32 s61, 1')
    a('s_cbranch_scc1 L_fin_done')
    a('s_mov_b32 s61, 1')
    a('s_mov_b32 s46, 896')
    for t in range(4): a(f's_mov_b64 s[{64+2*t}:{65+2*t}], -1')
    stamp(4)
    a('s_barrier')
    if B3: a('s_barrier')
    stamp(5)
    a('s_branch L_gather')
    a.label('L_fin_done')
    stamp(6)
    if DBG:
        a('s_memrealtime s[86:87]'); a('s_cmp_lg_u32 s37, 0'); a('s_cbranch_scc1 L_nodbg')
        a('s_waitcnt lgkmcnt(0)'); a('s_sub_u32 s86, s86, s84'); a('v_mov_b32 v70, s86'); a('s_lshl_b32 s86, s34, 2'); a('v_mov_b32 v71, s86')
        a('global_store_dword v71, v70, s[30:31]')
        a.label('L_nodbg')
    a('s_cmp_lg_u32 s2, 0')
    a('s_cbranch_scc1 L_noep')
    a('s_mov_b64 exec, 1')
    a(f'global_store_dword v12, v{TG}, s[32:33] offset:{WS_EP}')
    a('s_mov_b64 exec, -1')
    a.label('L_noep')
    dump_stamps(80)
    a('s_endpgm')

    if WH and WC == 8:
        RN = RM + 1
        a.label('L_w7')
        a('v_mov_b32 v1, 0')
        a('s_getreg_b32 s67, hwreg(HW_REG_XCC_ID, 0, 3)')
        a('s_mov_b32 s57, 0'); a('s_mov_b32 s58, 0'); a('s_mov_b32 s72, 0'); a('s_mov_b32 s68, 0')
        T_ = sum((x & 15) << (4 * k) for k, x in enumerate(XQ or (0,) * 8))
        a('s_lshl_b32 s60, s67, 2'); a(f's_lshr_b32 s66, {T_:#x}, s60'); a('s_bfe_i32 s66, s66, 0x40000')
        a('s_lshl_b32 s59, s67, 13'); a(f's_add_u32 s59, s59, {WS_CTR}')
        a('s_lshr_b32 s60, s2, 3')
        a('v_lshlrev_b32 v13, 2, v0'); a('v_add_u32 v8, s59, v13')
        a('s_lshl_b32 s61, s60, 8'); a('v_add_u32 v9, s61, v8')
        a('s_lshl_b32 s62, 1, s60'); a('s_mov_b32 s63, 0')
        a('v_lshlrev_b32 v12, 8, v0'); a('s_add_u32 s59, s59, 384'); a('v_add_u32 v12, s59, v12')
        a('v_and_b32 v10, 1, v0'); a('v_lshlrev_b32 v10, 12, v10'); a('s_lshl_b32 s60, s67, 2'); a('s_add_u32 s60, s60, 0x2000'); a('v_add_u32 v10, s60, v10')
        a('s_and_b32 s60, s67, 1'); a('s_lshl_b32 s60, s60, 12'); a('s_add_u32 s60, s60, 0x2000'); a('v_add_u32 v11, s60, v13')
        a('s_lshl_b32 s64, 1, s67'); a('s_xor_b32 s64, s64, 0xff'); a('s_mov_b32 s65, 0')
        a('s_waitcnt lgkmcnt(0)')
        wsb()
        a(f's_load_dword s4, s[32:33], {WS_EP}')
        a('global_store_dword v9, v1, s[32:33]')
        a('s_waitcnt lgkmcnt(0)')
        a('s_add_u32 s4, s4, 0x01010101'); a('s_or_b32 s4, s4, 0x100'); a('s_andn2_b32 s4, s4, 0xff'); a('v_mov_b32 v3, s4')
        a('s_barrier')
        a.label('L_w7poll')
        a(f'ds_read_b128 v[4:7], v1 offset:{PROG}')
        a('s_add_u32 s72, s72, 1'); a(f's_cmp_gt_u32 s72, {SPIN*8}'); a('s_cbranch_scc1 L_end')
        a('s_waitcnt lgkmcnt(0)')
        a('v_min_u32 v4, v4, v5'); a('v_min3_u32 v4, v4, v6, v7')
        a('v_readfirstlane_b32 s59, v4')
        a('s_cmp_lt_u32 s59, s57'); a('s_cbranch_scc1 L_w7poll')
        a('s_mov_b64 exec, s[62:63]')
        a('global_store_dword v8, v3, s[32:33]')
        a('s_mov_b64 exec, -1')
        a('global_load_dword v2, v8, s[32:33]' + BL_)
        a('s_add_u32 s57, s57, 32256')
        a('s_and_b32 s60, s58, 3'); a('s_add_u32 s60, s60, s66'); a('s_ashr_i32 s60, s60, 2')
        a('s_waitcnt vmcnt(0)')
        a('v_cmp_eq_u32 vcc, v2, v3')
        a('v_readlane_b32 s61, v2, 32')
        a('v_add_u32 v8, 0x100, v8')
        a('s_andn2_b32 s59, vcc_lo, s62')
        a('s_bcnt1_i32_b32 s59, s59')
        a('s_sub_u32 s61, s61, s4'); a('s_cmp_lt_u32 s61, 0x40'); a('s_cselect_b32 s68, s61, s68')
        a('s_cmp_eq_u32 s68, 0'); a('s_cselect_b32 s61, 32, s68')
        a('s_add_u32 s60, s60, s61'); a('s_add_u32 s60, s60, s59')
        if not THS: a(f's_cmp_ge_i32 s60, {TH+32}'); a('s_cselect_b32 s60, 1, 0')
        for k in range(4): a(f'v_mov_b32 v{4+k}, s60')
        a(f'ds_write_b128 v1, v[4:7] offset:{MODE}')
        if XT:
            TT = sum((x & 15) << (4 * k) for k, x in enumerate(XT))
            a(f's_and_b32 s60, s58, {RM}'); a('s_lshl_b32 s60, s60, 8'); a('s_or_b32 s60, s60, s59')
            a(f's_cmp_lg_u32 s60, {RO*256+R0}'); a('s_cbranch_scc1 L_w7n')
            a('s_mov_b64 exec, 3')
            a('global_store_dword v10, v3, s[32:33] sc1')
            a('s_mov_b64 exec, s[64:65]')
            a('global_load_dword v2, v11, s[32:33]' + CP_)
            a('s_waitcnt vmcnt(0)')
            a('v_cmp_eq_u32 vcc, v2, v3')
            a(f's_mov_b64 exec, {(1 << RN) - 1}')
            a('s_bcnt1_i32_b64 s59, vcc')
            a('s_lshl_b32 s59, s59, 2'); a(f's_lshr_b32 s59, {TT:#x}, s59'); a('s_bfe_i32 s59, s59, 0x40000')
            a('s_add_u32 s59, s59, 32'); a('s_add_u32 s59, s59, s4')
            a('v_mov_b32 v2, s59')
            a('global_store_dword v12, v2, s[32:33]')
            a('s_mov_b64 exec, -1')
            a.label('L_w7n')
            a('v_add_u32 v10, 0x80, v10'); a('v_add_u32 v11, 0x80, v11'); a('v_add_u32 v12, 0x100, v12')
        a('s_add_u32 s58, s58, 1')
        a(f's_cmp_lt_u32 s58, {NCK}'); a('s_cbranch_scc1 L_w7poll')
        a('s_waitcnt lgkmcnt(0)')
    elif WH and WC == 7:
        a.label('L_w7')
        a('v_mov_b32 v1, 0')
        a('s_getreg_b32 s59, hwreg(HW_REG_XCC_ID, 0, 3)')
        a('s_mov_b32 s57, 0'); a('s_mov_b32 s58, 0'); a('s_mov_b32 s72, 0')
        if XBI:
            T_ = sum((x & 15) << (4 * k) for k, x in enumerate(XBI))
            a('s_lshl_b32 s60, s59, 2'); a(f's_lshr_b32 s66, {T_:#x}, s60'); a('s_bfe_i32 s66, s66, 0x40000')
        a('s_lshl_b32 s59, s59, 12'); a(f's_add_u32 s59, s59, {WS_CTR}')
        a('s_lshr_b32 s60, s2, 3')
        a('v_lshlrev_b32 v8, 2, v0'); a('v_add_u32 v8, s59, v8')
        a('s_lshl_b32 s61, s60, 7'); a('v_add_u32 v9, s61, v8')
        a('s_lshl_b32 s62, 1, s60'); a('s_mov_b32 s63, 0')
        a('s_not_b32 s64, s62'); a('s_mov_b32 s65, 0')
        a('s_mov_b64 exec, 0xffffffff' if False else 's_mov_b32 exec_hi, 0')
        a('s_waitcnt lgkmcnt(0)')
        wsb()
        a(f's_load_dword s4, s[32:33], {WS_EP}')
        a('global_store_dword v9, v1, s[32:33]')
        a('s_waitcnt lgkmcnt(0)')
        a('s_add_u32 s4, s4, 0x01010101'); a('s_or_b32 s4, s4, 1'); a('v_mov_b32 v3, s4')
        a('s_barrier')
        a.label('L_w7poll')
        a(f'ds_read_b128 v[4:7], v1 offset:{PROG}')
        a('s_add_u32 s72, s72, 1'); a(f's_cmp_gt_u32 s72, {SPIN*8}'); a('s_cbranch_scc1 L_end')
        a('s_waitcnt lgkmcnt(0)')
        a('v_min_u32 v4, v4, v5'); a('v_min3_u32 v4, v4, v6, v7')
        a('v_readfirstlane_b32 s59, v4')
        a('s_cmp_lt_u32 s59, s57'); a('s_cbranch_scc1 L_w7poll')
        a('s_mov_b64 exec, s[62:63]')
        a('global_store_dword v8, v3, s[32:33]')
        a('s_mov_b64 exec, s[64:65]')
        a('global_load_dword v2, v8, s[32:33]' + BL_)
        a('s_add_u32 s57, s57, 32256'); a('s_add_u32 s58, s58, 1')
        a('s_waitcnt vmcnt(0)')
        a('v_cmp_eq_u32 vcc, v2, v3')
        a('s_mov_b32 exec_lo, -1')
        a('v_add_u32 v8, 0x80, v8')
        a('s_bcnt1_i32_b64 s59, vcc')
        if XBI: a('s_add_u32 s59, s59, s66')
        a(f's_cmp_ge_i32 s59, {TH}'); a('s_cselect_b32 s56, 1, 0')
        for k in range(4): a(f'v_mov_b32 v{4+k}, s56')
        a(f'ds_write_b128 v1, v[4:7] offset:{MODE}')
        a(f's_cmp_lt_u32 s58, {NCK}'); a('s_cbranch_scc1 L_w7poll')
        a('s_waitcnt lgkmcnt(0)')
    elif WH and WC == 6:
        a.label('L_w7')
        a('v_mov_b32 v1, 0'); a('v_mov_b32 v2, 1')
        a('s_getreg_b32 s59, hwreg(HW_REG_XCC_ID, 0, 3)')
        a('s_mov_b32 s57, 0'); a('s_mov_b32 s58, 0'); a('s_mov_b32 s72, 0')
        a('s_lshl_b32 s59, s59, 8'); a(f's_add_u32 s59, s59, {WS_CTR+256}')
        a('v_lshlrev_b32 v9, 2, v0'); a(f'v_add_u32 v9, {WS_CTR}, v9')
        a('v_lshlrev_b32 v8, 2, v0'); a('v_add_u32 v8, s59, v8')
        a('s_mov_b64 exec, 0xffff')
        a('s_waitcnt lgkmcnt(0)')
        wsb()
        a('global_load_dword v10, v8, s[32:33]')
        if XB: a('global_load_dword v11, v9, s[32:33]')
        a('s_waitcnt vmcnt(0)')
        a('s_mov_b64 exec, 1')
        a('s_barrier')
        a.label('L_w7poll')
        a(f'ds_read_b128 v[4:7], v1 offset:{PROG}')
        a('s_add_u32 s72, s72, 1'); a(f's_cmp_gt_u32 s72, {SPIN*8}'); a('s_cbranch_scc1 L_end')
        a('s_waitcnt lgkmcnt(0)')
        a('v_min_u32 v4, v4, v5'); a('v_min3_u32 v4, v4, v6, v7')
        a('v_readfirstlane_b32 s59, v4')
        a('s_cmp_lt_u32 s59, s57'); a('s_cbranch_scc1 L_w7poll')
        a('global_atomic_add v3, v8, v2, s[32:33] sc0')
        a('v_readlane_b32 s60, v10, s58')
        if XB: a('v_readlane_b32 s61, v11, s58')
        a('s_add_u32 s57, s57, 32256'); a('s_add_u32 s58, s58, 1')
        a('s_waitcnt vmcnt(0)')
        a('v_readfirstlane_b32 s59, v3')
        a('v_add_u32 v8, 4, v8')
        a('s_sub_u32 s59, s59, s60')
        a('s_ashr_i32 s60, s59, 16'); a('s_and_b32 s59, s59, 0xffff')
        a('s_add_u32 s60, s60, s59')
        a(f's_cmp_ge_i32 s60, {TH}'); a('s_cselect_b32 s56, 1, 0')
        for k in range(4): a(f'v_mov_b32 v{4+k}, s56')
        a(f'ds_write_b128 v1, v[4:7] offset:{MODE}')
        if XB:
            a(f's_cmp_lg_u32 s59, {XR_}'); a('s_cbranch_scc1 L_w7n')
            a('global_atomic_add v3, v9, v2, s[32:33] sc0 sc1')
            a('s_waitcnt vmcnt(0)')
            a('v_subrev_u32 v3, s61, v3'); a('v_min_u32 v3, 7, v3')
            a(f'v_mul_u32_u24 v3, {2*XB<<16}, v3'); a(f'v_subrev_u32 v3, {7*XB<<16}, v3')
            a('global_atomic_add v8, v3, s[32:33]')
            a.label('L_w7n')
            a('v_add_u32 v9, 4, v9')
        a(f's_cmp_lt_u32 s58, {NCK}'); a('s_cbranch_scc1 L_w7poll')
        a('s_waitcnt lgkmcnt(0)')
    elif WH and WC:
        a.label('L_w7')
        a('v_mov_b32 v1, 0'); a('v_mov_b32 v2, 1')
        a('s_mov_b64 exec, 1')
        a('s_mov_b32 s57, 0'); a('s_mov_b32 s58, 0'); a('s_mov_b32 s72, 0')
        a('s_waitcnt lgkmcnt(0)')
        wsb()
        a(f's_load_dword s4, s[32:33], {WS_EP}')
        a('s_lshr_b32 s59, s2, 3'); a('s_lshl_b32 s59, s59, 11'); a(f's_add_u32 s60, s59, {WS_CTR}')
        a('s_and_b32 s59, s2, 7'); a('s_lshl_b32 s61, s59, 2'); a('s_add_u32 s61, s61, s60'); a('v_mov_b32 v8, s61')
        a('s_lshr_b32 s61, 0x80, s59')
        if WC == 5:
            a('s_mov_b64 exec, -1')
            a('s_lshl_b32 s60, s2, 11'); a(f's_add_u32 s60, s60, {WS_MB}')
            a('s_andn2_b32 s62, s2, 7'); a('s_lshl_b32 s62, s62, 11'); a('s_lshl_b32 s56, s59, 2'); a('s_add_u32 s62, s62, s56'); a(f's_add_u32 s62, s62, {WS_MB}')
            a('v_lshlrev_b32 v8, 11, v0'); a('v_add_u32 v8, s62, v8')
            a('s_lshl_b32 s62, 1, s59'); a('s_xor_b32 s62, s62, 0xff'); a('s_mov_b32 s63, 0')
        a('s_waitcnt lgkmcnt(0)')
        a('s_add_u32 s4, s4, 0x01010101'); a('v_mov_b32 v3, s4')
        a('s_mov_b64 exec, 1')
        a('s_barrier')
        a.label('L_w7poll')
        a(f'ds_read_b128 v[4:7], v1 offset:{PROG}')
        a('s_add_u32 s72, s72, 1'); a(f's_cmp_gt_u32 s72, {SPIN*8}'); a('s_cbranch_scc1 L_end')
        a('s_waitcnt lgkmcnt(0)')
        a('v_min_u32 v4, v4, v5'); a('v_min3_u32 v4, v4, v6, v7')
        a('v_readfirstlane_b32 s59, v4')
        a('s_cmp_lt_u32 s59, s57'); a('s_cbranch_scc1 L_w7poll')
        if WC in (1, 3): a('global_store_dword v8, v3, s[32:33]' + WS_)
        if WC == 5:
            a('s_mov_b64 exec, s[62:63]'); a('global_store_dword v8, v3, s[32:33]' + WS_); a('v_add_u32 v8, 0x80, v8'); a('s_mov_b64 exec, 1')
        if WC != 3: a('s_load_dwordx8 s[64:71], s[32:33], s60')
        a(f's_add_u32 s57, s57, {32256*CKS}'); a('s_add_u32 s58, s58, 1'); a('s_add_u32 s60, s60, 128')
        a('s_mov_b32 s56, 0')
        a('s_waitcnt lgkmcnt(0)')
        if WC == 2: a('global_store_dword v8, v3, s[32:33]' + WS_)
        for k in range(8): a(f's_cmp_eq_u32 s{64+k}, s4'); a('s_addc_u32 s56, s56, s56')
        a('s_andn2_b32 s56, s56, s61'); a('s_bcnt1_i32_b32 s56, s56')
        a(f's_cmp_ge_u32 s56, {TH}'); a('s_cselect_b32 s56, 1, 0')
        if WC != 5: a('v_add_u32 v8, 0x80, v8')
        for k in range(4): a(f'v_mov_b32 v{4+k}, s56')
        a(f'ds_write_b128 v1, v[4:7] offset:{MODE}')
        a(f's_cmp_lt_u32 s58, {NCK}'); a('s_cbranch_scc1 L_w7poll')
        a('s_waitcnt lgkmcnt(0)')
    elif WH:
        a.label('L_w7')
        a('v_mov_b32 v1, 0'); a('v_mov_b32 v2, 1')
        a('s_mov_b64 exec, 1')
        a(f's_mov_b32 s56, {TH}'); a('s_mov_b32 s57, 0'); a('s_mov_b32 s58, 0'); a('s_mov_b32 s72, 0')
        a('s_waitcnt lgkmcnt(0)')
        wsb()
        a(f's_lshr_b32 s59, s2, {GS}'); a('s_lshl_b32 s59, s59, 8'); a(f's_add_u32 s59, s59, {WS_CTR}'); a('v_mov_b32 v8, s59')
        a(f's_and_b32 s59, s2, {(1<<GS)-1}')
        a('s_cmp_lg_u32 s59, 0'); a('s_cbranch_scc1 L_w7b')
        a(f'global_store_dword v8, v1, s[32:33] sc1')
        a.label('L_w7b')
        a('s_barrier')
        a.label('L_w7poll')
        a(f'ds_read_b128 v[4:7], v1 offset:{PROG}')
        a('s_add_u32 s72, s72, 1'); a(f's_cmp_gt_u32 s72, {SPIN*8}'); a('s_cbranch_scc1 L_end')
        a('s_waitcnt lgkmcnt(0)')
        a('v_min_u32 v4, v4, v5'); a('v_min3_u32 v4, v4, v6, v7')
        a('v_readfirstlane_b32 s59, v4')
        a('s_cmp_lt_u32 s59, s57'); a('s_cbranch_scc1 L_w7poll')
        a(f'global_atomic_add v3, v8, v2, s[32:33] sc0 sc1')
        a('s_add_u32 s57, s57, 32256'); a('s_add_u32 s58, s58, 1')
        a('s_waitcnt vmcnt(0)')
        a('v_cmp_le_i32 vcc, s56, v3')
        a(f's_add_u32 s56, s56, {1<<GS}')
        for k in range(4): a(f'v_cndmask_b32 v{4+k}, v1, v2, vcc')
        a(f'ds_write_b128 v1, v[4:7] offset:{MODE}')
        a(f's_cmp_lt_u32 s58, {NCK}'); a('s_cbranch_scc1 L_w7poll')
        a('s_waitcnt lgkmcnt(0)')
    a.label('L_end')
    a('s_endpgm')
    a.raw('.section .rodata,"a"'); a.raw('.p2align 6'); a.raw(f'.amdhsa_kernel {NAME}')
    a.raw('  .amdhsa_next_free_vgpr 256'); a.raw('  .amdhsa_next_free_sgpr 102'); a.raw('  .amdhsa_accum_offset 256')
    a.raw('  .amdhsa_group_segment_fixed_size 0'); a.raw('  .amdhsa_kernarg_size 104'); a.raw('  .amdhsa_user_sgpr_count 2')
    a.raw('  .amdhsa_user_sgpr_kernarg_segment_ptr 1'); a.raw('  .amdhsa_system_sgpr_workgroup_id_x 1'); a.raw('.end_amdhsa_kernel')
    return a.text()

if __name__ == '__main__':
    kw = eval('dict(' + (sys.argv[2] if len(sys.argv) > 2 else '') + ')')
    open(sys.argv[1], 'w').write(gen(**kw))
```
